```python
import torch

def _softmax(x, axis=-1):
    return torch.softmax(x, dim=axis)

def _gelu(x):
    return torch.nn.functional.gelu(x, approximate='tanh')

def _silu(x):
    return torch.nn.functional.silu(x)

def _sigmoid(x):
    return torch.sigmoid(x)

def _layernorm(x, axis=-1, eps=1e-05):
    m = x.mean(dim=axis, keepdim=True)
    v = x.var(dim=axis, keepdim=True, unbiased=False)
    return (x - m) / torch.sqrt(v + eps)

def _scatter_add(tgt, idx, src, axis=0):
    return tgt.clone().index_add_(axis, idx, src)

def _segment_sum(src, seg, n):
    out = torch.zeros((n,) + src.shape[1:], dtype=src.dtype)
    return out.index_add_(0, seg, src)

def _pad(x, pw):
    flat = tuple((v for pair in reversed(pw) for v in pair))
    return torch.nn.functional.pad(x, flat)
kernel_name = 'gated_mix__softmax_full_mha__memory_aug_recurrent_mem_tr__prompt'

def setup_inputs():

    _w = lambda a: (lambda t: t.to(torch.bfloat16) if t.is_floating_point() else t)(torch.as_tensor(a))

    def _A_setup():
        B, S, D = (1, 2048, 448)
        return {'x': _w((lambda *s: torch.randn(*s, dtype=torch.bfloat16) * 0.05)(B, S, D)), 'wqkv': _w((lambda *s: torch.randn(*s, dtype=torch.bfloat16) * 1.6)(D, 3 * D)), 'wo': _w((lambda *s: torch.randn(*s, dtype=torch.bfloat16) * 0.05)(D, D))}
    _A_in = _A_setup()

    def _B_setup():
        B, S, Dm = (1, 2048, 448)
        H, Dh = (16, 256)
        M, seg = (8, 32)
        seg = min(seg, S)
        S = S // seg * seg
        return {'x': _w((lambda *s: torch.randn(*s, dtype=torch.bfloat16) * 0.05)(B, S, Dm)), 'mem0': _w((lambda *s: torch.randn(*s, dtype=torch.bfloat16) * 1.6)(B, M, Dm)), 'Wq': _w((lambda *s: torch.randn(*s, dtype=torch.bfloat16) * 0.8)(Dm, H, Dh) * Dm ** (-0.5)), 'Wk': _w((lambda *s: torch.randn(*s, dtype=torch.bfloat16) * 0.8)(Dm, H, Dh) * Dm ** (-0.5)), 'Wv': _w((lambda *s: torch.randn(*s, dtype=torch.bfloat16) * 1.6)(Dm, H, Dh) * Dm ** (-0.5)), 'Wo': _w((lambda *s: torch.randn(*s, dtype=torch.bfloat16) * 1.6)(H, Dh, Dm) * (H * Dh) ** (-0.5)), 'seg_len': seg}
    _B_in = _B_setup()
    return {'A_x': _A_in['x'], 'A_wqkv': _A_in['wqkv'], 'A_wo': _A_in['wo'], 'B_x': _B_in['x'], 'B_mem0': _B_in['mem0'], 'B_Wq': _B_in['Wq'], 'B_Wk': _B_in['Wk'], 'B_Wv': _B_in['Wv'], 'B_Wo': _B_in['Wo'], 'B_seg_len': _B_in['seg_len'], 'gate_w': _w((lambda *s: torch.randn(*s, dtype=torch.bfloat16) * 0.05)(448) * 16.0)}

def reference(A_x, A_wqkv, A_wo, B_x, B_mem0, B_Wq, B_Wk, B_Wv, B_Wo, B_seg_len, gate_w):

    def _A_ref(x, wqkv, wo):
        B, S, D = x.shape
        H = 16
        Dh = D // H
        qkv = (lambda x, *d: x.permute(*d))((x @ wqkv).reshape(B, S, 3, H, Dh), 2, 0, 3, 1, 4)
        q, k, v = (qkv[0], qkv[1], qkv[2])
        scale = Dh ** (-0.5)
        scores = torch.einsum('bhqd,bhkd->bhqk', q, k) * scale
        p = _softmax(scores, axis=-1)
        o = torch.einsum('bhqk,bhkd->bhqd', p, v)
        return (lambda x, *d: x.permute(*d))(o, 0, 2, 1, 3).reshape(B, S, D) @ wo

    def _B_ref(x, mem0, Wq, Wk, Wv, Wo, seg_len):
        B, S, Dm = x.shape
        H, Dh = (Wq.shape[1], Wq.shape[2])
        M = mem0.shape[1]
        scale = Dh ** (-0.5)
        n_seg = S // seg_len
        L = M + seg_len
        idx = torch.arange(L)
        mask = (idx[:, None] < M) | (idx[:, None] >= idx[None, :])
        mem = mem0
        outs = []
        for s in range(n_seg):
            xs = x[:, s * seg_len:(s + 1) * seg_len, :].clone()
            h = torch.concatenate([mem, xs], axis=1)
            q = torch.einsum('btd,dhe->bhte', h, Wq)
            k = torch.einsum('btd,dhe->bhte', h, Wk)
            v = torch.einsum('btd,dhe->bhte', h, Wv)
            scores = torch.einsum('bhqe,bhke->bhqk', q, k) * scale
            scores = torch.where(mask[None, None], scores, -1000000000.0)
            p = _softmax(scores, axis=-1)
            o = torch.einsum('bhqk,bhke->bhqe', p, v)
            o = torch.einsum('bhte,hed->btd', o, Wo)
            mem = o[:, :M, :].clone()
            outs.append(o[:, M:, :])
        return torch.concatenate(outs, axis=1)
    x = A_x
    g = _sigmoid((x * gate_w).sum(-1, keepdims=True))
    a = _A_ref(x, A_wqkv, A_wo)
    b = _B_ref(x, B_mem0, B_Wq, B_Wk, B_Wv, B_Wo, B_seg_len)
    return g * a + (1 - g) * b
```

```python
import re

class Asm:
    def __init__(self):
        self.lines = []
        self.uid = 0
    def __call__(self, s):
        for l in s.split('\n'):
            l = l.strip()
            if l: self.lines.append(l)
    def label(self, name): self.lines.append(name + ':')
    def new(self, base):
        self.uid += 1
        return f'{base}_{self.uid}'
    def text(self): return '\n'.join(l if l.endswith(':') or l.startswith('.') or l.startswith(';') else '  ' + l for l in self.lines) + '\n'

def vr(a, n=1, f='v'):
    return f'{f}{a}' if n == 1 else f'{f}[{a}:{a+n-1}]'
def sr(a, n=1): return vr(a, n, 's')
def ar(a, n=1): return vr(a, n, 'a')

_reg = re.compile(r'\b([vas])(\d+)\b|\b([vas])\[(\d+):(\d+)\]')
def regs(op):
    out = set()
    for m in _reg.finditer(op):
        if m.group(1): out.add((m.group(1), int(m.group(2))))
        else:
            for i in range(int(m.group(4)), int(m.group(5)) + 1): out.add((m.group(3), i))
    if re.search(r'\bvcc\b', op): out |= {('s', 'vcc')}
    if re.search(r'\bexec\b', op): out |= {('s', 'exec')}
    if re.search(r'\bm0\b', op): out |= {('s', 'm0')}
    return out

TRANS = ('v_exp_', 'v_log_', 'v_rcp_', 'v_rsq_', 'v_sqrt_', 'v_sin_', 'v_cos_')
def split_ops(rest):
    ops, depth, cur = [], 0, ''
    for ch in rest:
        if ch in '[(': depth += 1
        if ch in '])': depth -= 1
        if ch == ',' and depth == 0: ops.append(cur.strip()); cur = ''
        else: cur += ch
    if cur.strip(): ops.append(cur.strip())
    return ops

class Ins:
    def __init__(self, line):
        line = line.split(';')[0].strip()
        p = line.split(None, 1)
        self.op = p[0]; rest = p[1] if len(p) > 1 else ''
        self.ops = split_ops(rest)
        op = self.op
        self.mfma = op.startswith('v_mfma') or op.startswith('v_smfmac')
        self.valu = op.startswith('v_') and not self.mfma
        self.vmem = op.startswith(('buffer_', 'global_', 'flat_'))
        self.ds = op.startswith('ds_')
        self.salu = op.startswith('s_')
        self.dpp = '_dpp' in op or 'row_' in rest or 'quad_perm' in rest
        self.perm = op.startswith('v_permlane')
        self.rdl = op.startswith(('v_readlane', 'v_readfirstlane'))
        self.trans = op.startswith(TRANS)
        self.passes = 0
        w, r = set(), set(); self.srcC = set(); self.ab = set()
        o = self.ops
        if self.mfma:
            self.passes = 8 if '32x32' in op else 4
            w = regs(o[0]); self.ab = regs(o[1]) | regs(o[2])
            if op.startswith('v_smfmac'):
                self.srcC = set(w); self.ab |= regs(o[3].split()[0])
            else: self.srcC = regs(o[3].split()[0])
            r = self.ab | self.srcC
        elif self.valu:
            if op == 'v_nop': pass
            elif self.perm: w = regs(o[0]) | regs(o[1]); r = set(w)
            else:
                w = regs(o[0]); k = 1
                if '_co_' in op or op.startswith(('v_div_scale', 'v_mad_u64')): w |= regs(o[1]); k = 2
                for x in o[k:]: r |= regs(x)
                if op.startswith('v_cmpx'): w |= {('s', 'exec')}
                if op.startswith(('v_fmac', 'v_pk_fmac', 'v_dot2c', 'v_writelane', 'v_mac')) or self.dpp or 'dst_unused:UNUSED_PRESERVE' in rest: r |= regs(o[0])
        elif self.vmem and not o: self.wide=False
        elif self.vmem:
            lds = ' lds' in (' ' + rest) or '_lds_' in op
            if ('load' in op and not lds) or ('atomic' in op and ' sc0' in rest and op.startswith('global')):
                w = regs(o[0])
                for x in o[1:]: r |= regs(x)
            else:
                for x in o: r |= regs(x)
                if 'atomic' in op and ' sc0' in rest: w = regs(o[0])
            if lds: r |= {('s', 'm0')}
            self.lds = lds
            self.wide = 'store' in op and ('x3' in op or 'x4' in op)
            if self.wide: self.data = regs(o[0]) if op.startswith('buffer') else regs(o[1])
        elif self.ds:
            if 'read' in op or 'permute' in op or 'swizzle' in op or '_rtn' in op:
                w = regs(o[0])
                for x in o[1:]: r |= regs(x)
            else:
                for x in o: r |= regs(x)
        elif self.salu:
            if op.startswith(('s_cmp', 's_cbranch', 's_branch', 's_waitcnt', 's_nop', 's_barrier', 's_endpgm', 's_sleep', 's_setprio', 's_bitcmp')):
                for x in o: r |= regs(x)
            else:
                w = regs(o[0])
                for x in o[1:]: r |= regs(x)
                if 'saveexec' in op: w |= {('s', 'exec')}
        self.w, self.r = w, r

def need(p, c):
    n = 0; tm = False
    vw = {x for x in p.w if x[0] in 'va'}; sw = {x for x in p.w if x[0] == 's'}
    if p.valu:
        if vw & c.r:
            if c.mfma: n = max(n, 2)
            if c.valu and c.dpp: n = max(n, 2)
            if c.perm: n = max(n, 2)
            if c.rdl: n = max(n, 1)
            if p.trans and c.valu and not c.trans: n = max(n, 1)
        if sw & c.r:
            if c.vmem: n = max(n, 5)
            if c.valu: n = max(n, 4 if (c.rdl or c.op.startswith('v_writelane') or c.op.startswith('v_div_fmas')) else 2)
        if ('s', 'exec') in sw:
            if c.valu and c.dpp: n = max(n, 5)
            if c.mfma or c.perm or c.rdl: n = max(n, 4)
    if p.salu and ('s', 'm0') in p.w and ('s', 'm0') in c.r and (c.vmem or c.ds): n = max(n, 1)
    if p.vmem and getattr(p, 'wide', False) and (p.data & c.w): n = max(n, 2)
    if p.mfma:
        big = p.passes + 4
        m = 0
        if c.mfma:
            if p.w & c.ab: m = big
            elif p.w & c.srcC:
                if not (p.w == c.srcC and p.op == c.op): m = p.passes + 2
            elif p.w & c.w: m = big
        elif (c.valu or c.vmem or c.ds) and (p.w & (c.r | c.w)): m = big
        if c.valu and (p.srcC & c.w): m = max(m, p.passes - 1)
        if m: n = max(n, m); tm = True
    return n, tm

def hazards(lines, fix=True, verbose=False):
    out = []; hist = []
    st = 0; t = 0; mf_free = 0; added = 0; va_free = 0
    for l in lines:
        s = l.split(';')[0].strip()
        if not s or s.endswith(':') or s.startswith('.'):
            out.append(l); continue
        c = Ins(s)
        pad = 0
        tc = max(t, mf_free) if c.mfma else (max(t, va_free) if c.valu else t)
        for (p, ps, pt) in hist[-40:]:
            n, tm = need(p, c)
            if not n: continue
            have = st - ps - 1
            if tm: have = max(have, (tc - pt) // 4 - 1)
            if have < n:
                d = n - have
                if tm and (c.mfma or c.valu):
                    d = max(d, -(-(pt + 4 * (n + 1) - t) // 4))
                pad = max(pad, d)
        if pad:
            if verbose: print('pad', pad, 'before', s)
            added += pad
            k = pad
            while k > 0:
                q = min(k, 16); out.append(f's_nop {q-1}'); k -= q
            st += pad; t += 4 * pad
        if c.mfma:
            t = max(t, mf_free); mf_free = t + 4 * c.passes
            va_free = t + (12 if 'smfmac_f32_16x16x64' in c.op else 8)
        elif c.valu: t = max(t, va_free)
        hist.append((c, st, t))
        if c.op == 's_nop':
            k = int(c.ops[0], 0) + 1; st += k; t += 4 * k
        else:
            st += 1; t += 4
        if c.op in ('s_branch', 's_endpgm', 's_setpc_b64'):
            hist = []
        out.append(l)
    return out, added
```

```python
from asmlib import *
from layout import *

class Cnt:
    def __init__(self, a, name, mx): self.a=a; self.name=name; self.q=[]; self.mx=mx
    def issue(self, tag): self.q.append(tag)
    def wait(self, tag):
        idx = max(i for i,t in enumerate(self.q) if t==tag) if tag in self.q else None
        if idx is None: return
        n = len(self.q)-1-idx
        assert n <= self.mx, (self.name, n)
        self.a(f's_waitcnt {self.name}({n})')
        self.q = self.q[idx+1:]
    def all(self):
        self.a(f's_waitcnt {self.name}(0)'); self.q=[]
    def reset(self): self.q=[]

SMF='v_smfmac_f32_16x16x64_bf16'
MF='v_mfma_f32_16x16x32_bf16'
MFH='v_mfma_f32_16x16x16_bf16'
S_RING=4; S_X=8; S_WS=12
S_ID=16; S_W=17; S_S=18; S_CUR=19; S_NXT=20; S_OLD=21; S_EXP=22; S_TO=23; S_CH=24
S_T=34
S_RETRY=42; S_RETRY2=43; S_BOUND=44; S_XO=45; S_G=46;S_G2=47
S_ST=84
TIMEOUT=200000

def poll_ld(a, voff, soff, tmp, i):
    a(f'buffer_load_dword v{tmp+i}, v{voff}, s[{S_RING}:{S_RING+3}], 0 offen sc1')
def poll(a, voff, soff, tmp, D, abort, gap=4, pre=True, sexp=None):
    lp=a.new('poll'); dn=a.new('polld')
    a(f's_mov_b32 s{S_TO}, {TIMEOUT}')
    for i in range(D):
        if not pre: break
        poll_ld(a,voff,soff,tmp,i)
        if i<D-1: a(f's_nop {gap}')
    a.label(lp)
    for i in range(D):
        a(f's_waitcnt vmcnt({D-1})')
        a(f'v_cmp_gt_u32 vcc, s{sexp or S_EXP}, v{tmp+i}')
        poll_ld(a,voff,soff,tmp,i)
        if i==D-1: a(f's_sub_u32 s{S_TO}, s{S_TO}, 1')
        a(f's_cbranch_vccz {dn}')
    a(f's_cbranch_scc0 {lp}')
    a(f's_branch {abort}')
    a.label(dn)

def slots(a):
    a(f's_and_b32 s{S_T}, s{S_S}, 3'); a(f's_lshl_b32 s{S_CUR}, s{S_T}, 15')
    a(f's_add_u32 s{S_EXP}, s{S_S}, 1')
    a(f's_and_b32 s{S_T}, s{S_EXP}, 3'); a(f's_lshl_b32 s{S_NXT}, s{S_T}, 15')
    a(f's_add_u32 s{S_T}, s{S_S}, 3'); a(f's_and_b32 s{S_T}, s{S_T}, 3'); a(f's_lshl_b32 s{S_OLD}, s{S_T}, 15')

def stamp(a, P, i):
    if P.get('stamps'): a(f's_memtime s[{S_ST+2*i}:{S_ST+2*i+1}]')

def dump_stamps(a, P, n, vt):
    if not P.get('stamps'): return
    a(f's_memtime s[72:73]'); a(f's_memrealtime s[74:75]')
    a('s_waitcnt lgkmcnt(0)')
    a(f'v_writelane_b32 v{vt}, s72, 8'); a(f'v_writelane_b32 v{vt}, s74, 9')
    a(f's_lshl_b32 s{S_T}, s{S_G}, 2'); a(f's_add_u32 s{S_T}, s{S_T}, s{S_W}'); a(f's_lshl_b32 s{S_T}, s{S_T}, 6'); a(f's_add_u32 s{S_T}, s{S_T}, s{S_S}'); a(f's_lshl_b32 s{S_T}, s{S_T}, 6')
    a(f's_add_u32 s{S_T}, s{S_T}, {DBG_OFF+4096}')
    for i in range(n): a(f'v_writelane_b32 v{vt}, s{S_ST+2*i}, {i}')
    a(f'v_lshrrev_b32 v{vt+1}, 2, v0')
    a('s_mov_b64 exec, 0x3ff')
    a(f'buffer_store_dword v{vt}, v{vt+1}, s[{S_WS}:{S_WS+3}], s{S_T} offen')
    a('s_mov_b64 exec, -1')

def wreg(f, nag, vbase):
    return ('a', 8*f) if f<nag else ('v', vbase+8*(f-nag))


def lx(a, dst, lane, tmp, terms, add=None):
    first=True
    for lo,n,sh in terms:
        a(f'v_bfe_u32 v{tmp}, v{lane}, {lo}, {n}')
        if first: a(f'v_lshlrev_b32 v{dst}, {sh}, v{tmp}')
        else: a(f'v_lshl_add_u32 v{dst}, v{tmp}, {sh}, v{dst}')
        first=False
    if add is not None:
        for x in (add if isinstance(add,list) else [add]):
            if x!=0: a(f'v_add_u32 v{dst}, {x}, v{dst}')
def mkidx(a, dst, lane, tmp):
    a(f'v_bfe_u32 v{tmp}, v{lane}, 1, 1'); a(f'v_mov_b32 v{dst}, 0xaaaa'); a(f'v_mul_u32_u24 v{dst}, v{dst}, v{tmp}'); a(f'v_add_u32 v{dst}, 0x4444, v{dst}')
def modadd(a, dst, src, i, m, t):
    a(f's_add_u32 s{dst}, s{src}, {i}'); a(f's_cmp_ge_u32 s{dst}, {m}'); a(f's_cselect_b32 s{t}, {m}, 0'); a(f's_sub_u32 s{dst}, s{dst}, s{t}')

def gen_A(a, P):
    V_L16,V_IDX,V_QW,V_QW6,V_QR,V_KA,V_SXW,V_SMW,V_PX,V_PM,V_HP,V_MA,V_HV,V_SXR,V_SMR = range(15)
    V_M=16; V_ACC=44; V_XO=72; V_MK=104; V_WV=120
    V_T=V_MK
    V_S=V_M; Q=[V_ACC+4, V_ACC+12]
    L_Q=0; L_SX=8192; L_SM=12288; L_X=16384
    S_FLAG=S_CH+8; S_XN=S_CH+9; V_XL=15; ND=P['xdma']
    abort='L_exit'; NS=P['sm']
    PW=2
    W=lambda n,i: vr(wreg(n*7+i,32,V_WV)[1],8,wreg(n*7+i,32,V_WV)[0])
    ring=f's[{S_RING}:{S_RING+3}]'; ws=f's[{S_WS}:{S_WS+3}]'
    def setup():
        l=V_M; t=V_M+1; u=V_M+2
        a(f'v_mov_b32 v{l}, v0')
        a(f'v_lshlrev_b32 v{V_L16}, 4, v{l}')
        mkidx(a,V_IDX,l,t)
        a(f's_lshl_b32 s{S_T}, s{S_W}, 11')
        lx(a,u,l,t,[(2,2,0),(4,2,0)]); a(f'v_and_b32 v{u}, 3, v{u}'); lx(a,V_QW,l,t,[(0,4,5)],f's{S_T}'); a(f'v_lshl_add_u32 v{V_QW}, v{u}, 3, v{V_QW}')
        lx(a,u,l,t,[(3,1,0),(4,2,0)]); a(f'v_and_b32 v{u}, 3, v{u}'); lx(a,V_QW6,l,t,[(3,1,7),(2,1,6),(0,1,5),(1,1,2)],f's{S_T}'); a(f'v_lshl_add_u32 v{V_QW6}, v{u}, 3, v{V_QW6}')
        lx(a,u,l,t,[(0,2,0),(4,2,0)]); a(f'v_and_b32 v{u}, 3, v{u}'); lx(a,V_QR,l,t,[(2,4,5)],f's{S_T}'); a(f'v_lshl_add_u32 v{V_QR}, v{u}, 3, v{V_QR}')
        lx(a,u,l,t,[(0,6,2)],[f's{S_T}',1536+256]); a(f'v_mov_b32 v{t}, 0'); a(f'ds_write_b32 v{u}, v{t}')
        a(f's_mul_i32 s{S_T+1}, s{S_W}, {7*256}'); lx(a,V_KA,l,t,[(4,1,9),(5,1,5),(1,2,6),(0,1,4)],f's{S_T+1}')
        a(f's_lshl_b32 s{S_T+1}, s{S_W}, 10'); lx(a,V_SXW,l,t,[(4,2,8),(0,4,3)],[f's{S_T+1}',L_SX])
        a(f's_lshl_b32 s{S_T+1}, s{S_W}, 2'); lx(a,V_SMW,l,t,[(0,6,4)],[f's{S_T+1}',L_SM])
        a(f's_lshl_b32 s{S_T+1}, s{S_ID}, 9')
        a(f's_lshr_b32 s{S_T+3}, s{S_ID}, 1'); a(f's_lshl_b32 s{S_T+3}, s{S_T+3}, 8'); a(f's_and_b32 s{S_T+2}, s{S_ID}, 1'); a(f's_lshl_b32 s{S_T+2}, s{S_T+2}, 3')
        a(f's_add_u32 s{S_T+3}, s{S_T+3}, s{S_T+2}')
        if NS==1:
            lx(a,V_PX,l,t,[(2,1,8),(4,2,6),(1,1,5),(3,1,4),(0,1,3)],[f's{S_T+1}',R_P])
            lx(a,V_PM,l,t,[(1,2,6),(4,2,4),(3,1,2),(0,1,30)],[f's{S_T+3}',R_P+8192])
        else:
            a(f's_and_b32 s{S_T+2}, s{S_W}, 1')
            a(f's_lshl_b32 s{S_T+4}, s{S_T+2}, 7'); lx(a,V_PX,l,t,[(3,1,8),(5,1,6),(2,1,5),(4,1,4),(0,2,2)],[f's{S_T+1}',f's{S_T+4}',R_P])
            a(f's_lshl_b32 s{S_T+4}, s{S_T+2}, 5'); lx(a,V_PM,l,t,[(1,2,6),(5,1,4),(4,1,2),(0,1,30),(3,1,29)],[f's{S_T+3}',f's{S_T+4}',R_P+8192])
            a(f's_lshl_b32 s{S_T+4}, s{S_T+2}, 9'); lx(a,V_SXR,l,t,[(0,6,3)],[f's{S_T+4}',L_SX]); lx(a,V_SMR,l,t,[(4,2,7),(0,3,4)],[f's{S_T+4}',L_SM])
        a(f's_lshl_b32 s{S_T+1}, s{S_ID}, 2'); a(f's_add_u32 s{S_T+1}, s{S_T+1}, {R_HP}')
        a(f'v_add_u32 v{t}, s{S_W}, v{l}'); a(f'v_min_u32 v{t}, 1, v{t}'); a(f'v_lshlrev_b32 v{t}, 30, v{t}'); a(f'v_or_b32 v{V_HP}, s{S_T+1}, v{t}')
        sk=a.new('sk'); a(f's_cmp_lg_u32 s{S_W}, {PW}'); a(f's_cbranch_scc1 {sk}')
        a(f'v_min_u32 v{V_HP}, {P["nhm"]-1}, v{l}'); a(f'v_lshlrev_b32 v{V_HP}, 2, v{V_HP}'); a(f'v_add_u32 v{V_HP}, {R_HM}, v{V_HP}')
        a.label(sk)
        a(f's_mov_b32 s{S_BOUND}, 0x42700000')
        a(f's_lshl_b32 s{S_T+1}, s{S_W}, 12'); a(f's_add_u32 m0, s{S_T+1}, {L_X}'); a(f'v_add_u32 v{V_XL}, m0, v{V_L16}')
        a(f's_lshl_b32 s{S_G2}, s{S_W}, 1'); a(f's_add_u32 s{S_G2}, s{S_G2}, s{S_ID}'); a(f's_mul_i32 s{S_T+1}, s{S_G2}, 37'); a(f's_lshr_b32 s{S_T+1}, s{S_T+1}, 8')
        a(f's_mul_i32 s{S_T+1}, s{S_T+1}, 7'); a(f's_sub_u32 s{S_G2}, s{S_G2}, s{S_T+1}')
        a(f's_mul_i32 s{S_T}, s{S_ID}, {WMAT}'); a(f's_mul_i32 s{S_T+1}, s{S_W}, {7*KK*1024}'); a(f's_add_u32 s{S_T}, s{S_T}, s{S_T+1}')
        if WA_OFF: a(f's_add_u32 s{S_T}, s{S_T}, {WA_OFF}')
        for i in range(7):
            modadd(a,S_T+1,S_G2,i,7,S_T+2)
            a(f's_lshl_b32 s{S_CH+i}, s{S_T+1}, 10')
            a(f's_lshl_b32 s{S_T+1}, s{S_T+1}, 11'); a(f's_add_u32 s{S_T+1}, s{S_T+1}, s{S_T}')
            for n in range(7):
                f,r=wreg(n*7+i,32,V_WV)
                a(f'buffer_load_dwordx4 {vr(r,4,f)}, v{V_L16}, {ws}, s{S_T+1} offen')
                a(f'buffer_load_dwordx4 {vr(r+4,4,f)}, v{V_L16}, {ws}, s{S_T+1} offen offset:1024')
                if n<6: a(f's_add_u32 s{S_T+1}, s{S_T+1}, {KK*1024}')
    def xloads(k0=0,first=False):
        a(f's_add_u32 s{S_T}, s{S_XO}, 4096')
        for k in range(k0,8 if first else P.get('xn',8)):
            a(f'buffer_load_dwordx4 {vr(V_XO+4*k,4)}, v{V_L16}, {ws}, s{S_XO if k<4 else S_T} offen offset:{1024*(k%4)}')
        if k0:
            a(f's_waitcnt vmcnt({P.get("xn",8)-k0})')
            for k in range(k0): a(f'ds_read_b128 {vr(V_XO+4*k,4)}, v{V_XL} offset:{1024*k}')
    def body(sc,tag):
        st = ' sc1' if sc else ''
        vm=Cnt(a,'vmcnt',63); lg=Cnt(a,'lgkmcnt',15)
        top=f'A_top_{tag}'; ool=[]
        a(f's_mov_b32 s{S_S}, 0'); a(f's_lshl_b32 s{S_XO}, s{S_W}, 13'); a(f's_add_u32 s{S_XO}, s{S_XO}, {XA_OFF}'); xloads(0,True); a('s_waitcnt vmcnt(0)')
        a.label(top)
        slots(a)
        a(f'v_add_u32 v{V_MA}, s{S_CUR}, v{V_L16}'); a(f'v_mov_b32 v{V_HV}, s{S_EXP}'); a(f's_mov_b32 s{S_FLAG}, 0')
        a(f's_add_u32 s{S_XO}, s{S_XO}, {P["xastride"]}'); a('s_waitcnt lgkmcnt(0)')
        np_=a.new('Anp')
        a(f's_cmp_lg_u32 s{S_W}, {PW}'); a(f's_cbranch_scc1 {np_}')
        poll(a, V_HP, S_CUR, V_MK, P['pollD'], abort)
        a.label(np_)
        a('s_barrier')
        stamp(a,P,0)
        rs=a.new('Arestart'); a.label(rs)
        ldt=lambda i: f'buffer_load_dwordx4 {vr(V_M+4*i,4)}, v{V_MA}, {ring}, s{S_CH+i} offen sc1'
        ld=lambda i: (a(ldt(i)), vm.issue(f'c{i}'))
        chk=lambda i: f'v_cmp_eq_u32 vcc, -1, v{V_M+4*i}'
        I=lambda s:(lambda: a(s))
        Z=lambda r: I(f'v_mov_b64 {vr(r,2)}, 0')
        def retry(i):
            r=a.new('Aretry'); b=a.new('Aback')
            def out():
                a.label(r); a(f's_add_u32 s{S_RETRY2}, s{S_RETRY2}, 1'); a(f's_mov_b32 s{S_TO}, {TIMEOUT}')
                l=a.new('l'); a.label(l)
                a(ldt(i)); a('s_waitcnt vmcnt(0)'); a(chk(i))
                a(f's_cbranch_vccz {b}'); a(f's_sub_u32 s{S_TO}, s{S_TO}, 1'); a(f's_cbranch_scc0 {l}'); a(f's_branch {abort}')
            ool.append(out)
            return lambda: (a(f's_cbranch_vccnz {r}'), a.label(b))
        def restart():
            r=a.new('Ars')
            def out():
                a.label(r); a(f's_add_u32 s{S_RETRY}, s{S_RETRY}, 1'); a('s_waitcnt vmcnt(0)')
                a(f's_cmp_lt_u32 s{S_RETRY}, {TIMEOUT}'); a(f's_cbranch_scc1 {rs}'); a(f's_branch {abort}')
            ool.append(out)
            return lambda: a(f's_cbranch_vccnz {r}')
        def mk(k): return lambda:(a(f'buffer_load_dwordx4 {vr(V_MK+4*k,4)}, v{V_KA}, {ring}, s{S_CUR} offen offset:{(4*(k//2)+k%2)*256} sc1'), vm.issue('mk'))
        F={}
        def at(g,*fs): F.setdefault(g,[]).extend(fs)
        def check_at(g,i,fin):
            at(g, lambda: vm.wait(f'c{i}'), I(chk(i))); at(g+2,fin)
        zn=P['zsplit']; wide=sum(zn)==14; z=iter(range(28))
        for i in range(len(zn)):
            ld(i)
            for _ in range(zn[i]):
                if wide: Z(V_ACC+2*next(z))()
                else: a(f'v_mov_b32 v{V_ACC+next(z)}, 0')
        check_at(0,0,restart())
        gl=iter(P['gl'])
        for i in range(len(zn),7): at(next(gl),(lambda i=i: ld(i)))
        for k in range(4): at(next(gl),mk(k))
        for k in range(ND): at(next(gl),(lambda k=k:(a(f'buffer_load_dwordx4 v{V_L16}, {ws}, s{S_XO} offen offset:{1024*k} lds'), vm.issue('xd'))))
        check_at(4,1,retry(1)); check_at(10,2,retry(2)); check_at(16,3,retry(3))
        at(8,Z(V_S)); at(11,Z(V_S+2)); at(15,Z(V_S+4)); at(19,Z(V_S+6)); at(22,Z(V_S+8)); at(23,Z(V_S+10))
        check_at(24,4,retry(4))
        at(27,lambda: vm.wait('c5')); at(28,lambda: vm.wait('c6'))
        adds=lambda n:[f'v_add_f32 v{V_ACC+4*n}, v{V_ACC+4*n}, v{V_ACC+4*n+2}', f'v_add_f32 v{V_ACC+4*n+1}, v{V_ACC+4*n+1}, v{V_ACC+4*n+3}']
        cvt=lambda n: f'v_cvt_pk_bf16_f32 v{V_ACC+4*(n&~1)+2+(n&1)}, v{V_ACC+4*n}, v{V_ACC+4*n+1}'
        dw=lambda p:(lambda:(a(f'ds_write_b64 v{V_QW}, {vr(V_ACC+8*p+2,2)} offset:{512*p}'), lg.issue(f'qw{p}')))
        dr=lambda p:(lambda:(a(f'ds_read_b64_tr_b16 {vr(Q[p//2]+2*(p%2),2)}, v{V_QR} offset:{512*p}'), lg.issue(f'q{p}')))
        for n in range(6):
            L=29+3*n
            if n==0: at(L+2,I(adds(n)[0])); at(L+3,I(adds(n)[1])); at(L+4,I(cvt(n)))
            else: at(L+2,I(adds(n)[0]),I(adds(n)[1])); at(L+3,I(cvt(n)))
            if n%2: at(L+4,dw(n//2))
            if n in (1,3): at(L+7,dr(n//2))
        seq=[(n,i) for i in range(3) for n in range(7)]+[(n,3) for n in range(6)]+[(n,i) for n in range(6) for i in range(4,7)]+[(6,i) for i in range(3,7)]
        vm.wait('c0'); stamp(a,P,1)
        for g,(n,i) in enumerate(seq):
            a(f'{SMF} {vr(V_ACC+4*n,4)}, {vr(V_M+4*i,4)}, {W(n,i)}, v{V_IDX}')
            if g==48: stamp(a,P,2)
            for f in F.pop(g,[]): f()
        assert not F, F
        bop=lambda kt,ks: vr((V_XO+16*kt if kt<2 else V_MK)+8*ks,8)
        a2=lambda kt,ks: a(f'{SMF} {vr(V_S+4*kt,4)}, {vr(Q[ks],4)}, {bop(kt,ks)}, v{V_IDX}')
        lg.wait('q1'); a2(1,0); dr(2)()
        for x in adds(6): a(x)
        a(cvt(6)); a(f'ds_write_b32 v{V_QW6}, v{V_ACC+26} offset:1536'); lg.issue('qw3'); dr(3)()
        vm.wait('mk')
        a2(0,0); a2(2,0)
        lg.wait('q3')
        for kt in (2,0,1): a2(kt,1)
        Tm=V_S+8
        nan=a.new('Anan'); nb=a.new('Ananb')
        T=V_ACC+20
        idp='quad_perm:[0,1,2,3] row_mask:0xf'
        a(f'v_add_f32_dpp v{T+4}, v{Tm}, v{Tm+2} {idp} bank_mask:0x3');
        a(f'v_add_f32 v{T}, v{V_S}, v{V_S+2}'); a(f'v_add_f32 v{T+2}, v{V_S+1}, v{V_S+3}')
        a(f'v_add_f32_dpp v{T+4}, v{Tm+1}, v{Tm+3} {idp} bank_mask:0xc')
        if P['wsplit']: a(f'ds_write_b32 v{V_SMW}, v{T+4}')
        a(f'v_add_f32 v{T+1}, v{V_S+4}, v{V_S+6}'); a(f'v_add_f32 v{T+3}, v{V_S+5}, v{V_S+7}')
        a(f'ds_write2_b64 v{V_SXW}, {vr(T,2)}, {vr(T+2,2)} offset0:0 offset1:16')
        if not P['wsplit']: a(f'ds_write_b32 v{V_SMW}, v{T+4}')
        a(f'v_cmp_u_f32 vcc, v{T+4}, v{T+4}')
        stamp(a,P,3)
        oth=a.new('Aoth'); jn=a.new('Ajoin')
        a(f's_cmp_ge_u32 s{S_W}, {NS}')
        a(f's_cbranch_vccnz {nan}'); a.label(nb)
        def onan():
            a.label(nan); ok=a.new('ok'); a(f's_cmp_eq_u32 s{S_FLAG}, 0'); a(f's_cbranch_scc1 {ok}'); a(f's_cmp_ge_u32 s{S_W}, {NS}'); a(f's_branch {nb}')
            a.label(ok); a(f's_mov_b32 s{S_FLAG}, 1')
            a(f's_add_u32 s{S_RETRY2}, s{S_RETRY2}, 0x10000'); a(f's_mov_b32 s{S_TO}, {TIMEOUT}'); a('s_waitcnt lgkmcnt(0)')
            l=a.new('l'); a.label(l)
            for i in range(7): a(ldt(i))
            a('s_waitcnt vmcnt(0)')
            a(f'v_max_u32 v{V_T}, v{V_M}, v{V_M+1}')
            for k in range(1,14): a(f'v_max3_u32 v{V_T}, v{V_T}, v{V_M+2*k}, v{V_M+2*k+1}')
            a(f'v_cmp_eq_u32 vcc, -1, v{V_T}'); a(f's_cbranch_vccz {rs}'); a(f's_sub_u32 s{S_TO}, s{S_TO}, 1'); a(f's_cbranch_scc0 {l}'); a(f's_branch {abort}')
        ool.append(onan)
        a(f's_cbranch_scc1 {oth}')
        R=V_M; Rm=V_M+16; E=V_M+20; t=V_MK; u=t+6
        slow=a.new('Aslow'); back=a.new('Asback')
        pk=lambda d,x,y: f'v_pk_add_f32 {vr(d,2)}, {vr(x,2)}, {vr(y,2)}'
        dpps=['quad_perm:[1,0,3,2]','quad_perm:[2,3,0,1]','row_half_mirror','row_mirror'][:2+NS]
        dpp=lambda m,op='add': f'v_{op}_f32_dpp v{t}, v{t}, v{t} {m} row_mask:0xf bank_mask:0xf'
        mul=lambda x: f'v_pk_mul_f32 {vr(x,2)}, {vr(x,2)}, {vr(t,2)} op_sel_hi:[1,0] clamp'
        L=['s_waitcnt lgkmcnt(0)','s_barrier']
        nx=4//NS; Em=E+nx
        mvd=f'v_mov_b32_dpp v{Em+1}, v{Em} quad_perm:[1,0,3,2] row_mask:0xf bank_mask:0xf'
        if NS==1:
            L.append(f'ds_read_b128 {vr(Rm,4)}, v{V_L16} offset:{L_SM}')
            for w in range(4): L.append(f'ds_read_b128 {vr(R+4*w,4)}, v{V_L16} offset:{L_SX+1024*w}')
            L+=['s_waitcnt lgkmcnt(4)', pk(Rm,Rm,Rm+2), f'v_add_f32 v{Rm}, v{Rm}, v{Rm+1}', f'v_exp_f32 v{Em}, v{Rm}','s_waitcnt lgkmcnt(2)', pk(R,R,R+4), pk(R+2,R+2,R+6), 's_waitcnt lgkmcnt(1)', pk(R,R,R+8), pk(R+2,R+2,R+10),
                's_waitcnt lgkmcnt(0)', pk(R,R,R+12), pk(R+2,R+2,R+14)]
            L+=[f'v_exp_f32 v{E+k}, v{R+k}' for k in range(4)]
            sm=[f'v_add_f32 v{t}, v{Em}, v{E}', f'v_add_f32 v{t+1}, v{E+1}, v{E+2}', f'v_add_f32 v{t}, v{t}, v{E+3}', f'v_add_f32 v{t}, v{t}, v{t+1}']
            L+=sm+[f'v_max3_f32 v{u}, abs(v{R}), abs(v{R+1}), abs(v{R+2})', f'v_max3_f32 v{u}, v{u}, abs(v{R+3}), abs(v{Rm})', dpp(dpps[0]),
                f'v_cmp_nge_f32 vcc, s{S_BOUND}, v{u}', mvd, dpp(dpps[1]), dpp(dpps[2])]
            L+=[f'v_rcp_f32 v{t}, v{t}', f's_cbranch_vccnz {slow}', f'{back}:', mul(E), mul(E+2), mul(E+4),
                f'v_cvt_pk_bf16_f32 v{t+2}, v{E}, v{E+1}', f'v_cvt_pk_bf16_f32 v{t+3}, v{E+2}, v{E+3}', f'v_cvt_pk_bf16_f32 v{t+5}, v{E+4}, v{E+5}',
                f'buffer_store_dwordx2 {vr(t+2,2)}, v{V_PX}, {ring}, s{S_CUR} offen{st}', f'buffer_store_dword v{t+5}, v{V_PM}, {ring}, s{S_CUR} offen{st}']
        else:
            L.append(f'ds_read_b128 {vr(Rm,4)}, v{V_SMR}')
            for w in range(4): L.append(f'ds_read_b64 {vr(R+2*w,2)}, v{V_SXR} offset:{1024*w}')
            sm=[f'v_fma_f32 v{t}, v{Em}, 0.5, v{E}', f'v_add_f32 v{t}, v{t}, v{E+1}']
            L+=['s_waitcnt lgkmcnt(4)', pk(Rm,Rm,Rm+2), f'v_add_f32 v{Rm}, v{Rm}, v{Rm+1}', f'v_exp_f32 v{Em}, v{Rm}','s_waitcnt lgkmcnt(2)', pk(R,R,R+2), 's_waitcnt lgkmcnt(0)', pk(R+4,R+4,R+6), pk(R,R,R+4),
                f'v_exp_f32 v{E}, v{R}', f'v_exp_f32 v{E+1}, v{R+1}']+sm+[
                f'v_max3_f32 v{u}, abs(v{R}), abs(v{R+1}), abs(v{Rm})', f'v_cmp_nge_f32 vcc, s{S_BOUND}, v{u}', dpp(dpps[0]), mvd, dpp(dpps[1]), dpp(dpps[2]), dpp(dpps[3]),
                f'v_rcp_f32 v{t}, v{t}', f's_cbranch_vccnz {slow}', f'{back}:', mul(E), mul(E+2),
                f'v_cvt_pk_bf16_f32 v{t+2}, v{E}, v{E+1}', f'v_cvt_pk_bf16_f32 v{t+3}, v{E+2}, v{E+3}',
                f'buffer_store_dword v{t+2}, v{V_PX}, {ring}, s{S_CUR} offen{st}', f'buffer_store_dword v{t+3}, v{V_PM}, {ring}, s{S_CUR} offen{st}']
        L.insert(P['hintP'], f'buffer_store_dword v{V_HV}, v{V_HP}, {ring}, 0 offen{st}')
        for x in L:
            a(x)
            if f'v{V_HV}, v{V_HP}' in x: stamp(a,P,5)
        stamp(a,P,4)
        a(f's_branch {jn}')
        a.label(oth)
        a('s_waitcnt lgkmcnt(0)'); a('s_barrier'); stamp(a,P,4)
        for _ in range(P.get('warm',0)): a(f'v_mov_b32 v{t+2}, 0')
        if NS==1: a(f's_cmp_lg_u32 s{S_W}, 3'); a(f's_cbranch_scc1 {jn}')
        a(f'v_mov_b64 {vr(t,2)}, -1')
        a(f'buffer_store_dword{"x2" if NS==1 else ""} {vr(t,2 if NS==1 else 1)}, v{V_PX}, {ring}, s{S_OLD} offen{st}')
        a(f'buffer_store_dword v{t}, v{V_PM}, {ring}, s{S_OLD} offen{st}')
        a.label(jn)
        a('s_barrier')
        xloads(ND)
        dump_stamps(a,P,6,V_T+8)
        if P.get('time'):
            sk=a.new('sk'); a(f's_cmp_lg_u32 s{S_S}, 7'); a(f's_cbranch_scc1 {sk}'); a('s_memtime s[80:81]'); a('s_memrealtime s[76:77]'); a.label(sk)
        a(f's_add_u32 s{S_S}, s{S_S}, 1'); a(f's_cmp_lt_u32 s{S_S}, {NSEG-1}'); a(f's_cbranch_scc1 {top}')
        a('s_branch L_fin')
        a.label(slow)
        if NS==1: a(f'v_max3_f32 v{t}, v{R}, v{R+1}, v{R+2}'); a(f'v_max3_f32 v{t}, v{t}, v{R+3}, v{Rm}')
        else: a(f'v_max3_f32 v{t}, v{R}, v{R+1}, v{Rm}')
        for m in dpps: a(dpp(m,'max'))
        for k in range(nx): a(f'v_sub_f32 v{R+k}, v{R+k}, v{t}')
        a(f'v_sub_f32 v{Rm}, v{Rm}, v{t}')
        a(f'v_exp_f32 v{Em}, v{Rm}')
        for k in range(nx): a(f'v_exp_f32 v{E+k}, v{R+k}')
        for x in sm: a(x)
        a(mvd)
        for m in dpps: a(dpp(m))
        a(f'v_rcp_f32 v{t}, v{t}'); a('s_nop 0'); a(f's_branch {back}')
        for o in ool: o()
    return setup, body

SMH='v_smfmac_f32_16x16x32_bf16'
def gen_B(a, P):
    V_L16,V_IDX,V_LW,V_MS,V_HP,V_HS,V_LM,V_PA,V_PMA,V_XA,V_HV,V_CW,V_CR,V_O,V_CR2 = range(15)
    V_T=15
    V_VX=16; V_ACC=48; V_MB=80; V_WB=88; V_WV=112
    V_VM=88; V_P=96; V_D=80; V_R=68; V_PL=106
    NL=6; L_M=0; L_C=8192; L_W=16384
    S_FLAG=60; S_VG=61; S_MGO=62; S_X2=63
    abort='L_exit'
    ring=f's[{S_RING}:{S_RING+3}]'; ws=f's[{S_WS}:{S_WS+3}]'
    seq=[(i,t) for t in range(7) for i in range(8)]
    ldsidx=[9,18,27,36,45,54]
    resid=[k for k in range(56) if k not in ldsidx]
    CP=8*0+544
    def setup():
        l=V_VX; t=V_VX+1; u=V_VX+2
        a(f'v_mov_b32 v{l}, v0'); a(f'v_lshlrev_b32 v{V_L16}, 4, v{l}')
        mkidx(a,V_IDX,l,t)
        a(f's_mul_i32 s{S_T}, s{S_W}, {NL*2048}'); a(f's_add_u32 s{S_T}, s{S_T}, {L_W}'); a(f'v_add_u32 v{V_LW}, s{S_T}, v{V_L16}')
        a(f's_lshl_b32 s{S_T+2}, s{S_W}, 10'); a(f'v_add_u32 v{V_LM}, s{S_T+2}, v{V_L16}')
        a(f's_lshl_b32 s{S_T+1}, s{S_ID}, 1'); a(f's_add_u32 s{S_T+2}, s{S_T+1}, s{S_W}'); a(f's_lshl_b32 s{S_T+2}, s{S_T+2}, 8'); lx(a,V_MS,l,t,[(0,6,2)],f's{S_T+2}')
        lx(a,V_HP,l,t,[(0,4,2)],R_HP)
        a(f's_lshl_b32 s{S_T+2}, s{S_ID}, 2'); a(f's_add_u32 s{S_T+2}, s{S_T+2}, {R_HM}')
        a(f'v_min_u32 v{t}, 1, v{l}'); a(f'v_lshlrev_b32 v{t}, 30, v{t}'); a(f'v_or_b32 v{V_HS}, s{S_T+2}, v{t}')
        a(f's_lshl_b32 s{S_T+2}, s{S_W}, 11'); lx(a,V_PA,l,t,[(0,6,4)],[f's{S_T+2}',R_P])
        a(f's_lshl_b32 s{S_T+2}, s{S_W}, 9'); lx(a,V_PMA,l,t,[(0,6,2)],[f's{S_T+2}',R_P+8192])
        a(f's_mul_i32 s{S_T+2}, s{S_T+1}, {H*1024}'); a(f's_lshl_b32 s{S_T+3}, s{S_W}, 12'); a(f's_add_u32 s{S_T+2}, s{S_T+2}, s{S_T+3}'); a(f's_add_u32 s{S_T+2}, s{S_T+2}, {VX_OFF}')
        a(f'v_add_u32 v{V_XA}, s{S_T+2}, v{V_L16}'); a(f's_mov_b32 s{S_X2}, {H*1024}')
        a(f's_mul_i32 s{S_T+2}, s{S_W}, {CP}'); lx(a,V_CW,l,t,[(4,2,7),(4,2,3),(0,4,3)],[f's{S_T+2}',L_C])
        a(f's_mul_i32 s{S_T+2}, s{S_W}, 2560'); lx(a,V_CR,l,t,[(4,2,7),(4,2,3),(3,1,6),(0,2,4),(2,1,2)],[f's{S_T+2}',L_C]); a(f'v_add_u32 v{V_CR2}, {2*CP}, v{V_CR}')
        a(f's_mul_i32 s{S_T+2}, s{S_W}, {4*WMAT}'); a(f's_mul_i32 s{S_T+3}, s{S_T+1}, {KK*1024}')
        a(f's_add_u32 s{S_T+2}, s{S_T+2}, s{S_T+3}'); a(f's_add_u32 s{S_T+2}, s{S_T+2}, {WB_OFF}')
        for k,(i,tt) in enumerate(seq):
            a(f's_add_u32 s{S_T+3}, s{S_T+2}, {(i%4)*WMAT+(i//4)*KK*1024+tt*2048}')
            if k in ldsidx:
                j=ldsidx.index(k)
                a(f's_add_u32 m0, s{S_T}, {j*2048}')
                a(f'buffer_load_dwordx4 v{V_L16}, {ws}, s{S_T+3} offen lds')
                a(f'buffer_load_dwordx4 v{V_L16}, {ws}, s{S_T+3} offen offset:1024 lds')
            else:
                f,r=wreg(resid.index(k),32,V_WV)
                a(f'buffer_load_dwordx4 {vr(r,4,f)}, v{V_L16}, {ws}, s{S_T+3} offen')
                a(f'buffer_load_dwordx4 {vr(r+4,4,f)}, v{V_L16}, {ws}, s{S_T+3} offen offset:1024')
    def bpart():
        lg=Cnt(a,'lgkmcnt',15)
        mrd=lambda t:(a(f'ds_read_b128 {vr(V_MB+4*(t%2),4)}, v{V_L16} offset:{L_M+1024*t}'), lg.issue(f'm{t}'))
        def wrd(j,hh):
            a(f'ds_read_b128 {vr(V_WB+4*hh,4)}, v{V_LW} offset:{2048*j+1024*hh}'); lg.issue(f'w{j}')
        F={}
        def put(g,f):
            while g in F: g+=1
            F[g]=f
        I=lambda s:(lambda: a(s))
        for t in range(1,6): put(8*t, (lambda t=t: mrd(t+1)))
        for j in range(NL):
            for hh in range(2): put(ldsidx[j]-7, (lambda j=j,hh=hh: wrd(j,hh)))
        for k in range(P['vxpre'],P.get('vxn',8)): put(P['vx0']+P['vxs']*(k-P['vxpre']), I(vxl(k)))
        mrd(0); mrd(1)
        for k,(i,t) in enumerate(seq):
            if i==0: lg.wait(f'm{t}')
            if k in ldsidx:
                j=ldsidx.index(k); lg.wait(f'w{j}'); w=vr(V_WB,8)
            else:
                f,r=wreg(resid.index(k),32,V_WV); w=vr(r,8,f)
            a(f'{SMF} {vr(V_ACC+4*i,4)}, {vr(V_MB+4*(t%2),4)}, {w}, v{V_IDX}')
            if k in F: F.pop(k)()
        assert not F
        stamp(a,P,2)
    def pack(i):
        x=V_ACC+4*i
        a(f'v_pk_add_f32 {vr(x,2)}, {vr(x,2)}, {vr(x+2,2)}'); a(f'v_cvt_pk_bf16_f32 v{V_VM+i}, v{x}, v{x+1}')
    vxl=lambda k: f'buffer_load_dwordx4 {vr(V_VX+4*k,4)}, v{V_XA}, {ws}, {"0" if k<4 else f"s{S_X2}"} offen offset:{1024*(k%4)} sc1'
    def body(sc,tag):
        st = ' sc1' if sc else ''
        top=f'B_top_{tag}'; ool=[]
        vm=Cnt(a,'vmcnt',63)
        for k in range(P.get('vxn',8),8): a(vxl(k))
        a(f's_mov_b32 s{S_S}, 0'); a('s_waitcnt vmcnt(0)')
        a.label(top)
        slots(a)
        a(f's_cmp_eq_u32 s{S_W}, 3'); a(f's_cselect_b32 s{S_T}, 0, 4096'); a(f's_add_u32 s{S_T}, s{S_T}, s{S_CUR}')
        a(f's_mov_b32 s{S_TO}, {TIMEOUT}')
        stamp(a,P,0)
        for r in range(P['bz']): a(f'v_mov_b64 {vr(V_ACC+2*r,2)}, 0')
        rl=a.new('Bm'); a.label(rl)
        a(f'buffer_load_dwordx4 {vr(V_MB,4)}, v{V_LM}, {ring}, s{S_CUR} offen sc1')
        a(f'buffer_load_dwordx4 {vr(V_MB+4,4)}, v{V_LM}, {ring}, s{S_T} offen sc1')
        for r in range(P['bz'],16): a(f'v_mov_b64 {vr(V_ACC+2*r,2)}, 0')
        a(f's_mov_b32 s{S_FLAG}, 0'); a(f's_add_u32 s{S_T+2}, s{S_EXP}, 1'); a(f'v_mov_b32 v{V_HV}, s{S_T+2}')
        a('s_waitcnt vmcnt(0)')
        a(f'ds_write_b128 v{V_LM}, {vr(V_MB,4)}'); a(f'ds_write_b128 v{V_LM}, {vr(V_MB+4,4)} offset:4096')
        a(f'v_max3_u32 v{V_T}, v{V_MB}, v{V_MB+1}, v{V_MB+2}'); a(f'v_max3_u32 v{V_T}, v{V_T}, v{V_MB+3}, v{V_MB+4}')
        a(f'v_max3_u32 v{V_T}, v{V_T}, v{V_MB+5}, v{V_MB+6}'); a(f'v_max_u32 v{V_T}, v{V_T}, v{V_MB+7}'); a(f'v_cmp_eq_u32 vcc, -1, v{V_T}')
        rr=a.new('Bmr'); a(f's_cbranch_vccnz {rr}')
        def o1():
            a.label(rr); a(f's_add_u32 s{S_RETRY2}, s{S_RETRY2}, 1'); a('s_waitcnt lgkmcnt(0)'); a(f's_sub_u32 s{S_TO}, s{S_TO}, 1'); a(f's_cbranch_scc0 {rl}'); a(f's_branch {abort}')
        ool.append(o1)
        last=a.new('Blast'); oth=a.new('Both'); jn=a.new('Bjoin'); sk=a.new('sk'); np_=a.new('np')
        a('s_waitcnt lgkmcnt(0)'); a('s_barrier')
        stamp(a,P,1)
        if P.get('mg',1):
            a(f's_cmp_gt_u32 s{S_W}, 1'); a(f's_cbranch_scc1 {sk}')
            a(f's_cmp_eq_u32 s{S_S}, 0'); a(f's_cselect_b32 s{S_MGO}, 64, s{S_S}'); a(f's_lshl_b32 s{S_MGO}, s{S_MGO}, 13'); a(f's_add_u32 s{S_MGO}, s{S_MGO}, {MG_OFF}')
            a(f'buffer_store_dword v{V_O}, v{V_MS}, {ws}, s{S_MGO} offen sc1')
            a.label(sk)
        for k in range(P['vxpre']): a(vxl(k))
        bpart()
        stamp(a,P,3)
        a(f's_cmp_lg_u32 s{S_W}, 3'); a(f's_cbranch_scc1 {np_}')
        poll(a, V_HP, S_CUR, V_PL, P['pollD'], abort)
        a.label(np_)
        a('s_barrier')
        stamp(a,P,4)
        hs=f'buffer_store_dword v{V_HV}, v{V_HS}, {ring}, 0 offen{st}'
        LP=[f'buffer_load_dwordx4 {vr(V_P,4)}, v{V_PA}, {ring}, s{S_CUR} offen sc1', f'buffer_load_dwordx4 {vr(V_P+4,4)}, v{V_PA}, {ring}, s{S_CUR} offen offset:1024 sc1',
            f'buffer_load_dword v{V_P+8}, v{V_PMA}, {ring}, s{S_CUR} offen sc1', f'buffer_load_dword v{V_P+9}, v{V_PMA}, {ring}, s{S_CUR} offen offset:256 sc1']
        def ldp(sp=False):
            for k,x in enumerate(LP):
                a(x)
                if sp and k<2: pack(k)
            if sp:
                for i in range(2,8): pack(i)
        def cpart(hint):
            nan=a.new('Cnan'); nb=a.new('Cnanb'); rs=a.new('Crs')
            a.label(rs)
            for r in range(4): a(f'v_mov_b64 {vr(V_D+2*r,2)}, 0')
            a('s_waitcnt vmcnt(3)'); stamp(a,P,5)
            for tl in range(2): a(f'{SMF} {vr(V_D+4*tl,4)}, {vr(V_P,4)}, {vr(V_VX+16*tl,8)}, v{V_IDX}')
            x=0
            if hint and P['hintM']==0: a(hs); stamp(a,P,6); x=1
            a(f's_waitcnt vmcnt({2+x})')
            for tl in range(2): a(f'{SMF} {vr(V_D+4*tl,4)}, {vr(V_P+4,4)}, {vr(V_VX+16*tl+8,8)}, v{V_IDX}')
            a(f's_waitcnt vmcnt({x})')
            for tl in range(2): a(f'{SMH} {vr(V_D+4*tl,4)}, {vr(V_P+8,2)}, {vr(V_VM+4*tl,4)}, v{V_IDX}')
            if hint and P['hintM']==1: a(hs); stamp(a,P,6)
            a(f'v_pk_add_f32 {vr(V_D,2)}, {vr(V_D,2)}, {vr(V_D+2,2)}')
            if P['csplit']: a(f'ds_write_b64 v{V_CW}, {vr(V_D,2)}')
            a(f'v_pk_add_f32 {vr(V_D+4,2)}, {vr(V_D+4,2)}, {vr(V_D+6,2)}')
            if P['csplit']: a(f'ds_write_b64 v{V_CW}, {vr(V_D+4,2)} offset:2560')
            else: a(f'ds_write2st64_b64 v{V_CW}, {vr(V_D,2)}, {vr(V_D+4,2)} offset0:0 offset1:5')
            if hint and P['hintM']==2: a(hs); stamp(a,P,6)
            a(f'v_cmp_u_f32 vcc, v{V_D}, v{V_D+1}')
            a(f's_cbranch_vccnz {nan}'); a.label(nb)
            if hint and P['hintM']==3: a(hs); stamp(a,P,6)
            a('s_waitcnt lgkmcnt(0)')
            a('s_barrier')
            if hint and P['hintM']==4: a(hs); stamp(a,P,6)
            def o2():
                a.label(nan); a(f's_cmp_lg_u32 s{S_FLAG}, 0'); a(f's_cbranch_scc1 {nb}'); a(f's_mov_b32 s{S_FLAG}, 1')
                a(f's_add_u32 s{S_RETRY2}, s{S_RETRY2}, 0x10000'); a(f's_mov_b32 s{S_TO}, {TIMEOUT}')
                l=a.new('l'); a.label(l)
                ldp()
                a('s_waitcnt vmcnt(0) lgkmcnt(0)')
                a(f'v_max_u32 v{V_T}, v{V_P}, v{V_P+1}')
                for k in range(1,5): a(f'v_max3_u32 v{V_T}, v{V_T}, v{V_P+2*k}, v{V_P+2*k+1}')
                a(f'v_cmp_eq_u32 vcc, -1, v{V_T}'); a(f's_cbranch_vccz {rs}'); a(f's_sub_u32 s{S_TO}, s{S_TO}, 1'); a(f's_cbranch_scc0 {l}'); a(f's_branch {abort}')
            ool.append(o2)
        ldp(True)
        o3=a.new('Bo3')
        a(f's_cmp_gt_u32 s{S_W}, 1'); a(f's_cbranch_scc1 {oth}')
        cpart(False)
        for w in range(4): a(f'ds_read2_b32 {vr(V_R+2*w,2)}, v{V_CR if w<2 else V_CR2} offset0:{(w%2)*CP//4} offset1:{(w%2)*CP//4+2}')
        a('s_waitcnt lgkmcnt(2)'); a(f'v_pk_add_f32 {vr(V_R,2)}, {vr(V_R,2)}, {vr(V_R+2,2)}')
        a('s_waitcnt lgkmcnt(1)'); a(f'v_pk_add_f32 {vr(V_R,2)}, {vr(V_R,2)}, {vr(V_R+4,2)}')
        a('s_waitcnt lgkmcnt(0)'); a(f'v_pk_add_f32 {vr(V_R,2)}, {vr(V_R,2)}, {vr(V_R+6,2)}')
        a(f'v_cvt_pk_bf16_f32 v{V_O}, v{V_R}, v{V_R+1}')
        a(f'v_min_u32 v{V_O}, -2, v{V_O}')
        a(f'buffer_store_dword v{V_O}, v{V_MS}, {ring}, s{S_NXT} offen{st}')
        stamp(a,P,6)
        a(f'v_mov_b32 v{V_T}, -1')
        a(f'buffer_store_dword v{V_T}, v{V_MS}, {ring}, s{S_OLD} offen{st}')
        a(f's_branch {jn}')
        a.label(oth)
        a(f's_cmp_eq_u32 s{S_W}, 3'); a(f's_cbranch_scc1 {o3}')
        cpart(False); a(f's_branch {jn}')
        a.label(o3)
        cpart(True)
        a.label(jn)
        a('s_barrier')
        a(f'v_add_u32 v{V_XA}, {P["vxstride"]}, v{V_XA}')
        dump_stamps(a,P,7,V_R)
        if P.get('time'):
            sk=a.new('sk'); a(f's_cmp_lg_u32 s{S_S}, 7'); a(f's_cbranch_scc1 {sk}'); a('s_memtime s[80:81]'); a('s_memrealtime s[76:77]'); a.label(sk)
        a(f's_add_u32 s{S_S}, s{S_S}, 1'); a(f's_cmp_lt_u32 s{S_S}, {NSEG-1}'); a(f's_cbranch_scc1 {top}')
        a(f's_cmp_gt_u32 s{S_W}, 1'); a('s_cbranch_scc1 L_fin')
        a(f's_mov_b32 s{S_MGO}, {MG_OFF+63*8192}')
        a(f'buffer_store_dword v{V_O}, v{V_MS}, {ws}, s{S_MGO} offen sc1')
        a('s_branch L_fin')
        for o in ool: o()
    return setup, body

def proto(P):
    a=Asm()
    a('chain_kernel:')
    a('''s_cmp_ge_u32 s2, 256
s_cbranch_scc1 L_exit
s_load_dwordx2 s[36:37], s[0:1], 0
s_load_dwordx4 s[40:43], s[0:1], 96
s_getreg_b32 s3, hwreg(HW_REG_XCC_ID)
s_and_b32 s3, s3, 15
s_cmp_lg_u32 s3, 0
s_cbranch_scc1 L_exit
v_lshrrev_b32 v1, 6, v0
v_and_b32 v0, 63, v0
s_nop 0
v_readfirstlane_b32 s17, v1
s_waitcnt lgkmcnt(0)''')
    a(f'''s_mov_b32 s{S_X}, s36
s_mov_b32 s{S_X+1}, s37
s_mov_b32 s{S_X+2}, {2048*896}
s_mov_b32 s{S_X+3}, 0x20000
s_mov_b32 s{S_WS}, s42
s_mov_b32 s{S_WS+1}, s43
s_mov_b32 s{S_WS+2}, {WS_SIZE}
s_mov_b32 s{S_WS+3}, 0x20000
s_add_u32 s{S_RING}, s42, {RING_OFF}
s_addc_u32 s{S_RING+1}, s43, 0
s_mov_b32 s{S_RING+2}, {RING_SIZE}
s_mov_b32 s{S_RING+3}, 0x20000
s_cmp_lg_u32 s17, 0
s_cbranch_scc1 L_notick
v_mov_b32 v1, 0
v_mov_b32 v2, 1
s_mov_b64 exec, 1
global_atomic_add v3, v1, v2, s[40:41] sc0
s_waitcnt vmcnt(0)
ds_write_b32 v1, v3
s_waitcnt lgkmcnt(0)
s_mov_b64 exec, -1
L_notick:
s_barrier
v_mov_b32 v1, 0
ds_read_b32 v3, v1
s_waitcnt lgkmcnt(0)
v_readfirstlane_b32 s{S_G}, v3
s_barrier
s_mov_b32 s{S_RETRY}, 0
s_mov_b32 s{S_RETRY2}, 0
s_cmp_ge_u32 s{S_G}, 30
s_cbranch_scc1 L_exit
s_cmp_ge_u32 s{S_G}, 16
s_cbranch_scc1 L_roleB
s_mov_b32 s{S_ID}, s{S_G}''')
    su,bo=gen_A(a,P); su(); bo(P.get('sc',0),'f')
    a.label('L_roleB'); a(f's_sub_u32 s{S_ID}, s{S_G}, 16')
    su,bo=gen_B(a,P); su(); bo(P.get('sc',0),'f')
    a.label('L_fin')
    a(f'''s_memtime s[82:83]
s_memrealtime s[78:79]
s_waitcnt lgkmcnt(0)
s_sub_u32 s82, s82, s80
s_sub_u32 s78, s78, s76
s_lshl_b32 s78, s78, 8
s_or_b32 s{S_S}, s{S_S}, s78
s_lshl_b32 s{S_T}, s{S_G}, 2
s_add_u32 s{S_T}, s{S_T}, s{S_W}
s_lshl_b32 s{S_T}, s{S_T}, 4
s_add_u32 s{S_T}, s{S_T}, {DBG_OFF}
v_mov_b32 v20, s82
v_mov_b32 v21, s{S_RETRY}
v_mov_b32 v22, s{S_RETRY2}
v_mov_b32 v23, s{S_S}
v_mov_b32 v24, 0
buffer_store_dwordx4 v[20:23], v24, s[{S_WS}:{S_WS+3}], s{S_T} offen''')
    a.label('L_exit'); a('s_endpgm')
    lines,added=hazards(a.lines, verbose=P.get('verbose'))
    a.lines=lines
    hdr='''; @launch grid=(256,1,1) block=(256,1,1) lds=102400
.amdgcn_target "amdgcn-amd-amdhsa--gfx950"
.text
.globl chain_kernel
.p2align 8
.type chain_kernel,@function
'''
    ftr='''.section .rodata,"a"
.p2align 6
.amdhsa_kernel chain_kernel
  .amdhsa_next_free_vgpr 512
  .amdhsa_next_free_sgpr 102
  .amdhsa_accum_offset 256
  .amdhsa_group_segment_fixed_size 0
  .amdhsa_kernarg_size 112
  .amdhsa_user_sgpr_count 2
  .amdhsa_user_sgpr_kernarg_segment_ptr 1
  .amdhsa_system_sgpr_workgroup_id_x 1
.end_amdhsa_kernel
'''
    return hdr+a.text()+ftr

DEF=dict(nhm=14,pollD=5,zsplit=[2]*7,xdma=2,gl=[1,5,9,13,17,21,25,29],sm=1,wsplit=0,csplit=0,csp=3,warm=0,bz=6,vxpre=0,vx0=0,vxs=4,mg=1,hintP=12,hintM=2,vxstride=VX_SEG,xastride=XA_SEG,time=1,stamps=0,vmg=0,rot=1)
if __name__=='__main__':
    P=dict(DEF); P['verbose']=1
    open('chain.s','w').write(proto(P))
```

```python
H=16; D=448; NT=28; KK=14; NSEG=64
WMAT = NT*KK*1024
WA_OFF = 0
WB_OFF = H*WMAT
XA_OFF = 0xD00000
XA_SEG = 32768
VX_OFF = 0x1000000
VX_SEG = NT*H*1024
RING_OFF = 0x2C00000
SLOT = 32768
R_M = 0; R_Z = 7168; R_HM = 7680; R_HP = 7936; R_P = 8192
RING_SIZE = 4*SLOT
MG_OFF = 0x2C40000
FL_OFF = 0x2CD0000
FO_OFF = FL_OFF+16384
FK_OFF = FL_OFF+20480
FL_SIZE = 24576
G_OFF = 0x2CE0000
VM_OFF = 0x2D00000
VM_SEG = NT*H*256
DBG_OFF = 0x3500000
XF_OFF = 0x3600000
XF_SEG = 2*KK*1024
WQF_OFF = 0x3800000
WOF_OFF = WQF_OFF+1344*1024
KF_OFF = 0x3B00000
OF_OFF = 0x3F00000
PX_OFF = 0x4100000
PM_OFF = 0x4300000
WS_SIZE = 0x10000000

PI = [0,1,2,3,4,5,6,7]
def d1map(kk, g, e):
    return 32*kk + 16*(g//2) + 8*((e//2)%2) + 4*(g%2) + 2*(e//4) + e%2
def colmapA(n, c):
    w, i = divmod(n, 7)
    if i == 6: return 112*w + 96 + c
    q, T = divmod(i, 2)
    r = c%4
    return 112*w + 8*(4*q + c//4) + 4*(r//2) + 2*T + r%2
def xkey(kt, c): return 16*(c//8) + 4*(c%4) + 2*((c//4)%2) + kt
def tokmap(tt, c): return 8*(c//4) + 4*tt + c%4
def dhmap(g, e): return 16*(g//2) + 8*(e//4) + 4*(g%2) + e%4
```

```python
from asmlib import *
from layout import *
from chain import Cnt, lx
MF='v_mfma_f32_16x16x32_bf16'

def srd(a, d, lo, size, off=0):
    if off: a(f's_add_u32 s{d}, s{lo}, {off}'); a(f's_addc_u32 s{d+1}, s{lo+1}, 0')
    else: a(f's_mov_b32 s{d}, s{lo}'); a(f's_mov_b32 s{d+1}, s{lo+1}')
    a(f's_mov_b32 s{d+2}, {size}'); a(f's_mov_b32 s{d+3}, 0x20000')

PREP_LDS = 57344 + 7*3*4096
def gen_prep(a, P):
    S_W1=4; S_W2=8; S_WS=12; S_X=16; S_TS=20; S_GW=24
    S_B=28; S_WV=29; S_H=30; S_ISB=31; S_DH=32; S_WQ=33; T=64; S_E=72; S_M1=80; S_O1=81; S_O2=82; S_SC=83; S_TO=84; S_XAO=85; S_XFO=86
    ws=f's[{S_WS}:{S_WS+3}]'; w1=f's[{S_W1}:{S_W1+3}]'; w2=f's[{S_W2}:{S_W2+3}]'; xs=f's[{S_X}:{S_X+3}]'; ts=f's[{S_TS}:{S_TS+3}]'; gw=f's[{S_GW}:{S_GW+3}]'
    L=1; t=2; u=3; V_L16=4; V_A=[5,6]; V_B=[7,8]; V_RA=[9,10]; V_RB=[11,12]; V_XA=13; V_XF=14; V_TA=15; V_TB=16; V_GA=17
    V_MX=20; V_MF=24; V_MT=28; V_ACC=40; V_FR=96
    a('prep_kernel:')
    a('s_cmp_ge_u32 s2, 256'); a('s_cbranch_scc1 P_exit')
    a('s_load_dwordx16 s[36:51], s[0:1], 0'); a('s_load_dwordx8 s[52:59], s[0:1], 64'); a('s_load_dwordx4 s[60:63], s[0:1], 96')
    a(f'v_lshrrev_b32 v{t}, 6, v0'); a(f'v_and_b32 v{L}, 63, v0'); a(f's_mov_b32 s{S_B}, s2'); a(f'v_readfirstlane_b32 s{S_WV}, v{t}')
    a(f'v_lshlrev_b32 v{V_L16}, 4, v{L}')
    a(f's_and_b32 s{T}, s2, 7'); a(f's_bfe_u32 s{S_ISB}, s2, 0x10006'); a(f's_bfe_u32 s{T+1}, s2, 0x10007'); a(f's_lshl_b32 s{S_H}, s{T}, 1'); a(f's_add_u32 s{S_H}, s{S_H}, s{T+1}')
    a(f's_bfe_u32 s{S_DH}, s2, 0x10005'); a(f's_bfe_u32 s{S_WQ}, s2, 0x20003')
    a('s_waitcnt lgkmcnt(0)')
    srd(a,S_WS,62,WS_SIZE); srd(a,S_X,36,2048*896); srd(a,S_GW,56,896)
    a(f's_lshr_b32 s{T}, s2, 2'); a(f's_mul_i32 s{T+1}, s{T}, {32*896}')
    a(f's_and_b32 s{T+2}, s2, 3'); a(f's_mul_i32 s{T+3}, s{T+2}, 224'); a(f's_add_u32 s{T+3}, s{T+3}, s{T+1}')
    a(f's_lshr_b32 s{T+4}, s{S_WV}, 2'); a(f's_mul_i32 s{T+4}, s{T+4}, 896'); a(f's_add_u32 s{T+3}, s{T+3}, s{T+4}')
    a(f's_bfe_u32 s{T+4}, s{S_WV}, 0x10001'); a(f's_lshl_b32 s{T+4}, s{T+4}, 3'); a(f's_and_b32 s{T+5}, s{S_WV}, 1'); a(f's_lshl_b32 s{T+5}, s{T+5}, 1'); a(f's_add_u32 s{T+4}, s{T+4}, s{T+5}')
    lx(a,u,L,t,[(4,1,2),(5,1,0)],f's{T+4}')
    lx(a,V_XA,L,t,[(3,1,4),(0,2,2),(2,1,1)]); a(f'v_mul_u32_u24 v{V_XA}, 896, v{V_XA}'); a(f'v_lshl_add_u32 v{V_XA}, v{u}, 4, v{V_XA}'); a(f'v_add_u32 v{V_XA}, s{T+3}, v{V_XA}')
    a(f'v_cmp_lt_u32 vcc, 13, v{u}'); a(f'v_mov_b32 v{t}, 0x40000000'); a(f'v_cndmask_b32 v{V_XA}, v{V_XA}, v{t}, vcc')
    a(f's_lshl_b32 s{S_XAO}, s2, 3'); a(f's_add_u32 s{S_XAO}, s{S_XAO}, s{S_WV}'); a(f's_lshl_b32 s{S_XAO}, s{S_XAO}, 10'); a(f's_add_u32 s{S_XAO}, s{S_XAO}, {XA_OFF}')
    a(f's_cmp_eq_u32 s{S_WV}, 7'); a('s_cbranch_scc1 P_misc')
    a(f's_cmp_eq_u32 s{S_ISB}, 0')
    a(f's_cselect_b32 s{S_W1}, s46, s50'); a(f's_cselect_b32 s{S_W1+1}, s47, s51'); a(f's_mov_b32 s{S_W1+2}, {448*8192}'); a(f's_mov_b32 s{S_W1+3}, 0x20000')
    a(f's_cselect_b32 s{S_W2}, s48, s52'); a(f's_cselect_b32 s{S_W2+1}, s49, s53'); a(f's_mov_b32 s{S_W2+2}, {448*8192}'); a(f's_mov_b32 s{S_W2+3}, 0x20000')
    a(f's_cselect_b32 s{S_SC}, 0x3db8aa3b, 1.0')
    a(f's_mul_i32 s{T}, s{S_DH}, 7'); a(f's_add_u32 s{T}, s{T}, s{S_WV}')
    a(f's_lshl_b32 s{S_O1}, s{T}, 18'); a(f's_lshl_b32 s{T+1}, s{S_H}, 9'); a(f's_add_u32 s{S_O1}, s{S_O1}, s{T+1}')
    lx(a,u,L,t,[(4,2,0)]); a(f'v_xor_b32 v{u}, v{u}, v{L}'); a(f'v_and_b32 v{u}, 7, v{u}')
    lx(a,V_A[0],L,t,[(4,1,16),(5,1,15),(3,1,13)]); a(f'v_lshl_add_u32 v{V_A[0]}, v{u}, 4, v{V_A[0]}'); a(f'v_xor_b32 v{V_A[1]}, 64, v{V_A[0]}')
    a(f's_mul_i32 s{S_TO}, s{S_ISB}, {WB_OFF-WA_OFF}'); a(f's_mul_i32 s{T+2}, s{S_H}, {WMAT}'); a(f's_add_u32 s{S_TO}, s{S_TO}, s{T+2}'); a(f's_mul_i32 s{T+2}, s{S_WQ}, {7*KK*1024}')
    a(f's_add_u32 s{S_TO}, s{S_TO}, s{T+2}'); a(f's_lshl_b32 s{T+2}, s{T}, 10'); a(f's_add_u32 s{S_TO}, s{S_TO}, s{T+2}')
    a(f's_mul_i32 s{S_M1}, s{S_WV}, {3*4096}'); a(f's_add_u32 s{S_M1}, s{S_M1}, 57344')
    lx(a,V_RB[0],L,t,[(1,3,0)]); lx(a,V_RB[1],L,t,[(4,2,0)]); a(f'v_xor_b32 v{V_RB[0]}, v{V_RB[0]}, v{V_RB[1]}'); a(f'v_lshlrev_b32 v{V_RB[0]}, 4, v{V_RB[0]}')
    lx(a,V_RB[1],L,t,[(0,4,7)]); a(f'v_add_u32 v{V_RB[0]}, v{V_RB[0]}, v{V_RB[1]}'); a(f'v_xor_b32 v{V_RB[1]}, 64, v{V_RB[0]}')
    a(f'v_add_u32 v{V_RA[0]}, s{S_M1}, v{V_RB[0]}'); a(f'v_add_u32 v{V_RA[1]}, s{S_M1}, v{V_RB[1]}')
    isb=a.new('isb'); j1=a.new('j')
    a(f's_cmp_lg_u32 s{S_ISB}, 0'); a(f's_cbranch_scc1 {isb}')
    a(f's_mul_i32 s{T+2}, s{S_WQ}, 112'); a(f's_lshr_b32 s{T+3}, s{S_WV}, 1'); a(f's_lshl_b32 s{T+3}, s{T+3}, 5'); a(f's_add_u32 s{T+2}, s{T+2}, s{T+3}')
    a(f's_and_b32 s{T+3}, s{S_WV}, 1'); a(f's_lshl_b32 s{T+3}, s{T+3}, 1'); a(f's_add_u32 s{T+2}, s{T+2}, s{T+3}'); a(f's_lshl_b32 s{S_O2}, s{T+2}, 13'); a(f's_add_u32 s{S_O2}, s{S_O2}, s{T+1}')
    lx(a,V_B[0],L,t,[(5,1,16),(4,1,15),(3,1,13)]); lx(a,V_B[1],L,t,[(3,3,13)])
    a(f's_cmp_eq_u32 s{S_WV}, 6'); a(f's_cselect_b64 vcc, -1, 0'); a(f's_cselect_b32 s{T+3}, {8*8192}, {16*8192}'.replace(f'{8*8192}, {16*8192}', '8, 16')); a(f's_lshl_b32 s{T+3}, s{T+3}, 13')
    a(f'v_cndmask_b32 v{V_B[0]}, v{V_B[0]}, v{V_B[1]}, vcc'); a(f'v_lshl_add_u32 v{V_B[0]}, v{u}, 4, v{V_B[0]}')
    a(f'v_xor_b32 v{V_B[1]}, 64, v{V_B[0]}'); a(f'v_add_u32 v{V_B[1]}, s{T+3}, v{V_B[1]}')
    a(f's_mov_b32 s{T+7}, 128')
    a(f's_branch {j1}')
    a.label(isb)
    a(f's_mul_i32 s{S_O2}, s{S_H}, {256*896}'); a(f's_mul_i32 s{T+2}, s{S_WQ}, 224'); a(f's_add_u32 s{S_O2}, s{S_O2}, s{T+2}')
    a(f's_lshl_b32 s{T+2}, s{S_WV}, 7')
    for jj in range(2):
        a(f'v_add_u32 v{u}, s{T+2}, v{L}')
        if jj: a(f'v_add_u32 v{u}, 64, v{u}')
        a(f'v_mul_u32_u24 v{t}, 4682, v{u}'); a(f'v_lshrrev_b32 v{t}, 16, v{t}')
        a(f'v_lshlrev_b32 v{u}, 4, v{u}'); a(f'v_mul_u32_u24 v{t}, {896-224}, v{t}'); a(f'v_add_u32 v{V_B[jj]}, v{u}, v{t}')
    lx(a,u,L,t,[(4,2,3),(2,2,0)]); a(f'v_mul_u32_u24 v{u}, 224, v{u}'); lx(a,V_RB[0],L,t,[(0,2,3)]); a(f'v_add_u32 v{V_RB[0]}, v{V_RB[0]}, v{u}')
    a(f's_mov_b32 s{T+7}, {64*896}')
    a.label(j1)
    vm=Cnt(a,'vmcnt',63)
    def dma1(ch):
        for j in range(4):
            a(f's_add_u32 m0, s{S_M1}, {(ch%3)*4096+j*1024}'); a(f's_add_u32 s{T}, s{S_O1}, {(16*(j%2)+2*(j//2))*8192+128*ch}')
            a(f'buffer_load_dwordx4 v{V_A[j%2]}, {w1}, s{T} offen lds'); vm.issue(f'c{ch}')
    def dma2(ch):
        for jj in range(2):
            a(f's_lshl_b32 s{T}, s{S_WV}, 11'); a(f's_add_u32 m0, s{T}, {ch*14336+jj*1024}')
            a(f'buffer_load_dwordx4 v{V_B[jj]}, {w2}, s{S_O2} offen lds'); vm.issue(f'c{ch}')
        a(f's_add_u32 s{S_O2}, s{S_O2}, s{T+7}')
    for ch in range(3): dma2(ch); dma1(ch)
    dma2(3)
    a(f's_and_b32 s{T}, s2, 3'); a(f's_mul_i32 s{T}, s{T}, 7'); a(f's_add_u32 s{T}, s{T}, s{S_WV}')
    a(f's_lshr_b32 s{T+1}, s2, 2'); a(f's_mul_i32 s{S_XFO}, s{T+1}, 28'); a(f's_add_u32 s{S_XFO}, s{S_XFO}, s{T}'); a(f's_lshl_b32 s{S_XFO}, s{S_XFO}, 10'); a(f's_add_u32 s{S_XFO}, s{S_XFO}, {XF_OFF}')
    a(f's_mul_i32 s{T+1}, s{T+1}, {32*896}'); a(f's_cmp_ge_u32 s{T}, 14'); a(f's_cselect_b32 s{T+2}, {4*896-14*64}, 0'); a(f's_add_u32 s{T+1}, s{T+1}, s{T+2}'); a(f's_lshl_b32 s{T}, s{T}, 6'); a(f's_add_u32 s{T+1}, s{T+1}, s{T}')
    lx(a,u,L,t,[(2,2,3),(0,2,0)]); a(f'v_mul_u32_u24 v{u}, 896, v{u}'); lx(a,V_XF,L,t,[(5,1,5),(4,1,3)]); a(f'v_add_u32 v{V_XF}, v{V_XF}, v{u}')
    a(f'buffer_load_dwordx4 {vr(V_MX,4)}, v{V_XA}, {xs}, 0 offen'); vm.issue('m')
    a(f'buffer_load_dwordx2 {vr(V_MF,2)}, v{V_XF}, {xs}, s{T+1} offen'); a(f'buffer_load_dwordx2 {vr(V_MF+2,2)}, v{V_XF}, {xs}, s{T+1} offen offset:16'); vm.issue('m'); vm.issue('m')
    S_TF=87
    a(f's_mul_i32 s{S_TF}, s2, 7'); a(f's_add_u32 s{S_TF}, s{S_TF}, s{S_WV}')
    wof=a.new('wof'); j2=a.new('j')
    a(f's_cmp_ge_u32 s{S_TF}, 1344'); a(f's_cbranch_scc1 {wof}')
    srd(a,S_TS,38,448*2688)
    a(f's_mul_i32 s{T}, s{S_TF}, 2341'); a(f's_lshr_b32 s{T}, s{T}, 16')
    a(f's_mul_i32 s{T+1}, s{T}, 28'); a(f's_sub_u32 s{T+1}, s{S_TF}, s{T+1}')
    a(f's_mul_i32 s{T+2}, s{T}, 21846'); a(f's_lshr_b32 s{T+2}, s{T+2}, 16')
    a(f's_mul_i32 s{T+3}, s{T+2}, 3'); a(f's_sub_u32 s{T+3}, s{T}, s{T+3}')
    a(f's_mul_i32 s{T+3}, s{T+3}, 896'); a(f's_mul_i32 s{T+2}, s{T+2}, 56'); a(f's_add_u32 s{T+3}, s{T+3}, s{T+2}'); a(f's_mul_i32 s{T+2}, s{T+1}, {16*2688}'); a(f's_add_u32 s{T+3}, s{T+3}, s{T+2}')
    for e,r in enumerate([0,1,8,9,2,3,10,11]): a(f's_add_u32 s{S_E+e}, s{T+3}, {r*2688}')
    lx(a,u,L,t,[(5,1,0)]); a(f'v_mul_u32_u24 v{u}, {4*2688}, v{u}'); lx(a,V_TA,L,t,[(0,5,1)]); a(f'v_cmp_lt_u32 vcc, 27, v{t}'); a(f'v_add_u32 v{V_TA}, v{V_TA}, v{u}')
    a(f'v_mov_b32 v{t}, 0x40000000'); a(f'v_cndmask_b32 v{V_TA}, v{V_TA}, v{t}, vcc'); a(f'v_mov_b32 v{V_TB}, v{V_TA}')
    a(f's_branch {j2}')
    a.label(wof)
    srd(a,S_TS,40,448*896)
    a(f's_sub_u32 s{T}, s{S_TF}, 1344'); a(f's_and_b32 s{T+2}, s{T}, 15'); a(f's_lshr_b32 s{T}, s{T}, 4'); a(f's_lshl_b32 s{T}, s{T}, 5'); a(f's_mul_i32 s{T+2}, s{T+2}, {28*896}'); a(f's_add_u32 s{T+3}, s{T}, s{T+2}')
    for e in range(8): a(f's_add_u32 s{S_E+e}, s{T+3}, {(8*(e//4)+e%4)*896}')
    lx(a,u,L,t,[(5,1,4),(4,1,2)]); a(f'v_mul_u32_u24 v{u}, 896, v{u}'); lx(a,V_TA,L,t,[(0,4,1)]); a(f'v_add_u32 v{V_TA}, v{V_TA}, v{u}')
    a(f'v_cmp_lt_u32 vcc, 47, v{L}'); a(f'v_mov_b32 v{t}, 0x40000000'); a(f'v_cndmask_b32 v{V_TB}, v{V_TA}, v{t}, vcc')
    a.label(j2)
    for e in range(8): a(f'buffer_load_ushort v{V_MT+e}, v{V_TA if e<4 else V_TB}, {ts}, s{S_E+e} offen'); vm.issue('m')
    for r in range(28): a(f'v_mov_b64 {vr(V_ACC+2*r,2)}, 0')
    def compute(isB):
        lg=Cnt(a,'lgkmcnt',15); v2=Cnt(a,'vmcnt',63); v2.q=list(vm.q)
        for ch in range(4):
            v2.wait(f'c{ch}'); a('s_barrier')
            for ks in range(2):
                F=V_FR+36*ks
                for T_ in range(2): a(f'ds_read_b128 {vr(F+4*T_,4)}, v{V_RA[ks]} offset:{(ch%3)*4096+T_*2048}'); lg.issue(f'a{ks}')
                def rdB(n):
                    if isB:
                        for hh in range(2): a(f'ds_read_b64_tr_b16 {vr(F+8+4*n+2*hh,2)}, v{V_RB[0]} offset:{ch*14336+(32*ks+4*hh)*224+n*32}'); lg.issue(f'b{ks}{n}')
                    else: a(f'ds_read_b128 {vr(F+8+4*n,4)}, v{V_RB[ks]} offset:{ch*14336+n*2048}'); lg.issue(f'b{ks}{n}')
                for n in range(5): rdB(n)
                for n in range(7):
                    lg.wait(f'b{ks}{n}')
                    if n+5<7: rdB(n+5)
                    for T_ in range(2):
                        d=vr(V_ACC+8*n+4*T_,4); a(f'{MF} {d}, {vr(F+4*T_,4)}, {vr(F+8+4*n,4)}, {d}')
            if ch==0:
                save=vm.q; vm.q=v2.q; dma1(3); v2.q=vm.q; vm.q=save
    cb=a.new('cb'); j3=a.new('j')
    a(f's_cmp_lg_u32 s{S_ISB}, 0'); a(f's_cbranch_scc1 {cb}')
    compute(False); a(f's_branch {j3}')
    a.label(cb); compute(True)
    a.label(j3)
    ng=a.new('ng'); a(f's_cmp_ge_u32 s{S_TF}, 28'); a(f's_cbranch_scc1 {ng}')
    a(f's_lshl_b32 s{T}, s{S_TF}, 5'); lx(a,V_GA,L,t,[(5,1,3)]); a('s_mov_b32 exec_lo, 0x10000000'); a('s_mov_b32 exec_hi, 0x10000000')
    for e,r in enumerate([0,1,8,9,2,3,10,11]): a(f'buffer_load_ushort v{V_MT+e}, v{V_GA}, {gw}, s{T} offen offset:{2*r}')
    a('s_mov_b64 exec, -1')
    a.label(ng)
    a(f'v_swap_b32 v{V_MF+1}, v{V_MF+2}')
    a(f'buffer_store_dwordx4 {vr(V_MX,4)}, v{V_L16}, {ws}, s{S_XAO} offen')
    a(f'buffer_store_dwordx4 {vr(V_MF,4)}, v{V_L16}, {ws}, s{S_XFO} offen')
    for n in range(7):
        x=V_ACC+8*n
        for r in range(8): a(f'v_mul_f32 v{x+r}, s{S_SC}, v{x+r}')
        for r in range(4): a(f'v_cvt_pk_bf16_f32 v{x+r}, v{x+2*r}, v{x+2*r+1}')
        a(f'buffer_store_dwordx4 {vr(x,4)}, v{V_L16}, {ws}, s{S_TO} offen')
        if n<6: a(f's_add_u32 s{S_TO}, s{S_TO}, {KK*1024}')
    a('s_waitcnt vmcnt(9)')
    for r in range(4): a(f'v_lshl_or_b32 v{V_MT+r}, v{V_MT+2*r+1}, 16, v{V_MT+2*r}')
    a(f's_lshl_b32 s{T}, s{S_TF}, 10'); a(f's_add_u32 s{T}, s{T}, {WQF_OFF}')
    a(f'buffer_store_dwordx4 {vr(V_MT,4)}, v{V_L16}, {ws}, s{T} offen')
    a('s_endpgm')
    a.label('P_misc')
    a(f'buffer_load_dwordx4 {vr(V_MX,4)}, v{V_XA}, {xs}, 0 offen')
    n0=a.new('n0'); n1=a.new('n1'); n2=a.new('n2'); n3=a.new('n3')
    a(f'v_mov_b64 {vr(40,2)}, -1'); a(f'v_mov_b64 {vr(42,2)}, -1')
    a('s_cmp_lt_u32 s2, 4'); a(f's_cbranch_scc1 {n0}')
    a(f's_lshl_b32 s{T}, s2, 11'); a(f's_add_u32 s{T}, s{T}, {MG_OFF}')
    a(f'buffer_store_dwordx4 {vr(40,4)}, v{V_L16}, {ws}, s{T} offen'); a(f'buffer_store_dwordx4 {vr(40,4)}, v{V_L16}, {ws}, s{T} offen offset:1024')
    a.label(n0)
    a('s_cmp_lt_u32 s2, 14'); a(f's_cbranch_scc1 {n1}')
    a(f's_and_b32 s{T}, s2, 62'); a(f's_cmp_eq_u32 s{T}, 14'); a(f's_cselect_b32 s{T+1}, 0, -1'); a(f'v_mov_b32 v44, s{T+1}')
    a(f's_cmp_eq_u32 s2, 15'); a(f's_cselect_b32 s{T+1}, 7, 0'); a(f'v_cmp_gt_u32 vcc, s{T+1}, v{L}'); a(f'v_cndmask_b32 v44, v44, 1, vcc'); a('v_mov_b32 v45, v44')
    a(f's_lshl_b32 s{T}, s2, 9'); a(f's_add_u32 s{T}, s{T}, {RING_OFF}'); a(f'v_lshlrev_b32 v{t}, 3, v{L}')
    a(f'buffer_store_dwordx2 v[44:45], v{t}, {ws}, s{T} offen')
    a.label(n1)
    a(f's_cmp_ge_u32 s2, {FL_SIZE//256}'); a(f's_cbranch_scc1 {n2}')
    a(f's_lshl_b32 s{T}, s2, 8'); a(f's_add_u32 s{T}, s{T}, {FL_OFF}'); a(f'v_lshlrev_b32 v{u}, 2, v{L}'); a('v_mov_b32 v46, 0')
    a(f'buffer_store_dword v46, v{u}, {ws}, s{T} offen')
    a.label(n2)
    a('s_cmp_ge_u32 s2, 7'); a(f's_cbranch_scc1 {n3}')
    srd(a,S_TS,44,7168)
    lx(a,u,L,t,[(2,2,1),(0,1,0)]); a(f'v_mul_u32_u24 v{u}, 896, v{u}'); lx(a,V_TA,L,t,[(4,2,5),(1,1,4)]); a(f'v_add_u32 v{V_TA}, v{V_TA}, v{u}')
    a(f's_lshl_b32 s{T}, s2, 7'); a(f'buffer_load_dwordx4 v[48:51], v{V_TA}, {ts}, s{T} offen'); a('s_waitcnt vmcnt(0)')
    for r in range(4): a(f'v_min_u32 v{48+r}, -2, v{48+r}')
    a(f's_lshl_b32 s{T}, s2, 10'); a(f's_add_u32 s{T+1}, s{T}, {RING_OFF+R_M}'); a(f's_add_u32 s{T}, s{T}, {MG_OFF}')
    a(f'buffer_store_dwordx4 v[48:51], v{V_L16}, {ws}, s{T+1} offen'); a(f'buffer_store_dwordx4 v[48:51], v{V_L16}, {ws}, s{T} offen')
    a.label(n3)
    a('s_waitcnt vmcnt(0)')
    a(f'buffer_store_dwordx4 {vr(V_MX,4)}, v{V_L16}, {ws}, s{S_XAO} offen')
    a.label('P_exit'); a('s_endpgm')

def kd(name, vgpr, acc):
    return f'''.p2align 6
.amdhsa_kernel {name}
  .amdhsa_next_free_vgpr {vgpr}
  .amdhsa_next_free_sgpr 102
  .amdhsa_accum_offset {acc}
  .amdhsa_group_segment_fixed_size 0
  .amdhsa_kernarg_size 112
  .amdhsa_user_sgpr_count 2
  .amdhsa_user_sgpr_kernarg_segment_ptr 1
  .amdhsa_system_sgpr_workgroup_id_x 1
.end_amdhsa_kernel
'''
def prep_only(P={}):
    a=Asm(); gen_prep(a,P); a.lines,_=hazards(a.lines,verbose=P.get('verbose'))
    return f'''; @launch grid=(256,1,1) block=(512,1,1) lds={PREP_LDS}
.amdgcn_target "amdgcn-amd-amdhsa--gfx950"
.text
.globl prep_kernel
.p2align 8
.type prep_kernel,@function
'''+a.text()+'.section .rodata,"a"\n'+kd('prep_kernel',168,168)
if __name__=='__main__':
    open('prep.s','w').write(prep_only(dict(verbose=1)))
```

```python
from asmlib import *
from layout import *
from chain import Cnt, lx, mkidx, wreg, S_RING, S_WS, S_ID, S_W, S_S, S_TO, S_T, SMF, MF, MFH
M32='v_mfma_f32_32x32x16_bf16'
S_OUT=8
S_J=19
WTIME=300000
ws=f's[{S_WS}:{S_WS+3}]'
abort='L_exit'
NV=3; NSW=3

def wpoll(a, voff, soff, tmp, thr, sleep=1):
    lp=a.new('wp'); dn=a.new('wpd')
    a(f's_mov_b32 s{S_TO}, {WTIME}')
    a.label(lp)
    a(f'buffer_load_dword v{tmp}, v{voff}, {ws}, {soff} offen sc1'); a('s_waitcnt vmcnt(0)')
    a(f'v_cmp_gt_u32 vcc, {thr}, v{tmp}'); a(f's_cbranch_vccz {dn}')
    if sleep: a(f's_sleep {sleep}')
    a(f's_sub_u32 s{S_TO}, s{S_TO}, 1'); a(f's_cbranch_scc0 {lp}'); a(f's_branch {abort}')
    a.label(dn)
def wave0(a, fn):
    sk=a.new('w0'); a(f's_cmp_lg_u32 s{S_W}, 0'); a(f's_cbranch_scc1 {sk}'); fn(); a.label(sk)
def setflag(a, vone, voob, soff):
    wave0(a, lambda: a(f'buffer_store_dword v{vone}, v{voob}, {ws}, s{soff} offen sc1'))
def flagregs(a, vone, voob, lane):
    a(f'v_mov_b32 v{vone}, 1'); a(f'v_min_u32 v{voob}, 1, v{lane}'); a(f'v_lshlrev_b32 v{voob}, 30, v{voob}')

V_WV=120
def tl(a,P,r):
    if P.get('tl'): a(f's_memrealtime s[{r}:{r+1}]')
def Wf(n,kk,cnt=4):
    f,r=wreg(n*7+kk//2,32,V_WV); return vr(r+4*(kk%2),cnt,f)
def load_weights(a, off, vl16):
    a(f's_mul_i32 s{S_T}, s{S_ID}, {WMAT}'); a(f's_mul_i32 s{S_T+1}, s{S_W}, {7*KK*1024}'); a(f's_add_u32 s{S_T}, s{S_T}, s{S_T+1}')
    if off: a(f's_add_u32 s{S_T}, s{S_T}, {off}')
    for q in range(98):
        n,kk=divmod(q,14)
        a(f'buffer_load_dwordx4 {Wf(n,kk)}, v{vl16}, {ws}, s{S_T} offen offset:{1024*(q%4)}')
        if q%4==3: a(f's_add_u32 s{S_T}, s{S_T}, 4096')
S_XB=20; S_XS=21
def xdma(a, vl16, sseg):
    a(f's_mul_i32 s{S_T}, s{sseg}, {XF_SEG}'); a(f's_mul_i32 s{S_T+1}, s{S_W}, 7168'); a(f's_add_u32 s{S_T}, s{S_T}, s{S_T+1}'); a(f's_add_u32 s{S_T}, s{S_T}, {XF_OFF}')
    a(f's_add_u32 m0, s{S_T+1}, s{S_XB}')
    for k in range(7):
        if k==4: a(f's_add_u32 s{S_T}, s{S_T}, 4096'); a('s_add_u32 m0, m0, 4096')
        a(f'buffer_load_dwordx4 v{vl16}, {ws}, s{S_T} offen offset:{1024*(k%4)} lds')
def gemm32(a, vxr, xb, acc, wfirst, fill=None):
    lg=Cnt(a,'lgkmcnt',15)
    def rd(kk):
        for tt in range(2): a(f'ds_read_b128 {vr(xb+8*(kk%2)+4*tt,4)}, v{vxr} offset:{tt*14336+kk*1024}'); lg.issue(f'x{kk}')
    rd(0); rd(1)
    for kk in range(14):
        lg.wait(f'x{kk}')
        for n in range(7):
            for tt in range(2):
                d=vr(acc(tt,n),4); x=vr(xb+8*(kk%2)+4*tt,4)
                A,B=(Wf(n,kk),x) if wfirst else (x,Wf(n,kk))
                a(f'{MF} {d}, {A}, {B}, {d if kk else 0}')
            if n==0 and 1<=kk<13: rd(kk+1)
            if n==3 and fill and kk<len(fill): fill[kk]()

def gen_V(a, P):
    V_L16,V_IDX,V_ONE,V_OOB,V_XR,V_L4,V_PO,V_T = range(8)
    V_ACC=16; V_XB=72; V_M=72
    S_O=22; S_F=24; S_NX=25
    l=V_ACC; t=V_ACC+1
    a(f'v_mov_b32 v{l}, v0'); a(f'v_lshlrev_b32 v{V_L16}, 4, v{l}'); mkidx(a,V_IDX,l,t); flagregs(a,V_ONE,V_OOB,l)
    a(f'v_lshlrev_b32 v{V_L4}, 2, v{l}'); a(f'v_min_u32 v{V_PO}, 55, v{l}'); a(f'v_lshlrev_b32 v{V_PO}, 7, v{V_PO}')
    a(f's_mov_b32 s{S_XB}, 0'); a(f's_mov_b32 s{S_S}, s{S_J}')
    xdma(a,V_L16,S_S)
    load_weights(a,WB_OFF,V_L16)
    if P.get('tl'): a('s_waitcnt vmcnt(0)'); tl(a,P,72)
    top=a.new('Vtop'); nf=a.new('nf'); nd=a.new('nd'); done=a.new('Vdone')
    a.label(top)
    a('s_waitcnt vmcnt(0)'); a('s_barrier')
    a(f's_cmp_eq_u32 s{S_S}, s{S_J}'); a(f's_cbranch_scc1 {nf}')
    setflag(a,V_ONE,V_OOB,S_F)
    a.label(nf)
    a(f's_cmp_ge_u32 s{S_S}, {NSEG}'); a(f's_cbranch_scc1 {done}')
    a(f'v_add_u32 v{V_XR}, s{S_XB}, v{V_L16}'); a(f's_xor_b32 s{S_XB}, s{S_XB}, 32768')
    a(f's_add_u32 s{S_NX}, s{S_S}, {NV}'); a(f's_cmp_ge_u32 s{S_NX}, {NSEG}'); a(f's_cbranch_scc1 {nd}')
    xdma(a,V_L16,S_NX)
    a.label(nd)
    acc=lambda tt,n: V_ACC+8*n+4*tt
    gemm32(a,V_XR,V_XB,acc,False)
    a(f's_mul_i32 s{S_O}, s{S_S}, {VX_SEG}'); a(f's_mul_i32 s{S_T}, s{S_W}, {7*H*1024}'); a(f's_add_u32 s{S_O}, s{S_O}, s{S_T}'); a(f's_lshl_b32 s{S_T}, s{S_ID}, 10')
    a(f's_add_u32 s{S_O}, s{S_O}, s{S_T}'); a(f's_add_u32 s{S_O}, s{S_O}, {VX_OFF}')
    for n in range(7):
        x=V_ACC+8*n
        for r in range(4): a(f'v_cvt_pk_bf16_f32 v{x+r}, v{x+2*r}, v{x+2*r+1}')
        a(f'buffer_store_dwordx4 {vr(x,4)}, v{V_L16}, {ws}, s{S_O} offen sc1')
        if n<6: a(f's_add_u32 s{S_O}, s{S_O}, {H*1024}')
    a(f's_lshl_b32 s{S_F}, s{S_S}, 8'); a(f's_lshl_b32 s{S_T}, s{S_ID}, 2'); a(f's_add_u32 s{S_F}, s{S_F}, s{S_T}'); a(f's_add_u32 s{S_F}, s{S_F}, {FL_OFF}')
    a(f's_mov_b32 s{S_S}, s{S_NX}'); a(f's_branch {top}')
    a.label(done); tl(a,P,74)
    a(f's_mov_b32 s{S_S}, s{S_J}')
    t2=a.new('Vm'); lp=a.new('Vmp'); bad=a.new('Vmb'); ok=a.new('Vmo')
    a.label(t2)
    a(f's_lshl_b32 s{S_O}, s{S_S}, 13'); a(f's_add_u32 s{S_O}, s{S_O}, {MG_OFF}'); a(f's_add_u32 s{S_NX}, s{S_O}, 4096'); a(f's_mov_b32 s{S_TO}, {WTIME}')
    for r in range(14): a(f'v_mov_b64 {vr(V_ACC+2*r,2)}, 0')
    a.label(lp)
    a(f'buffer_load_dword v{V_T}, v{V_PO}, {ws}, s{S_O} offen sc1'); a('s_waitcnt vmcnt(0)')
    a(f'v_cmp_eq_u32 vcc, -1, v{V_T}'); a(f's_cbranch_vccnz {bad}')
    for i in range(7): a(f'buffer_load_dwordx4 {vr(V_M+4*i,4)}, v{V_L16}, {ws}, s{S_O if i<4 else S_NX} offen offset:{1024*(i%4)} sc1')
    a('s_waitcnt vmcnt(0)')
    a(f'v_max_u32 v{V_T}, v{V_M}, v{V_M+1}')
    for k in range(1,14): a(f'v_max3_u32 v{V_T}, v{V_T}, v{V_M+2*k}, v{V_M+2*k+1}')
    a(f'v_cmp_eq_u32 vcc, -1, v{V_T}'); a(f's_cbranch_vccz {ok}')
    a.label(bad)
    a('s_sleep 1'); a(f's_sub_u32 s{S_TO}, s{S_TO}, 1'); a(f's_cbranch_scc0 {lp}'); a(f's_branch {abort}')
    a.label(ok)
    a(f's_mul_i32 s{S_O}, s{S_S}, {VM_SEG}'); a(f's_mul_i32 s{S_T}, s{S_W}, {7*H*256}'); a(f's_add_u32 s{S_O}, s{S_O}, s{S_T}'); a(f's_lshl_b32 s{S_T}, s{S_ID}, 8')
    a(f's_add_u32 s{S_O}, s{S_O}, s{S_T}'); a(f's_add_u32 s{S_O}, s{S_O}, {VM_OFF}')
    def fin(n):
        x=V_ACC+4*n
        return [f'v_add_f32 v{x}, v{x}, v{x+2}', f'v_add_f32 v{x+1}, v{x+1}, v{x+3}', f'v_cvt_pk_bf16_f32 v{x}, v{x}, v{x+1}',
                f'buffer_store_dword v{x}, v{V_L4}, {ws}, s{S_O} offen sc1\ns_add_u32 s{S_O}, s{S_O}, {H*256}']
    for n in range(7):
        f=fin(n-1) if n else []
        for i in range(7):
            a(f'{SMF} {vr(V_ACC+4*n,4)}, {vr(V_M+4*i,4)}, {Wf(n,2*i,8)}, v{V_IDX}')
            if i>=2 and f: a(f.pop(0))
    for x in fin(6): a(x)
    a(f's_lshl_b32 s{S_F}, s{S_S}, 8'); a(f's_lshl_b32 s{S_T}, s{S_ID}, 2'); a(f's_add_u32 s{S_F}, s{S_F}, s{S_T}'); a(f's_add_u32 s{S_F}, s{S_F}, {FL_OFF+128}')
    a('s_waitcnt vmcnt(0)'); a('s_barrier')
    setflag(a,V_ONE,V_OOB,S_F)
    a(f's_add_u32 s{S_S}, s{S_S}, {NV}'); a(f's_cmp_lt_u32 s{S_S}, {NSEG}'); a(f's_cbranch_scc1 {t2}')
    a('s_branch L_fin')

def gen_S(a, P):
    V_L16,V_ONE,V_OOB,V_XR,V_KX,V_KXH,V_KM,V_KMH,V_SW,V_SWM,V_SR,V_SRM,V_PX,V_PM,V_NEG,V_T = range(16)
    V_ACC=16; V_XB=72; V_K=88; V_MK=72
    S_O=22; S_F=24; S_NX=25; S_KA=26; S_MK=48
    L_S=65536; RS=176; WSZ=32*RS
    l=V_ACC; t=V_ACC+1; u=V_ACC+2
    a(f'v_mov_b32 v{l}, v0'); a(f'v_lshlrev_b32 v{V_L16}, 4, v{l}'); flagregs(a,V_ONE,V_OOB,l)
    lx(a,V_KX,l,t,[(5,1,10),(4,1,9),(0,4,4)]); lx(a,V_KXH,l,t,[(5,1,9),(4,1,3),(0,4,4)],2048+256)
    a(f's_mul_i32 s{S_T}, s{S_W}, {7*256}')
    lx(a,V_KM,l,t,[(5,1,8),(4,1,5),(1,2,6),(0,1,4)],f's{S_T}'); lx(a,V_KMH,l,t,[(5,1,5),(4,1,3),(1,2,6),(0,1,4)],[f's{S_T}',1536])
    a(f's_mul_i32 s{S_T}, s{S_W}, {WSZ}'); a(f's_add_u32 s{S_T}, s{S_T}, {L_S}')
    lx(a,u,l,t,[(0,4,0)]); a(f'v_mul_u32_u24 v{u}, {RS}, v{u}'); a(f'v_add_u32 v{u}, s{S_T}, v{u}')
    lx(a,V_SW,l,t,[(5,1,6),(4,1,3)]); a(f'v_add_u32 v{V_SW}, v{V_SW}, v{u}'); lx(a,V_SWM,l,t,[(4,1,4)],128); a(f'v_add_u32 v{V_SWM}, v{V_SWM}, v{u}')
    a(f's_mul_i32 s{S_T}, s{S_W}, {8*RS}'); a(f's_add_u32 s{S_T}, s{S_T}, {L_S}')
    lx(a,u,l,t,[(3,3,0)]); a(f'v_mul_u32_u24 v{u}, {RS}, v{u}'); a(f'v_add_u32 v{u}, s{S_T}, v{u}')
    lx(a,V_SR,l,t,[(0,3,4)]); a(f'v_add_u32 v{V_SR}, v{V_SR}, v{u}'); lx(a,V_SRM,l,t,[(0,3,2)],128); a(f'v_add_u32 v{V_SRM}, v{V_SRM}, v{u}')
    a(f's_lshr_b32 s{S_T}, s{S_W}, 1'); a(f's_and_b32 s{S_T+1}, s{S_W}, 1')
    a(f's_lshl_b32 s{S_T+2}, s{S_T}, 4'); a(f's_add_u32 s{S_T+2}, s{S_T+2}, s{S_ID}')
    a(f's_lshl_b32 s{S_T+3}, s{S_T+2}, 10'); a(f's_lshl_b32 s{S_T+4}, s{S_T+1}, 7'); a(f's_add_u32 s{S_T+3}, s{S_T+3}, s{S_T+4}')
    lx(a,V_PX,l,t,[(1,2,8),(3,3,4),(0,1,3)],[f's{S_T+3}',PX_OFF])
    a(f's_lshl_b32 s{S_T+3}, s{S_T+2}, 8'); a(f's_lshl_b32 s{S_T+4}, s{S_T+1}, 5'); a(f's_add_u32 s{S_T+3}, s{S_T+3}, s{S_T+4}')
    lx(a,V_PM,l,t,[(1,2,6),(3,3,2),(0,1,30)],[f's{S_T+3}',PM_OFF])
    a(f's_lshl_b32 s{S_T+3}, s{S_T+1}, 4'); a(f's_lshl_b32 s{S_T+4}, s{S_T}, 2'); a(f's_add_u32 s{S_T+3}, s{S_T+3}, s{S_T+4}')
    lx(a,u,l,t,[(5,1,3),(3,2,0)],f's{S_T+3}'); lx(a,V_T,l,t,[(0,3,2)])
    for r in range(4):
        a(f'v_cmp_le_u32 s[{S_MK+2*r}:{S_MK+2*r+1}], v{V_T}, v{u}'); a(f'v_add_u32 v{V_T}, 1, v{V_T}')
    a(f'v_mov_b32 v{V_NEG}, 0xceabfb8f')
    a(f's_mov_b32 s{S_XB}, 0'); a(f's_mov_b32 s{S_S}, s{S_J}')
    if P.get('sdelay',1):
        lx(a,u,l,t,[(0,4,2)]); a(f's_mov_b32 s{S_O}, {FL_OFF}'); wpoll(a,u,f's{S_O}',V_T,1,sleep=8)
    xdma(a,V_L16,S_S)
    load_weights(a,WA_OFF,V_L16)
    top=a.new('Stop'); nd=a.new('nd'); lp=a.new('Smp'); ok=a.new('Smo')
    a('s_waitcnt vmcnt(0)'); a('s_barrier'); tl(a,P,72)
    a.label(top)
    a(f'v_add_u32 v{V_XR}, s{S_XB}, v{V_L16}'); a(f's_xor_b32 s{S_XB}, s{S_XB}, 32768')
    a(f's_add_u32 s{S_NX}, s{S_S}, {NSW}'); a(f's_cmp_ge_u32 s{S_NX}, {NSEG}'); a(f's_cbranch_scc1 {nd}')
    xdma(a,V_L16,S_NX)
    a.label(nd)
    a(f's_lshl_b32 s{S_KA}, s{S_S}, 15'); a(f's_lshl_b32 s{S_T}, s{S_W}, 13'); a(f's_add_u32 s{S_KA}, s{S_KA}, s{S_T}'); a(f's_add_u32 s{S_KA}, s{S_KA}, {XA_OFF}'); a(f's_add_u32 s{S_KA+1}, s{S_KA}, 4096')
    fill=[]
    for kt in range(2):
        for q in range(3): fill.append(lambda kt=kt,q=q: a(f'buffer_load_dwordx4 {vr(V_K+14*kt+4*q,4)}, v{V_KX}, {ws}, s{S_KA+kt} offen offset:{(q//2)*2048+(q%2)*256}'))
        fill.append(lambda kt=kt: a(f'buffer_load_dwordx2 {vr(V_K+14*kt+12,2)}, v{V_KXH}, {ws}, s{S_KA+kt} offen'))
    acc=lambda tt,n: V_ACC+28*tt+4*n
    gemm32(a,V_XR,V_XB,acc,True,fill)
    def mload():
        for q in range(3): a(f'buffer_load_dwordx4 {vr(V_MK+4*q,4)}, v{V_KM}, {ws}, s{S_O} offen offset:{512*q} sc1')
        a(f'buffer_load_dwordx2 {vr(V_MK+12,2)}, v{V_KMH}, {ws}, s{S_O} offen sc1')
    a(f's_lshl_b32 s{S_O}, s{S_S}, 13'); a(f's_add_u32 s{S_O}, s{S_O}, {MG_OFF}'); a(f's_mov_b32 s{S_TO}, {WTIME}')
    mload()
    for q in range(4):
        for tt in range(2):
            x=acc(tt,2*q); y=x+4
            if q<3:
                a(f'v_cvt_pk_bf16_f32 v{x}, v{x}, v{x+1}'); a(f'v_cvt_pk_bf16_f32 v{x+1}, v{y}, v{y+1}'); a(f'v_cvt_pk_bf16_f32 v{x+2}, v{x+2}, v{x+3}'); a(f'v_cvt_pk_bf16_f32 v{x+3}, v{y+2}, v{y+3}')
            else: a(f'v_cvt_pk_bf16_f32 v{x}, v{x}, v{x+1}'); a(f'v_cvt_pk_bf16_f32 v{x+1}, v{x+2}, v{x+3}')
    S=lambda kt,tt: acc(tt,2*kt+1)
    def s2(kts):
        for q in range(4):
            for kt in kts:
                for tt in range(2):
                    d=vr(S(kt,tt),4); k=(V_K+14*kt if kt<2 else V_MK)+4*q
                    if q<3: a(f'{MF} {d}, {vr(k,4)}, {vr(acc(tt,2*q),4)}, {d if q else 0}')
                    else: a(f'{MFH} {d}, {vr(k,2)}, {vr(acc(tt,6),2)}, {d}')
    a('s_waitcnt vmcnt(4)')
    s2([0,1])
    for tt in range(2):
        if tt: a(f'v_add_u32 v{V_T}, {16*RS}, v{V_SW}')
        for r in range(4): a(f'ds_write2_b32 v{V_T if tt else V_SW}, v{S(0,tt)+r}, v{S(1,tt)+r} offset0:{4*r} offset1:{4*r+1}')
    a.label(lp)
    a('s_waitcnt vmcnt(0)')
    a(f'v_max_u32 v{V_T}, v{V_MK}, v{V_MK+1}')
    for k in range(1,7): a(f'v_max3_u32 v{V_T}, v{V_T}, v{V_MK+2*k}, v{V_MK+2*k+1}')
    a(f'v_cmp_eq_u32 vcc, -1, v{V_T}'); a(f's_cbranch_vccz {ok}')
    a('s_sleep 1'); mload()
    a(f's_sub_u32 s{S_TO}, s{S_TO}, 1'); a(f's_cbranch_scc0 {lp}'); a(f's_branch {abort}')
    a.label(ok); tl(a,P,74)
    s2([2])
    for tt in range(2): a(f'ds_write_b128 v{V_SWM}, {vr(S(2,tt),4)} offset:{tt*16*RS}')
    a('s_waitcnt lgkmcnt(0)'); a('s_barrier')
    R=V_ACC; Rm=V_ACC+16; E=V_ACC+20; t=V_ACC+28
    for w in range(4): a(f'ds_read_b128 {vr(R+4*w,4)}, v{V_SR} offset:{w*WSZ}')
    for w in range(4): a(f'ds_read_b32 v{Rm+w}, v{V_SRM} offset:{w*WSZ}')
    a(f's_lshl_b32 s{S_O}, s{S_S}, 15'); a(f's_lshl_b32 s{S_T+1}, s{S_S}, 13')
    a(f's_lshl_b32 s{S_F}, s{S_S}, 8'); a(f's_lshl_b32 s{S_T}, s{S_ID}, 2'); a(f's_add_u32 s{S_F}, s{S_F}, s{S_T}'); a(f's_add_u32 s{S_F}, s{S_F}, {FL_OFF+64}')
    a('s_waitcnt lgkmcnt(0)')
    pk=lambda d,x,y: a(f'v_pk_add_f32 {vr(d,2)}, {vr(x,2)}, {vr(y,2)}')
    pk(R,R,R+4); pk(R+2,R+2,R+6); pk(R+8,R+8,R+12); pk(R+10,R+10,R+14); pk(Rm,Rm,Rm+2); pk(R,R,R+8); pk(R+2,R+2,R+10); a(f'v_add_f32 v{R+4}, v{Rm}, v{Rm+1}')
    for r in range(4): a(f'v_cndmask_b32 v{R+r}, v{V_NEG}, v{R+r}, s[{S_MK+2*r}:{S_MK+2*r+1}]')
    dpps=['quad_perm:[1,0,3,2]','quad_perm:[2,3,0,1]','row_half_mirror']
    a(f'v_max3_f32 v{t}, v{R}, v{R+1}, v{R+2}'); a(f'v_max3_f32 v{t}, v{t}, v{R+3}, v{R+4}')
    for m in dpps: a(f'v_max_f32_dpp v{t}, v{t}, v{t} {m} row_mask:0xf bank_mask:0xf')
    for k in range(5): a(f'v_sub_f32 v{R+k}, v{R+k}, v{t}')
    for k in (4,0,1,2,3): a(f'v_exp_f32 v{E+k}, v{R+k}')
    a(f'v_mov_b32_dpp v{E+5}, v{E+4} quad_perm:[1,0,3,2] row_mask:0xf bank_mask:0xf')
    pk(t,E,E+2); a(f'v_add_f32 v{t}, v{t}, v{E+4}'); a(f'v_add_f32 v{t}, v{t}, v{t+1}')
    for m in dpps: a(f'v_add_f32_dpp v{t}, v{t}, v{t} {m} row_mask:0xf bank_mask:0xf')
    a(f'v_rcp_f32 v{t}, v{t}')
    for k in range(3): a(f'v_pk_mul_f32 {vr(E+2*k,2)}, {vr(E+2*k,2)}, {vr(t,2)} op_sel_hi:[1,0]')
    for k in range(3): a(f'v_cvt_pk_bf16_f32 v{t+2+k}, v{E+2*k}, v{E+2*k+1}')
    a(f'buffer_store_dwordx2 {vr(t+2,2)}, v{V_PX}, {ws}, s{S_O} offen sc1')
    a(f'buffer_store_dword v{t+4}, v{V_PM}, {ws}, s{S_T+1} offen sc1')
    a('s_waitcnt vmcnt(0)'); a('s_barrier')
    setflag(a,V_ONE,V_OOB,S_F)
    a(f's_mov_b32 s{S_S}, s{S_NX}'); a(f's_cmp_lt_u32 s{S_S}, {NSEG}'); a(f's_cbranch_scc1 {top}')
    a('s_branch L_fin')

def gen_PF(a, P):
    V_PO,V_TH,V_T,V_L,V_HS,V_HV,V_FI=1,2,3,4,5,6,7; V_D=8
    S_O=24
    S_I=28; S_R=29
    t=V_T
    def setup():
        a(f'v_lshlrev_b32 v{V_L}, 7, v0')
        a(f'v_subrev_u32 v{t}, 16, v0'); a(f'v_min_u32 v{t}, 13, v{t}'); a(f'v_lshlrev_b32 v{t}, 2, v{t}'); a(f'v_add_u32 v{t}, {RING_OFF+R_HM}, v{t}')
        a(f'v_lshlrev_b32 v{V_PO}, 2, v0'); a(f'v_add_u32 v{V_PO}, {FL_OFF}, v{V_PO}')
        a('v_cmp_gt_u32 vcc, 16, v0'); a(f'v_cndmask_b32 v{V_PO}, v{t}, v{V_PO}, vcc')
        a(f'v_mov_b32 v{t}, 256'); a(f'v_cndmask_b32 v{V_FI}, 0, v{t}, vcc')
        a(f's_lshl_b32 s{S_I}, s{S_ID}, 2'); a(f's_add_u32 s{S_I}, s{S_I}, s{S_W}')
        a(f'v_add_u32 v{t}, s{S_I}, v0'); a(f'v_min_u32 v{t}, 1, v{t}'); a(f'v_lshlrev_b32 v{t}, 30, v{t}'); a(f'v_or_b32 v{V_HS}, {R_HM+14*4}, v{t}')
        for k in range(4):
            a(f's_add_u32 s{S_T}, s{S_I}, {8*k}'); a(f's_lshr_b32 s{S_T+1}, s{S_T}, 1'); a(f's_lshl_b32 s{S_T+1}, s{S_T+1}, 15'); a(f's_and_b32 s{S_T}, s{S_T}, 1'); a(f's_lshl_b32 s{S_T}, s{S_T}, 13')
            a(f's_add_u32 s{S_T}, s{S_T}, s{S_T+1}'); a(f's_add_u32 s{S_O+k}, s{S_T}, {VX_OFF+16384}')
        a(f's_lshl_b32 s{S_T}, s{S_I}, 13'); a(f's_add_u32 s{S_T}, s{S_T}, {XA_OFF+XA_SEG-4*8192}')
        a(f's_cmp_ge_u32 s{S_I}, 4'); a(f's_cselect_b32 s{S_O+3}, s{S_T}, s{S_O+3}'); a(f's_cselect_b32 s{S_R}, {XA_SEG>>10}, {VX_SEG>>10}'.replace(f'{XA_SEG>>10}, {VX_SEG>>10}', f'32, {VX_SEG>>10}')); a(f's_lshl_b32 s{S_R}, s{S_R}, 10')
    def body(sc,tag):
        st=' sc1' if sc else ''
        AH=P['pfah']; LD=P['pfld']
        a(f'v_mov_b32 v{V_TH}, 1')
        for k in range(AH): wpoll(a,V_PO,'0',V_T,f'v{V_TH}',sleep=2); a(f'v_add_u32 v{V_PO}, v{V_PO}, v{V_FI}')
        a(f's_mov_b32 s{S_S}, 0')
        top=a.new('PFtop'); sk=a.new('sk')
        a.label(top)
        a(f's_sub_i32 s{S_T}, s{S_S}, {LD-1}'); a(f's_max_i32 s{S_T}, s{S_T}, 1'); a(f'v_mov_b32 v{V_TH}, s{S_T}'); a('v_cmp_gt_u32 vcc, 16, v0'); a(f'v_cndmask_b32 v{V_TH}, v{V_TH}, 1, vcc')
        a(f's_add_u32 s{S_T+1}, s{S_S}, {AH}'); a(f'v_mov_b32 v{V_HV}, s{S_T+1}')
        wpoll(a,V_PO,'0',V_T,f'v{V_TH}',sleep=1)
        a(f'buffer_store_dword v{V_HV}, v{V_HS}, s[{S_RING}:{S_RING+3}], 0 offen{st}')
        for k in range(P['pfn']): a(f'buffer_load_dword v{V_D+k}, v{V_L}, {ws}, s{S_O+3-k} offen sc1')
        for k in range(3): a(f's_add_u32 s{S_O+k}, s{S_O+k}, {VX_SEG}')
        a(f's_add_u32 s{S_O+3}, s{S_O+3}, s{S_R}')
        a(f's_cmp_ge_u32 s{S_T+1}, {NSEG-1}'); a(f's_cbranch_scc1 {sk}'); a(f'v_add_u32 v{V_PO}, v{V_PO}, v{V_FI}'); a.label(sk)
        a(f's_add_u32 s{S_S}, s{S_S}, 1'); a(f's_cmp_lt_u32 s{S_S}, {NSEG-1}'); a(f's_cbranch_scc1 {top}')
        a('s_branch L_fin')
    return setup, body

def gen_G(a, P):
    S_I=26; S_X0=20; S_X1=21; S_WO=27; S_F=24; S_O=22; S_THR=30; S_FLR=31; S_KB=32; S_KO=33
    V_L16,V_ONE,V_OOB,V_XO,V_T,V_T2,V_OO,V_PO,V_L = range(9)
    l=V_L; t=V_T
    a(f'v_mov_b32 v{l}, v0'); a(f'v_lshlrev_b32 v{V_L16}, 4, v{l}'); flagregs(a,V_ONE,V_OOB,l)
    lx(a,V_T2,l,t,[(4,1,0)]); a(f'v_mul_u32_u24 v{V_T2}, 14336, v{V_T2}'); lx(a,V_XO,l,t,[(5,1,8),(0,4,4)]); a(f'v_add_u32 v{V_XO}, v{V_XO}, v{V_T2}')
    lx(a,V_OO,l,t,[(4,1,14),(5,1,8),(0,4,4)])
    a(f's_lshl_b32 s{S_S}, s{S_J}, 3'); a(f's_lshl_b32 s{S_T}, s{S_W}, 1'); a(f's_add_u32 s{S_S}, s{S_S}, s{S_T}')
    a(f's_mul_i32 s{S_X0}, s{S_S}, {XF_SEG}'); a(f's_add_u32 s{S_X0}, s{S_X0}, {XF_OFF}'); a(f's_add_u32 s{S_X1}, s{S_X0}, {XF_SEG}')
    a(f's_mul_i32 s{S_WO}, s{S_ID}, {84*1024}'); a(f's_add_u32 s{S_WO}, s{S_WO}, {WQF_OFF}'); a(f's_add_u32 s{S_WO+1}, s{S_WO}, {28*1024}'); a(f's_add_u32 s{S_WO+2}, s{S_WO}, {56*1024}')
    ACC=16; BUF=112; DEP=5
    acc=lambda b,sel: ACC+48*b+16*sel
    vm=Cnt(a,'vmcnt',63)
    def ld(ks):
        r=BUF+20*(ks%DEP)
        if ks and ks%8==0: a(f's_add_u32 s{S_X0}, s{S_X0}, 4096'); a(f's_add_u32 s{S_X1}, s{S_X1}, 4096')
        if ks and ks%4==0:
            for q in range(3): a(f's_add_u32 s{S_WO+q}, s{S_WO+q}, 4096')
        L=[f'buffer_load_dwordx4 {vr(r+4*b,4)}, v{V_XO}, {ws}, s{S_X0+b} offen offset:{512*(ks%8)}' for b in range(2)]
        L+=[f'buffer_load_dwordx4 {vr(r+8+4*q,4)}, v{V_L16}, {ws}, s{S_WO+q} offen offset:{1024*(ks%4)}' for q in range(3)]
        return L
    for ks in range(DEP-1):
        for x in ld(ks): a(x); vm.issue(f'k{ks}')
    a(f'v_and_b32 v{t}, 31, v{l}'); a(f'v_cmp_eq_u32 vcc, 28, v{t}'); a(f'v_cndmask_b32 v{t}, 0, 1.0, vcc')
    for b in range(2):
        for r in range(16): a(f'v_mov_b32 v{acc(b,2)+r}, v{t}')
    for ks in range(28):
        vm.wait(f'k{ks}'); r=BUF+20*(ks%DEP)
        L=ld(ks+DEP-1) if ks+DEP-1<28 else []
        for b in range(2):
            for sel in range(3):
                d=vr(acc(b,sel),16); x=vr(r+4*b,4); w=vr(r+8+4*sel,4)
                A,B=(w,x) if sel<2 else (x,w)
                a(f'{M32} {d}, {A}, {B}, {d if (ks or sel==2) else 0}')
                if L and (b or sel): a(L.pop(0)); vm.issue(f'k{ks+DEP-1}')
    Q=112
    a(f's_lshl_b32 s{S_O}, s{S_ID}, 6'); a(f's_add_u32 s{S_O}, s{S_O}, s{S_S}'); a(f's_lshl_b32 s{S_O}, s{S_O}, 12'); a(f's_add_u32 s{S_O}, s{S_O}, {KF_OFF}')
    for b in range(2):
        for sel in (1,2):
            x=acc(b,sel)
            for r in range(8): a(f'v_cvt_pk_bf16_f32 v{x+r}, v{x+2*r}, v{x+2*r+1}')
            for f in range(2): a(f'buffer_store_dwordx4 {vr(x+4*f,4)}, v{V_L16}, {ws}, s{S_O} offen offset:{(2*(sel-1)+f)*1024} sc1')
        if b==0: a(f's_add_u32 s{S_O}, s{S_O}, 4096')
    ng=a.new('ng'); a(f's_cmp_lg_u32 s{S_ID}, 0'); a(f's_cbranch_scc1 {ng}')
    a(f's_lshl_b32 s{S_T}, s{S_S}, 7'); a(f's_add_u32 s{S_T}, s{S_T}, {G_OFF}')
    lx(a,V_T2,l,t,[(0,5,2),(5,1,30)]); a(f'v_xor_b32 v{V_T2}, 0x40000000, v{V_T2}')
    for b in range(2):
        y=BUF+20+b
        a(f'v_mul_f32 v{y}, 0xbfb8aa3b, v{acc(b,0)+12}'); a(f'v_exp_f32 v{y}, v{y}'); a(f'v_add_f32 v{y}, 1.0, v{y}'); a(f'v_rcp_f32 v{y}, v{y}'); a('s_nop 0')
        a(f'buffer_store_dword v{y}, v{V_T2}, {ws}, s{S_T} offen offset:{128*b} sc1')
    a.label(ng)
    a(f's_mov_b32 s{S_T}, 0x3e8b97f6')
    for b in range(2):
        x=acc(b,0)
        for r in range(16): a(f'v_mul_f32 v{x+r}, s{S_T}, v{x+r}')
        for r in range(8): a(f'v_cvt_pk_bf16_f32 v{Q+8*b+r}, v{x+2*r}, v{x+2*r+1}')
    a(f's_lshl_b32 s{S_O}, s{S_ID}, 8'); a(f's_add_u32 s{S_O}, s{S_O}, {FK_OFF}'); a(f's_lshl_b32 s{S_F}, s{S_J}, 2'); a(f's_add_u32 s{S_F}, s{S_F}, s{S_O}')
    a('s_waitcnt vmcnt(0)'); a('s_barrier')
    lx(a,V_PO,l,t,[(0,3,2)])
    wave0(a, lambda:(a(f'buffer_store_dword v{V_ONE}, v{V_OOB}, {ws}, s{S_F} offen sc1'), wpoll(a,V_PO,f's{S_O}',V_T,1,sleep=2)))
    a('s_barrier')
    tl(a,P,72)
    S=[16,32]; C=[48,64]; O=[80,96]; Pp=[128,136]; KV=144; NR=4
    kv=lambda i,f: vr(KV+16*(i%NR)+4*f,4)
    a(f's_lshl_b32 s{S_KO}, s{S_ID}, 18'); a(f's_add_u32 s{S_KO}, s{S_KO}, {KF_OFF}')
    kld=lambda i,f: f'buffer_load_dwordx4 {kv(i,f)}, v{V_L16}, {ws}, s{S_KO} offen offset:{1024*f} sc1'
    nxt=f's_add_u32 s{S_KO}, s{S_KO}, 4096'
    for i in range(2):
        for f in range(4): a(kld(i,f))
        a(nxt)
    for r in range(32): a(f'v_mov_b64 {vr(48+2*r,2)}, 0')
    for r in range(4): a(f'v_mov_b64 {vr(Pp[1]+2*r,2)}, 0')
    for r in range(4): a(f'v_mov_b64 {vr(KV+16*(NR-1)+8+2*r,2)}, 0')
    a(f's_mov_b32 s{S_THR}, 0xff800000'); a(f's_mov_b32 s{S_FLR}, 0xff800000'); a(f's_mov_b32 s{S_KB}, 0')
    qk=lambda b,i:[f'{M32} {vr(S[b],16)}, {kv(i,0)}, {vr(Q+8*b,4)}, {vr(C[b],16)}', f'{M32} {vr(S[b],16)}, {kv(i,1)}, {vr(Q+8*b+4,4)}, {vr(S[b],16)}']
    pv=lambda b,i:[f'{M32} {vr(O[b],16)}, {kv(i,2+f)}, {vr(Pp[b]+4*f,4)}, {vr(O[b],16)}' for f in range(2)]
    a('s_waitcnt vmcnt(4)')
    for x in qk(0,0): a(x)
    a('s_nop 15')
    top=a.new('Atop'); a.label(top); ool=[]
    def phase(b, mf, extra):
        s=S[b]; rsc=a.new('rsc'); bk=a.new('rsb')
        a(mf[0])
        a(f'v_max3_f32 v{t}, v{s}, v{s+1}, v{s+2}'); a(f'v_max3_f32 v{V_T2}, v{s+3}, v{s+4}, v{s+5}')
        a(f'v_max3_f32 v{t}, v{t}, v{s+6}, v{s+7}'); a(f'v_max3_f32 v{V_T2}, v{V_T2}, v{s+8}, v{s+9}')
        a(f'v_max3_f32 v{t}, v{t}, v{s+10}, v{s+11}'); a(f'v_max3_f32 v{V_T2}, v{V_T2}, v{s+12}, v{s+13}')
        a(mf[1])
        a(f'v_max3_f32 v{t}, v{t}, v{s+14}, v{s+15}'); a(f'v_max_f32 v{t}, v{t}, v{V_T2}')
        a(f'v_cmp_lt_f32 vcc, s{S_THR}, v{t}')
        for x in extra: a(x)
        a(f's_cbranch_vccnz {rsc}'); a.label(bk)
        for r in range(16):
            a(f'v_exp_f32 v{s+r}, v{s+r}')
            if r==1: a(mf[2])
            if r==5: a(mf[3])
            if r>=9 : a(f'v_cvt_pk_bf16_f32 v{Pp[b]+r-9}, v{s+2*(r-9)}, v{s+2*(r-9)+1}')
        a(f'v_cvt_pk_bf16_f32 v{Pp[b]+7}, v{s+14}, v{s+15}')
        def out():
            a.label(rsc)
            a(f'v_mov_b32 v{V_T2}, v{t}'); a(f'v_permlane32_swap_b32 v{t}, v{V_T2}'); a(f'v_max3_f32 v{t}, v{t}, v{V_T2}, s{S_FLR}')
            a(f'v_max_f32 v{V_T2}, 0, v{t}'); a(f'v_exp_f32 v{V_T2}, -v{V_T2}')
            for r in range(16): a(f'v_sub_f32 v{s+r}, v{s+r}, v{t}')
            for r in range(16): a(f'v_sub_f32 v{C[b]+r}, v{C[b]+r}, v{t}')
            for r in range(16): a(f'v_mul_f32 v{O[b]+r}, v{O[b]+r}, v{V_T2}')
            a(f's_branch {bk}')
        ool.append(out)
    for i in range(NR):
        phase(0, qk(1,i)+pv(1,i-1), [kld(i+2,0),kld(i+2,1)])
        a('s_waitcnt vmcnt(4)')
        phase(1, qk(0,i+1)+pv(0,i), [kld(i+2,2),kld(i+2,3),nxt])
        if i==0: a(f's_mov_b32 s{S_THR}, 0x41000000'); a(f's_mov_b32 s{S_FLR}, 0')
    a(f's_add_u32 s{S_KB}, s{S_KB}, {NR}'); a(f's_cmp_lt_u32 s{S_KB}, 64'); a(f's_cbranch_scc1 {top}')
    for x in pv(1,NR-1): a(x)
    a(f's_lshl_b32 s{S_O}, s{S_S}, 15'); a(f's_lshl_b32 s{S_T}, s{S_ID}, 10'); a(f's_add_u32 s{S_O}, s{S_O}, s{S_T}'); a(f's_add_u32 s{S_O}, s{S_O}, {OF_OFF}')
    for b in range(2):
        o=O[b]
        a(f'v_mov_b32 v{t}, v{o+12}'); a(f'v_mov_b32 v{V_T2}, v{o+12}'); a(f'v_permlane32_swap_b32 v{t}, v{V_T2}'); a(f'v_rcp_f32 v{V_T2}, v{V_T2}')
        for r in range(16): a(f'v_mul_f32 v{o+r}, v{o+r}, v{V_T2}')
        for r in range(8): a(f'v_cvt_pk_bf16_f32 v{o+r}, v{o+2*r}, v{o+2*r+1}')
        for f in range(2): a(f'buffer_store_dwordx4 {vr(o+4*f,4)}, v{V_OO}, {ws}, s{S_O} offen offset:{512*f} sc1')
        if b==0: a(f's_add_u32 s{S_O}, s{S_O}, 32768')
    a(f's_lshl_b32 s{S_F}, s{S_J}, 8'); a(f's_lshl_b32 s{S_T}, s{S_ID}, 2'); a(f's_add_u32 s{S_F}, s{S_F}, s{S_T}'); a(f's_add_u32 s{S_F}, s{S_F}, {FO_OFF}')
    a('s_waitcnt vmcnt(0)'); a('s_barrier')
    setflag(a,V_ONE,V_OOB,S_F)
    ot=a.new('Otask'); a(f's_branch {ot}')
    for o in ool: o()
    a.label(ot); tl(a,P,74)
    a(f's_cmp_ge_u32 s{S_I}, 126'); a('s_cbranch_scc1 L_fin')
    S_CG=20; S_A=21; S_B=27
    V_L4=9; V_G=10; V_CW=12; V_CR=13; V_ST=14; V_PB=15; V_C4=V_XO
    FX=16; FP=80; FM=112; FPM=128; AA=136; AB=168; G1=200
    WO=lambda n,hl: ar(16*n+4*hl,4)
    a(f's_mul_i32 s{S_S}, s{S_I}, 147'); a(f's_lshr_b32 s{S_S}, s{S_S}, 10'); a(f's_mul_i32 s{S_T}, s{S_S}, 7'); a(f's_sub_u32 s{S_CG}, s{S_I}, s{S_T}')
    a(f's_lshl_b32 s{S_T}, s{S_CG}, 16'); a(f's_lshl_b32 s{S_T+1}, s{S_W}, 12'); a(f's_add_u32 s{S_T}, s{S_T}, s{S_T+1}'); a(f's_add_u32 s{S_T}, s{S_T}, {WOF_OFF}')
    for n in range(4):
        for hl in range(4): a(f'buffer_load_dwordx4 {WO(n,hl)}, v{V_L16}, {ws}, s{S_T} offen offset:{1024*hl}')
        a(f's_add_u32 s{S_T}, s{S_T}, 16384')
    a(f'v_lshlrev_b32 v{V_L4}, 2, v{l}'); lx(a,V_C4,l,t,[(0,4,2)]); lx(a,V_PB,l,t,[(0,5,2)],64)
    a(f's_lshl_b32 s{S_T}, s{S_W}, 13'); a(f'v_add_u32 v{V_CW}, s{S_T}, v{V_L16}'); a(f's_lshl_b32 s{S_T}, s{S_W}, 11'); a(f'v_add_u32 v{V_CR}, s{S_T}, v{V_L16}')
    lx(a,V_T2,l,t,[(2,2,3),(0,2,0)]); a(f'v_mul_u32_u24 v{V_T2}, 896, v{V_T2}')
    a(f's_lshl_b32 s{S_T}, s{S_CG}, 7'); a(f's_lshl_b32 s{S_T+1}, s{S_W}, 5'); a(f's_add_u32 s{S_T}, s{S_T}, s{S_T+1}'); lx(a,V_ST,l,t,[(4,2,3)],f's{S_T}'); a(f'v_add_u32 v{V_ST}, v{V_ST}, v{V_T2}')
    top=a.new('Otop'); a.label(top)
    a(f's_lshl_b32 s{S_F}, s{S_S}, 8'); a(f's_add_u32 s{S_F}, s{S_F}, {FL_OFF}')
    a(f's_lshr_b32 s{S_O}, s{S_S}, 3'); a(f's_lshl_b32 s{S_O}, s{S_O}, 8'); a(f's_add_u32 s{S_O}, s{S_O}, {FO_OFF}')
    wave0(a, lambda:(wpoll(a,V_C4,f's{S_O}',V_T,1,sleep=4), wpoll(a,V_C4,f's{S_F}',V_T,1,sleep=4)))
    a('s_barrier')
    a(f's_lshl_b32 s{S_A}, s{S_S}, 15'); a(f's_lshl_b32 s{S_T+1}, s{S_W}, 12'); a(f's_add_u32 s{S_A}, s{S_A}, s{S_T+1}')
    def frags(dst, off):
        a(f's_add_u32 s{S_T}, s{S_A}, {off}')
        for tt in range(2):
            for hl in range(4): a(f'buffer_load_dwordx4 {vr(dst+16*tt+4*hl,4)}, v{V_L16}, {ws}, s{S_T} offen offset:{1024*hl} sc1')
            if tt==0: a(f's_add_u32 s{S_T}, s{S_T}, 16384')
    a(f's_lshl_b32 s{S_T}, s{S_S}, 7'); a(f's_add_u32 s{S_T}, s{S_T}, {G_OFF}')
    for tt in range(2): a(f'buffer_load_dword v{V_G+tt}, v{V_C4}, {ws}, s{S_T} offen offset:{64*tt} sc1')
    frags(FP,OF_OFF)
    a(f's_mul_i32 s{S_T}, s{S_S}, {VX_SEG}'); a(f's_lshl_b32 s{S_T+2}, s{S_CG}, 16'); a(f's_add_u32 s{S_B}, s{S_T}, s{S_T+2}'); a(f's_add_u32 s{S_B}, s{S_B}, s{S_T+1}'); a(f's_add_u32 s{S_T}, s{S_B}, {VX_OFF}')
    for n in range(4):
        for hl in range(4): a(f'buffer_load_dwordx4 {vr(FX+16*n+4*hl,4)}, v{V_L16}, {ws}, s{S_T} offen offset:{1024*hl} sc1')
        if n<3: a(f's_add_u32 s{S_T}, s{S_T}, 16384')
    a('s_waitcnt vmcnt(16)')
    for hl in range(4):
        for n in range(4):
            for tt in range(2):
                d=vr(AA+8*n+4*tt,4); a(f'{MF} {d}, {WO(n,hl)}, {vr(FP+16*tt+4*hl,4)}, {d if hl else 0}')
    for tt in range(2): a(f'v_sub_f32 v{G1+tt}, 1.0, v{V_G+tt}')
    for n in range(4):
        for tt in range(2):
            for r in range(4): a(f'v_mul_f32 v{AA+8*n+4*tt+r}, v{AA+8*n+4*tt+r}, v{V_G+tt}')
    wave0(a, lambda: wpoll(a,V_PB,f's{S_F}',V_T,1,sleep=1))
    a('s_barrier'); tl(a,P,70)
    frags(FP,PX_OFF)
    a(f's_lshr_b32 s{S_T}, s{S_A}, 2'); a(f's_add_u32 s{S_T}, s{S_T}, {PM_OFF}')
    for tt in range(2):
        for hl in range(4): a(f'buffer_load_dword v{FPM+4*tt+hl}, v{V_L4}, {ws}, s{S_T} offen offset:{256*hl} sc1')
        if tt==0: a(f's_add_u32 s{S_T}, s{S_T}, 4096')
    a(f's_lshr_b32 s{S_T}, s{S_B}, 2'); a(f's_add_u32 s{S_T}, s{S_T}, {VM_OFF}')
    for n in range(4):
        for hl in range(4): a(f'buffer_load_dword v{FM+4*n+hl}, v{V_L4}, {ws}, s{S_T} offen offset:{256*hl} sc1')
        if n<3: a(f's_add_u32 s{S_T}, s{S_T}, 4096')
    for tt in range(2):
        for hl in range(4):
            a(f's_waitcnt vmcnt({24+7-4*tt-hl})')
            for n in range(4):
                d=vr(AB+8*n+4*tt,4); a(f'{MF} {d}, {vr(FX+16*n+4*hl,4)}, {vr(FP+16*tt+4*hl,4)}, {d if hl else 0}')
    for n in range(4):
        a(f's_waitcnt vmcnt({12-4*n})')
        for tt in range(2):
            d=vr(AB+8*n+4*tt,4); a(f'{MF} {d}, {vr(FM+4*n,4)}, {vr(FPM+4*tt,4)}, {d}')
    for n in range(4):
        for tt in range(2):
            x=8*n+4*tt
            for r in range(4): a(f'v_fmac_f32 v{AA+x+r}, v{AB+x+r}, v{G1+tt}')
            a(f'ds_write_b128 v{V_CW}, {vr(AA+x,4)} offset:{256*x}')
    a(f's_mul_i32 s{S_O}, s{S_S}, {32*896}')
    a('s_waitcnt lgkmcnt(0)'); a('s_barrier')
    for tt in range(2):
        for w in range(4): a(f'ds_read_b128 {vr(AB+16*tt+4*w,4)}, v{V_CR} offset:{8192*w+1024*tt}')
    for tt in range(2):
        x=AB+16*tt
        a(f's_waitcnt lgkmcnt({4-4*tt})')
        for (d,p,q) in ((0,0,4),(2,2,6),(8,8,12),(10,10,14),(0,0,8),(2,2,10)): a(f'v_pk_add_f32 {vr(x+d,2)}, {vr(x+p,2)}, {vr(x+q,2)}')
        a(f'v_cvt_pk_bf16_f32 v{x}, v{x}, v{x+1}'); a(f'v_cvt_pk_bf16_f32 v{x+1}, v{x+2}, v{x+3}')
        a(f'buffer_store_dwordx2 {vr(x,2)}, v{V_ST}, s[{S_OUT}:{S_OUT+3}], s{S_O} offen offset:{4*896*tt}')
    a(f's_add_u32 s{S_S}, s{S_S}, 18'); a(f's_cmp_lt_u32 s{S_S}, {NSEG}'); a(f's_cbranch_scc1 {top}')
    a('s_branch L_fin')
```

```python
import sys
from asmlib import *
from layout import *
import chain, workers, prep
from chain import *
from workers import *
from prep import srd, kd, PREP_LDS
NAME='gated_mix__softmax_full_mha__memory_aug_recurrent_mem_tr__prompt'
MAIN=NAME+'_kernel'
MAIN_LDS=102400
S_DBG=56
def gen_main(a,P):
    nV=16*NV; nS=16*NSW
    a(MAIN+':')
    a(f'''s_cmp_ge_u32 s2, 256
s_cbranch_scc1 L_exit
s_load_dwordx2 s[36:37], s[0:1], 88
s_load_dwordx4 s[{S_DBG}:{S_DBG+3}], s[0:1], 96
s_getreg_b32 s3, hwreg(HW_REG_XCC_ID)
s_and_b32 s3, s3, 15
v_lshrrev_b32 v1, 6, v0
v_and_b32 v0, 63, v0
s_nop 0
v_readfirstlane_b32 s{S_W}, v1''')
    if P.get('tl'): a('s_memrealtime s[76:77]')
    a('s_waitcnt lgkmcnt(0)')
    srd(a,S_OUT,36,2048*896); srd(a,S_WS,S_DBG+2,WS_SIZE); srd(a,S_RING,S_DBG+2,RING_SIZE,RING_OFF)
    a(f'''s_cmp_lg_u32 s{S_W}, 0
s_cbranch_scc1 L_notick
v_mov_b32 v1, 0
v_mov_b32 v2, 1
s_mov_b64 exec, 1
s_cmp_lg_u32 s3, {P['cx']}
s_cbranch_scc1 L_wtick
global_atomic_add v3, v1, v2, s[{S_DBG}:{S_DBG+1}] sc0
s_waitcnt vmcnt(0)
v_cmp_gt_u32 vcc, 32, v3
s_cbranch_vccnz L_gottick
L_wtick:
global_atomic_add v3, v1, v2, s[{S_DBG}:{S_DBG+1}] offset:128 sc0
s_waitcnt vmcnt(0)
v_sub_u32 v4, 255, v3
v_cmp_gt_u32 vcc, 224, v3
v_add_u32 v3, 32, v3
v_cndmask_b32 v3, v4, v3, vcc
L_gottick:
ds_write_b32 v1, v3
s_waitcnt lgkmcnt(0)
s_mov_b64 exec, -1
L_notick:
s_barrier
v_mov_b32 v1, 0
ds_read_b32 v3, v1
s_waitcnt lgkmcnt(0)
v_readfirstlane_b32 s{S_G}, v3
s_barrier
s_and_b32 s{S_G}, s{S_G}, 255
s_mov_b32 s{S_RETRY}, 0
s_mov_b32 s{S_RETRY2}, 0
s_and_b32 s{S_ID}, s{S_G}, 15
s_cmp_ge_u32 s{S_G}, {32+nV+nS}
s_cbranch_scc1 L_roleG
s_cmp_ge_u32 s{S_G}, {32+nV}
s_cbranch_scc1 L_roleS
s_cmp_ge_u32 s{S_G}, 32
s_cbranch_scc1 L_roleV
s_cmp_ge_u32 s{S_G}, 30
s_cbranch_scc1 L_rolePF
s_cmp_ge_u32 s{S_G}, 16
s_cbranch_scc1 L_roleB''')
    def mode(slow, vt):
        lp=a.new('md'); fast=a.new('fast')
        a(f's_mov_b32 s{S_TO}, {WTIME}'); a(f'v_mov_b32 v{vt}, 0')
        a.label(lp)
        a(f'global_load_dword v{vt+1}, v{vt}, s[{S_DBG}:{S_DBG+1}] sc1'); a(f'global_load_dword v{vt+2}, v{vt}, s[{S_DBG}:{S_DBG+1}] offset:128 sc1'); a('s_waitcnt vmcnt(0)')
        a(f'v_cmp_le_u32 vcc, 32, v{vt+1}'); a(f's_cbranch_vccnz {fast}')
        a(f'v_cmp_lt_u32 vcc, 224, v{vt+2}'); a(f's_cbranch_vccnz {slow}')
        a(f's_sub_u32 s{S_TO}, s{S_TO}, 1'); a(f's_cbranch_scc0 {lp}'); a('s_branch L_exit')
        a.label(fast)
        if P.get('tl'): a('s_memrealtime s[72:73]')
    su,bo=gen_A(a,P); su(); mode('L_Aslow',16); bo(P.get('sc',0),'f'); a.label('L_Aslow'); bo(1,'s')
    a.label('L_roleB')
    su,bo=gen_B(a,P); su()
    a('v_lshrrev_b32 v16, 2, v0'); a('v_and_b32 v16, 63, v16'); a(f's_mov_b32 s{S_T}, {FL_OFF}'); wpoll(a,16,f's{S_T}',17,1)
    mode('L_Bslow',16); bo(P.get('sc',0),'f'); a.label('L_Bslow'); bo(1,'s')
    a.label('L_rolePF'); a(f's_and_b32 s{S_ID}, s{S_G}, 1')
    su,bo=gen_PF(a,P); su(); mode('L_Pslow',16); bo(P.get('sc',0),'f'); a.label('L_Pslow'); bo(1,'s')
    a.label('L_roleV'); a(f's_sub_u32 s{S_J}, s{S_G}, 32'); a(f's_lshr_b32 s{S_J}, s{S_J}, 4'); gen_V(a,P)
    a.label('L_roleS'); a(f's_sub_u32 s{S_J}, s{S_G}, {32+nV}'); a(f's_lshr_b32 s{S_J}, s{S_J}, 4'); gen_S(a,P)
    a.label('L_roleG'); a(f's_sub_u32 s26, s{S_G}, {32+nV+nS}'); a(f's_lshr_b32 s{S_J}, s26, 4'); gen_G(a,P)
    a.label('L_fin')
    if P.get('tl'):
        a(f'''s_memrealtime s[78:79]
s_waitcnt lgkmcnt(0)
s_lshl_b32 s{S_T}, s{S_G}, 2
s_add_u32 s{S_T}, s{S_T}, s{S_W}
s_lshl_b32 s{S_T}, s{S_T}, 5
s_add_u32 s{S_T}, s{S_T}, {DBG_OFF}
v_mov_b32 v20, s76
v_mov_b32 v21, s72
v_mov_b32 v22, s74
v_mov_b32 v23, s78
v_mov_b32 v24, s{S_RETRY}
v_mov_b32 v25, s{S_RETRY2}
v_mov_b32 v26, s3
v_mov_b32 v27, s70
v_mov_b32 v28, 0
buffer_store_dwordx4 v[20:23], v28, s[{S_WS}:{S_WS+3}], s{S_T} offen
buffer_store_dwordx4 v[24:27], v28, s[{S_WS}:{S_WS+3}], s{S_T} offen offset:16''')
    a.label('L_exit'); a('s_endpgm')

DEF=dict(chain.DEF); DEF.update(time=0,nhm=15,cx=0,pfah=2,pfld=2,pfn=4,sdelay=1,tl=0)
def full(P):
    a=Asm(); prep.gen_prep(a,P); a.lines,_=hazards(a.lines)
    b=Asm(); b.uid=10000; gen_main(b,P); b.lines,_=hazards(b.lines,verbose=P.get('verbose'))
    hdr=open('cdna_kernels/'+NAME+'.s.ref').read().split('; Override launch')[0] if P.get('hdr') else ''
    return hdr+f'''; @launch kernel=prep_kernel grid=(256,1,1) block=(512,1,1) lds={PREP_LDS}
; @launch kernel={MAIN} grid=(256,1,1) block=(256,1,1) lds={MAIN_LDS}
.amdgcn_target "amdgcn-amd-amdhsa--gfx950"
.text
.globl prep_kernel
.p2align 8
.type prep_kernel,@function
'''+a.text()+f'''.globl {MAIN}
.p2align 8
.type {MAIN},@function
'''+b.text()+'.section .rodata,"a"\n'+kd('prep_kernel',168,168)+kd(MAIN,512,256)
if __name__=='__main__':
    P=dict(DEF); P.update(eval('dict(%s)'%(sys.argv[2] if len(sys.argv)>2 else ''))); P['hdr']=1
    open(sys.argv[1] if len(sys.argv)>1 else 'full.s','w').write(full(P))
```

```python
from asmlib import *
from layout import *

class Cnt:
    def __init__(self, a, name, mx): self.a=a; self.name=name; self.q=[]; self.mx=mx
    def issue(self, tag): self.q.append(tag)
    def wait(self, tag):
        idx = max(i for i,t in enumerate(self.q) if t==tag) if tag in self.q else None
        if idx is None: return
        n = len(self.q)-1-idx
        assert n <= self.mx, (self.name, n)
        self.a(f's_waitcnt {self.name}({n})')
        self.q = self.q[idx+1:]
    def all(self):
        self.a(f's_waitcnt {self.name}(0)'); self.q=[]
    def reset(self): self.q=[]

SMF='v_smfmac_f32_16x16x64_bf16'
MF='v_mfma_f32_16x16x32_bf16'
MFH='v_mfma_f32_16x16x16_bf16'
S_RING=4; S_X=8; S_WS=12
S_ID=16; S_W=17; S_S=18; S_CUR=19; S_NXT=20; S_OLD=21; S_EXP=22; S_TO=23; S_CH=24
S_T=34
S_RETRY=42; S_RETRY2=43; S_BOUND=44; S_XO=45; S_G=46;S_G2=47
S_ST=84
TIMEOUT=200000

def poll_ld(a, voff, soff, tmp, i):
    a(f'buffer_load_dword v{tmp+i}, v{voff}, s[{S_RING}:{S_RING+3}], 0 offen sc1')
def poll(a, voff, soff, tmp, D, abort, gap=4, pre=True, sexp=None):
    lp=a.new('poll'); dn=a.new('polld')
    a(f's_mov_b32 s{S_TO}, {TIMEOUT}')
    for i in range(D):
        if not pre: break
        poll_ld(a,voff,soff,tmp,i)
        if i<D-1: a(f's_nop {gap}')
    a.label(lp)
    for i in range(D):
        a(f's_waitcnt vmcnt({D-1})')
        a(f'v_cmp_gt_u32 vcc, s{sexp or S_EXP}, v{tmp+i}')
        poll_ld(a,voff,soff,tmp,i)
        if i==D-1: a(f's_sub_u32 s{S_TO}, s{S_TO}, 1')
        a(f's_cbranch_vccz {dn}')
    a(f's_cbranch_scc0 {lp}')
    a(f's_branch {abort}')
    a.label(dn)

S_MC=48; S_MN=49; S_MA=50
def slots(a):
    a(f's_lshl_b32 s{S_MC}, s{S_S}, 13'); a(f's_add_u32 s{S_MC}, s{S_MC}, {R_M}'); a(f's_add_u32 s{S_MN}, s{S_MC}, 8192'); a(f's_add_u32 s{S_MA}, s{S_MC}, {3*8192}')
    a(f's_and_b32 s{S_T}, s{S_S}, 3'); a(f's_lshl_b32 s{S_CUR}, s{S_T}, 15')
    a(f's_add_u32 s{S_EXP}, s{S_S}, 1')
    a(f's_add_u32 s{S_T}, s{S_S}, 3'); a(f's_and_b32 s{S_T}, s{S_T}, 3'); a(f's_lshl_b32 s{S_OLD}, s{S_T}, 15')

def stamp(a, P, i):
    if P.get('stamps'): a(f's_memtime s[{S_ST+2*i}:{S_ST+2*i+1}]')

def dump_stamps(a, P, n, vt):
    if not P.get('stamps'): return
    a(f's_memtime s[72:73]'); a(f's_memrealtime s[74:75]')
    a('s_waitcnt lgkmcnt(0)')
    a(f'v_writelane_b32 v{vt}, s72, 8'); a(f'v_writelane_b32 v{vt}, s74, 9')
    a(f's_lshl_b32 s{S_T}, s{S_G}, 2'); a(f's_add_u32 s{S_T}, s{S_T}, s{S_W}'); a(f's_lshl_b32 s{S_T}, s{S_T}, 6'); a(f's_add_u32 s{S_T}, s{S_T}, s{S_S}'); a(f's_lshl_b32 s{S_T}, s{S_T}, 6')
    a(f's_add_u32 s{S_T}, s{S_T}, {DBG_OFF+65536}')
    for i in range(n): a(f'v_writelane_b32 v{vt}, s{S_ST+2*i}, {i}')
    a(f'v_lshrrev_b32 v{vt+1}, 2, v0')
    a('s_mov_b64 exec, 0x3ff')
    a(f'buffer_store_dword v{vt}, v{vt+1}, s[{S_WS}:{S_WS+3}], s{S_T} offen')
    a('s_mov_b64 exec, -1')

def wreg(f, nag, vbase):
    return ('a', 8*f) if f<nag else ('v', vbase+8*(f-nag))


def lx(a, dst, lane, tmp, terms, add=None):
    first=True
    for lo,n,sh in terms:
        a(f'v_bfe_u32 v{tmp}, v{lane}, {lo}, {n}')
        if first: a(f'v_lshlrev_b32 v{dst}, {sh}, v{tmp}')
        else: a(f'v_lshl_add_u32 v{dst}, v{tmp}, {sh}, v{dst}')
        first=False
    if add is not None:
        for x in (add if isinstance(add,list) else [add]):
            if x!=0: a(f'v_add_u32 v{dst}, {x}, v{dst}')
def mkidx(a, dst, lane, tmp):
    a(f'v_bfe_u32 v{tmp}, v{lane}, 1, 1'); a(f'v_mov_b32 v{dst}, 0xaaaa'); a(f'v_mul_u32_u24 v{dst}, v{dst}, v{tmp}'); a(f'v_add_u32 v{dst}, 0x4444, v{dst}')
def modadd(a, dst, src, i, m, t):
    a(f's_add_u32 s{dst}, s{src}, {i}'); a(f's_cmp_ge_u32 s{dst}, {m}'); a(f's_cselect_b32 s{t}, {m}, 0'); a(f's_sub_u32 s{dst}, s{dst}, s{t}')

def gen_A(a, P):
    V_L16,V_IDX,V_QW,V_QW6,V_QR,V_KA,V_SXW,V_SMW,V_PX,V_PM,V_HP,V_MA,V_HV,V_SXR,V_SMR = range(15)
    V_M=16; V_ACC=44; V_XO=72; V_MK=104; V_WV=120
    V_T=V_MK; V_KA2=V_SXR; assert P['sm']==1
    V_S=V_M; Q=[V_ACC+4, V_ACC+12]
    L_Q=0; L_SX=8192; L_SM=12288; L_X=16384
    S_FLAG=S_CH+8; S_XN=S_CH+9; V_XL=15; ND=P['xdma']
    abort='L_exit'; NS=P['sm']
    PW=2
    W=lambda n,i: vr(wreg(n*7+i,32,V_WV)[1],8,wreg(n*7+i,32,V_WV)[0])
    ring=f's[{S_RING}:{S_RING+3}]'; ws=f's[{S_WS}:{S_WS+3}]'
    def setup():
        l=V_M; t=V_M+1; u=V_M+2
        a(f'v_mov_b32 v{l}, v0')
        a(f'v_lshlrev_b32 v{V_L16}, 4, v{l}')
        mkidx(a,V_IDX,l,t)
        a(f's_lshl_b32 s{S_T}, s{S_W}, 11')
        lx(a,u,l,t,[(2,2,0),(4,2,0)]); a(f'v_and_b32 v{u}, 3, v{u}'); lx(a,V_QW,l,t,[(0,4,5)],f's{S_T}'); a(f'v_lshl_add_u32 v{V_QW}, v{u}, 3, v{V_QW}')
        lx(a,u,l,t,[(3,1,0),(4,2,0)]); a(f'v_and_b32 v{u}, 3, v{u}'); lx(a,V_QW6,l,t,[(3,1,7),(2,1,6),(0,1,5),(1,1,2)],f's{S_T}'); a(f'v_lshl_add_u32 v{V_QW6}, v{u}, 3, v{V_QW6}')
        lx(a,u,l,t,[(0,2,0),(4,2,0)]); a(f'v_and_b32 v{u}, 3, v{u}'); lx(a,V_QR,l,t,[(2,4,5)],f's{S_T}'); a(f'v_lshl_add_u32 v{V_QR}, v{u}, 3, v{V_QR}')
        lx(a,u,l,t,[(0,6,2)],[f's{S_T}',1536+256]); a(f'v_mov_b32 v{t}, 0'); a(f'ds_write_b32 v{u}, v{t}')
        a(f's_mul_i32 s{S_T+1}, s{S_W}, {7*256}'); lx(a,V_KA,l,t,[(4,1,9),(5,1,5),(1,2,6),(0,1,4)],f's{S_T+1}'); lx(a,V_KA2,l,t,[(5,1,5),(1,2,6),(0,1,4)],f's{S_T+1}')
        a(f's_lshl_b32 s{S_T+1}, s{S_W}, 10'); lx(a,V_SXW,l,t,[(4,2,8),(0,4,3)],[f's{S_T+1}',L_SX])
        a(f's_lshl_b32 s{S_T+1}, s{S_W}, 2'); lx(a,V_SMW,l,t,[(0,6,4)],[f's{S_T+1}',L_SM])
        a(f's_lshl_b32 s{S_T+1}, s{S_ID}, 9')
        a(f's_lshr_b32 s{S_T+3}, s{S_ID}, 1'); a(f's_lshl_b32 s{S_T+3}, s{S_T+3}, 8'); a(f's_and_b32 s{S_T+2}, s{S_ID}, 1'); a(f's_lshl_b32 s{S_T+2}, s{S_T+2}, 3')
        a(f's_add_u32 s{S_T+3}, s{S_T+3}, s{S_T+2}')
        if NS==1:
            lx(a,V_PX,l,t,[(2,1,8),(4,2,6),(1,1,5),(3,1,4),(0,1,3)],[f's{S_T+1}',R_P])
            lx(a,V_PM,l,t,[(1,2,6),(4,2,4),(3,1,2),(0,1,30)],[f's{S_T+3}',R_P+8192])
        else:
            a(f's_and_b32 s{S_T+2}, s{S_W}, 1')
            a(f's_lshl_b32 s{S_T+4}, s{S_T+2}, 7'); lx(a,V_PX,l,t,[(3,1,8),(5,1,6),(2,1,5),(4,1,4),(0,2,2)],[f's{S_T+1}',f's{S_T+4}',R_P])
            a(f's_lshl_b32 s{S_T+4}, s{S_T+2}, 5'); lx(a,V_PM,l,t,[(1,2,6),(5,1,4),(4,1,2),(0,1,30),(3,1,29)],[f's{S_T+3}',f's{S_T+4}',R_P+8192])
            a(f's_lshl_b32 s{S_T+4}, s{S_T+2}, 9'); lx(a,V_SXR,l,t,[(0,6,3)],[f's{S_T+4}',L_SX]); lx(a,V_SMR,l,t,[(4,2,7),(0,3,4)],[f's{S_T+4}',L_SM])
        a(f's_lshl_b32 s{S_T+1}, s{S_ID}, 2'); a(f's_add_u32 s{S_T+1}, s{S_T+1}, {R_HP}')
        a(f'v_add_u32 v{t}, s{S_W}, v{l}'); a(f'v_min_u32 v{t}, 1, v{t}'); a(f'v_lshlrev_b32 v{t}, 30, v{t}'); a(f'v_or_b32 v{V_HP}, s{S_T+1}, v{t}')
        sk=a.new('sk'); a(f's_cmp_lg_u32 s{S_W}, {PW}'); a(f's_cbranch_scc1 {sk}')
        a(f'v_min_u32 v{V_HP}, {P["nhm"]-1}, v{l}'); a(f'v_lshlrev_b32 v{V_HP}, 2, v{V_HP}'); a(f'v_add_u32 v{V_HP}, {R_HM}, v{V_HP}')
        a.label(sk)
        a(f's_mov_b32 s{S_BOUND}, 0x42700000')
        a(f's_lshl_b32 s{S_T+1}, s{S_W}, 12'); a(f's_add_u32 m0, s{S_T+1}, {L_X}'); a(f'v_add_u32 v{V_XL}, m0, v{V_L16}')
        a(f's_lshl_b32 s{S_G2}, s{S_W}, 1'); a(f's_add_u32 s{S_G2}, s{S_G2}, s{S_ID}'); a(f's_mul_i32 s{S_T+1}, s{S_G2}, 37'); a(f's_lshr_b32 s{S_T+1}, s{S_T+1}, 8')
        a(f's_mul_i32 s{S_T+1}, s{S_T+1}, 7'); a(f's_sub_u32 s{S_G2}, s{S_G2}, s{S_T+1}')
        a(f's_mul_i32 s{S_T}, s{S_ID}, {WMAT}'); a(f's_mul_i32 s{S_T+1}, s{S_W}, {7*KK*1024}'); a(f's_add_u32 s{S_T}, s{S_T}, s{S_T+1}')
        if WA_OFF: a(f's_add_u32 s{S_T}, s{S_T}, {WA_OFF}')
        for i in range(7):
            modadd(a,S_T+1,S_G2,i,7,S_T+2)
            a(f's_lshl_b32 s{S_CH+i}, s{S_T+1}, 10')
            a(f's_lshl_b32 s{S_T+1}, s{S_T+1}, 11'); a(f's_add_u32 s{S_T+1}, s{S_T+1}, s{S_T}')
            for n in range(7):
                f,r=wreg(n*7+i,32,V_WV)
                a(f'buffer_load_dwordx4 {vr(r,4,f)}, v{V_L16}, {ws}, s{S_T+1} offen sc1')
                a(f'buffer_load_dwordx4 {vr(r+4,4,f)}, v{V_L16}, {ws}, s{S_T+1} offen offset:1024 sc1')
                if n<6: a(f's_add_u32 s{S_T+1}, s{S_T+1}, {KK*1024}')
    def xloads(k0=0,first=False):
        a(f's_add_u32 s{S_T}, s{S_XO}, 4096')
        for k in range(k0,8 if first else P.get('xn',8)):
            a(f'buffer_load_dwordx4 {vr(V_XO+4*k,4)}, v{V_L16}, {ws}, s{S_XO if k<4 else S_T} offen offset:{1024*(k%4)} sc1')
        if k0:
            a(f's_waitcnt vmcnt({P.get("xn",8)-k0})')
            for k in range(k0): a(f'ds_read_b128 {vr(V_XO+4*k,4)}, v{V_XL} offset:{1024*k}')
    def body(sc,tag):
        st = ' sc1' if sc else ''
        vm=Cnt(a,'vmcnt',63); lg=Cnt(a,'lgkmcnt',15)
        top=f'A_top_{tag}'; ool=[]
        a(f's_mov_b32 s{S_S}, 0'); a(f's_lshl_b32 s{S_XO}, s{S_W}, 13'); a(f's_add_u32 s{S_XO}, s{S_XO}, {XA_OFF}'); xloads(0,True); a('s_waitcnt vmcnt(0)')
        a.label(top)
        slots(a)
        a(f'v_add_u32 v{V_MA}, s{S_MC}, v{V_L16}'); a(f'v_mov_b32 v{V_HV}, s{S_EXP}'); a(f's_mov_b32 s{S_FLAG}, 0')
        a(f's_add_u32 s{S_XO}, s{S_XO}, {P["xastride"]}'); a('s_waitcnt lgkmcnt(0)')
        np_=a.new('Anp')
        a(f's_cmp_lg_u32 s{S_W}, {PW}'); a(f's_cbranch_scc1 {np_}')
        poll(a, V_HP, S_CUR, V_MK, P['pollD'], abort)
        a.label(np_)
        a('s_barrier')
        stamp(a,P,0)
        rs=a.new('Arestart'); a.label(rs)
        ldt=lambda i: f'buffer_load_dwordx4 {vr(V_M+4*i,4)}, v{V_MA}, {ring}, s{S_CH+i} offen sc1'
        ld=lambda i: (a(ldt(i)), vm.issue(f'c{i}'))
        chk=lambda i: f'v_cmp_eq_u32 vcc, -1, v{V_M+4*i}'
        I=lambda s:(lambda: a(s))
        Z=lambda r: I(f'v_mov_b64 {vr(r,2)}, 0')
        def retry(i):
            r=a.new('Aretry'); b=a.new('Aback')
            def out():
                a.label(r); a(f's_add_u32 s{S_RETRY2}, s{S_RETRY2}, 1'); a(f's_mov_b32 s{S_TO}, {TIMEOUT}')
                l=a.new('l'); a.label(l)
                a(ldt(i)); a('s_waitcnt vmcnt(0)'); a(chk(i))
                a(f's_cbranch_vccz {b}'); a(f's_sub_u32 s{S_TO}, s{S_TO}, 1'); a(f's_cbranch_scc0 {l}'); a(f's_branch {abort}')
            ool.append(out)
            return lambda: (a(f's_cbranch_vccnz {r}'), a.label(b))
        def restart():
            r=a.new('Ars')
            def out():
                a.label(r); a(f's_add_u32 s{S_RETRY}, s{S_RETRY}, 1'); a('s_waitcnt vmcnt(0)')
                a(f's_cmp_lt_u32 s{S_RETRY}, {TIMEOUT}'); a(f's_cbranch_scc1 {rs}'); a(f's_branch {abort}')
            ool.append(out)
            return lambda: a(f's_cbranch_vccnz {r}')
        def mk(k): return lambda:(a(f'buffer_load_dwordx4 {vr(V_MK+4*k,4)}, v{V_KA if k<3 else V_KA2}, {ring}, s{S_MC} offen offset:{(4*(k//2)+k%2)*256} sc1'), vm.issue('mk'))
        F={}
        def at(g,*fs): F.setdefault(g,[]).extend(fs)
        def check_at(g,i,fin):
            at(g, lambda: vm.wait(f'c{i}'), I(chk(i))); at(g+2,fin)
        zn=P['zsplit']; wide=sum(zn)==14; z=iter(range(28))
        for i in range(len(zn)):
            ld(i)
            for _ in range(zn[i]):
                if wide: Z(V_ACC+2*next(z))()
                else: a(f'v_mov_b32 v{V_ACC+next(z)}, 0')
        check_at(0,0,restart())
        gl=iter(P['gl'])
        for i in range(len(zn),7): at(next(gl),(lambda i=i: ld(i)))
        for k in range(4): at(next(gl),mk(k))
        for k in range(ND): at(next(gl),(lambda k=k:(a(f'buffer_load_dwordx4 v{V_L16}, {ws}, s{S_XO} offen offset:{1024*k} sc1 lds'), vm.issue('xd'))))
        check_at(4,1,retry(1)); check_at(10,2,retry(2)); check_at(16,3,retry(3))
        at(8,Z(V_S)); at(11,Z(V_S+2)); at(15,Z(V_S+4)); at(19,Z(V_S+6)); at(22,Z(V_S+8)); at(23,Z(V_S+10))
        check_at(24,4,retry(4))
        at(27,lambda: vm.wait('c5')); at(28,lambda: vm.wait('c6'))
        adds=lambda n:[f'v_add_f32 v{V_ACC+4*n}, v{V_ACC+4*n}, v{V_ACC+4*n+2}', f'v_add_f32 v{V_ACC+4*n+1}, v{V_ACC+4*n+1}, v{V_ACC+4*n+3}']
        cvt=lambda n: f'v_cvt_pk_bf16_f32 v{V_ACC+4*(n&~1)+2+(n&1)}, v{V_ACC+4*n}, v{V_ACC+4*n+1}'
        dw=lambda p:(lambda:(a(f'ds_write_b64 v{V_QW}, {vr(V_ACC+8*p+2,2)} offset:{512*p}'), lg.issue(f'qw{p}')))
        dr=lambda p:(lambda:(a(f'ds_read_b64_tr_b16 {vr(Q[p//2]+2*(p%2),2)}, v{V_QR} offset:{512*p}'), lg.issue(f'q{p}')))
        for n in range(6):
            L=29+3*n
            if n==0: at(L+2,I(adds(n)[0])); at(L+3,I(adds(n)[1])); at(L+4,I(cvt(n)))
            else: at(L+2,I(adds(n)[0]),I(adds(n)[1])); at(L+3,I(cvt(n)))
            if n%2: at(L+4,dw(n//2))
            if n in (1,3): at(L+7,dr(n//2))
        seq=[(n,i) for i in range(3) for n in range(7)]+[(n,3) for n in range(6)]+[(n,i) for n in range(6) for i in range(4,7)]+[(6,i) for i in range(3,7)]
        vm.wait('c0'); stamp(a,P,1)
        for g,(n,i) in enumerate(seq):
            a(f'{SMF} {vr(V_ACC+4*n,4)}, {vr(V_M+4*i,4)}, {W(n,i)}, v{V_IDX}')
            if g==48: stamp(a,P,2)
            for f in F.pop(g,[]): f()
        assert not F, F
        bop=lambda kt,ks: vr((V_XO+16*kt if kt<2 else V_MK)+8*ks,8)
        a2=lambda kt,ks: a(f'{SMF} {vr(V_S+4*kt,4)}, {vr(Q[ks],4)}, {bop(kt,ks)}, v{V_IDX}')
        lg.wait('q1'); a2(1,0); dr(2)()
        for x in adds(6): a(x)
        a(cvt(6)); a(f'ds_write_b32 v{V_QW6}, v{V_ACC+26} offset:1536'); lg.issue('qw3'); dr(3)()
        vm.wait('mk')
        a2(0,0); a2(2,0)
        lg.wait('q3')
        for kt in (2,0,1): a2(kt,1)
        Tm=V_S+8
        nan=a.new('Anan'); nb=a.new('Ananb')
        T=V_ACC+20
        idp='quad_perm:[0,1,2,3] row_mask:0xf'
        a(f'v_add_f32_dpp v{T+4}, v{Tm}, v{Tm+2} {idp} bank_mask:0x3');
        a(f'v_add_f32 v{T}, v{V_S}, v{V_S+2}'); a(f'v_add_f32 v{T+2}, v{V_S+1}, v{V_S+3}')
        a(f'v_add_f32_dpp v{T+4}, v{Tm+1}, v{Tm+3} {idp} bank_mask:0xc')
        if P['wsplit']: a(f'ds_write_b32 v{V_SMW}, v{T+4}')
        a(f'v_add_f32 v{T+1}, v{V_S+4}, v{V_S+6}'); a(f'v_add_f32 v{T+3}, v{V_S+5}, v{V_S+7}')
        a(f'ds_write2_b64 v{V_SXW}, {vr(T,2)}, {vr(T+2,2)} offset0:0 offset1:16')
        if not P['wsplit']: a(f'ds_write_b32 v{V_SMW}, v{T+4}')
        a(f'v_cmp_u_f32 vcc, v{T+4}, v{T+4}')
        stamp(a,P,3)
        oth=a.new('Aoth'); jn=a.new('Ajoin')
        a(f's_cmp_ge_u32 s{S_W}, {NS}')
        a(f's_cbranch_vccnz {nan}'); a.label(nb)
        def onan():
            a.label(nan); ok=a.new('ok'); a(f's_cmp_eq_u32 s{S_FLAG}, 0'); a(f's_cbranch_scc1 {ok}'); a(f's_cmp_ge_u32 s{S_W}, {NS}'); a(f's_branch {nb}')
            a.label(ok); a(f's_mov_b32 s{S_FLAG}, 1')
            a(f's_add_u32 s{S_RETRY2}, s{S_RETRY2}, 0x10000'); a(f's_mov_b32 s{S_TO}, {TIMEOUT}'); a('s_waitcnt lgkmcnt(0)')
            l=a.new('l'); a.label(l)
            for i in range(7): a(ldt(i))
            a('s_waitcnt vmcnt(0)')
            a(f'v_max_u32 v{V_T}, v{V_M}, v{V_M+1}')
            for k in range(1,14): a(f'v_max3_u32 v{V_T}, v{V_T}, v{V_M+2*k}, v{V_M+2*k+1}')
            a(f'v_cmp_eq_u32 vcc, -1, v{V_T}'); a(f's_cbranch_vccz {rs}'); a(f's_sub_u32 s{S_TO}, s{S_TO}, 1'); a(f's_cbranch_scc0 {l}'); a(f's_branch {abort}')
        ool.append(onan)
        a(f's_cbranch_scc1 {oth}')
        R=V_M; Rm=V_M+16; E=V_M+20; t=V_MK; u=t+6
        slow=a.new('Aslow'); back=a.new('Asback')
        pk=lambda d,x,y: f'v_pk_add_f32 {vr(d,2)}, {vr(x,2)}, {vr(y,2)}'
        dpps=['quad_perm:[1,0,3,2]','quad_perm:[2,3,0,1]','row_half_mirror','row_mirror'][:2+NS]
        dpp=lambda m,op='add': f'v_{op}_f32_dpp v{t}, v{t}, v{t} {m} row_mask:0xf bank_mask:0xf'
        mul=lambda x: f'v_pk_mul_f32 {vr(x,2)}, {vr(x,2)}, {vr(t,2)} op_sel_hi:[1,0] clamp'
        L=['s_waitcnt lgkmcnt(0)','s_barrier']
        nx=4//NS; Em=E+nx
        mvd=f'v_mov_b32_dpp v{Em+1}, v{Em} quad_perm:[1,0,3,2] row_mask:0xf bank_mask:0xf'
        if NS==1:
            L.append(f'ds_read_b128 {vr(Rm,4)}, v{V_L16} offset:{L_SM}')
            for w in range(4): L.append(f'ds_read_b128 {vr(R+4*w,4)}, v{V_L16} offset:{L_SX+1024*w}')
            L+=['s_waitcnt lgkmcnt(4)', pk(Rm,Rm,Rm+2), f'v_add_f32 v{Rm}, v{Rm}, v{Rm+1}', f'v_exp_f32 v{Em}, v{Rm}','s_waitcnt lgkmcnt(2)', pk(R,R,R+4), pk(R+2,R+2,R+6), 's_waitcnt lgkmcnt(1)', pk(R,R,R+8), pk(R+2,R+2,R+10),
                's_waitcnt lgkmcnt(0)', pk(R,R,R+12), pk(R+2,R+2,R+14)]
            L+=[f'v_exp_f32 v{E+k}, v{R+k}' for k in range(4)]
            sm=[f'v_add_f32 v{t}, v{Em}, v{E}', f'v_add_f32 v{t+1}, v{E+1}, v{E+2}', f'v_add_f32 v{t}, v{t}, v{E+3}', f'v_add_f32 v{t}, v{t}, v{t+1}']
            L+=sm+[f'v_max3_f32 v{u}, abs(v{R}), abs(v{R+1}), abs(v{R+2})', f'v_max3_f32 v{u}, v{u}, abs(v{R+3}), abs(v{Rm})', dpp(dpps[0]),
                f'v_cmp_nge_f32 vcc, s{S_BOUND}, v{u}', mvd, dpp(dpps[1]), dpp(dpps[2])]
            L+=[f'v_rcp_f32 v{t}, v{t}', f's_cbranch_vccnz {slow}', f'{back}:', mul(E), mul(E+2), mul(E+4),
                f'v_cvt_pk_bf16_f32 v{t+2}, v{E}, v{E+1}', f'v_cvt_pk_bf16_f32 v{t+3}, v{E+2}, v{E+3}', f'v_cvt_pk_bf16_f32 v{t+5}, v{E+4}, v{E+5}',
                f'buffer_store_dwordx2 {vr(t+2,2)}, v{V_PX}, {ring}, s{S_CUR} offen{st}', f'buffer_store_dword v{t+5}, v{V_PM}, {ring}, s{S_CUR} offen{st}']
        else:
            L.append(f'ds_read_b128 {vr(Rm,4)}, v{V_SMR}')
            for w in range(4): L.append(f'ds_read_b64 {vr(R+2*w,2)}, v{V_SXR} offset:{1024*w}')
            sm=[f'v_fma_f32 v{t}, v{Em}, 0.5, v{E}', f'v_add_f32 v{t}, v{t}, v{E+1}']
            L+=['s_waitcnt lgkmcnt(4)', pk(Rm,Rm,Rm+2), f'v_add_f32 v{Rm}, v{Rm}, v{Rm+1}', f'v_exp_f32 v{Em}, v{Rm}','s_waitcnt lgkmcnt(2)', pk(R,R,R+2), 's_waitcnt lgkmcnt(0)', pk(R+4,R+4,R+6), pk(R,R,R+4),
                f'v_exp_f32 v{E}, v{R}', f'v_exp_f32 v{E+1}, v{R+1}']+sm+[
                f'v_max3_f32 v{u}, abs(v{R}), abs(v{R+1}), abs(v{Rm})', f'v_cmp_nge_f32 vcc, s{S_BOUND}, v{u}', dpp(dpps[0]), mvd, dpp(dpps[1]), dpp(dpps[2]), dpp(dpps[3]),
                f'v_rcp_f32 v{t}, v{t}', f's_cbranch_vccnz {slow}', f'{back}:', mul(E), mul(E+2),
                f'v_cvt_pk_bf16_f32 v{t+2}, v{E}, v{E+1}', f'v_cvt_pk_bf16_f32 v{t+3}, v{E+2}, v{E+3}',
                f'buffer_store_dword v{t+2}, v{V_PX}, {ring}, s{S_CUR} offen{st}', f'buffer_store_dword v{t+3}, v{V_PM}, {ring}, s{S_CUR} offen{st}']
        L.insert(P['hintP'], f'buffer_store_dword v{V_HV}, v{V_HP}, {ring}, 0 offen{st}')
        for x in L:
            a(x)
            if f'v{V_HV}, v{V_HP}' in x: stamp(a,P,5)
        stamp(a,P,4)
        a(f's_branch {jn}')
        a.label(oth)
        a('s_waitcnt lgkmcnt(0)'); a('s_barrier'); stamp(a,P,4)
        for _ in range(P.get('warm',0)): a(f'v_mov_b32 v{t+2}, 0')
        if NS==1: a(f's_cmp_lg_u32 s{S_W}, 3'); a(f's_cbranch_scc1 {jn}')
        a(f'v_mov_b64 {vr(t,2)}, -1')
        a(f'buffer_store_dword{"x2" if NS==1 else ""} {vr(t,2 if NS==1 else 1)}, v{V_PX}, {ring}, s{S_OLD} offen{st}')
        a(f'buffer_store_dword v{t}, v{V_PM}, {ring}, s{S_OLD} offen{st}')
        a.label(jn)
        a('s_barrier')
        xloads(ND)
        dump_stamps(a,P,6,V_T+8)
        if P.get('time'):
            sk=a.new('sk'); a(f's_cmp_lg_u32 s{S_S}, 7'); a(f's_cbranch_scc1 {sk}'); a('s_memtime s[80:81]'); a('s_memrealtime s[76:77]'); a.label(sk)
        a(f's_add_u32 s{S_S}, s{S_S}, 1'); a(f's_cmp_lt_u32 s{S_S}, {NSEG-1}'); a(f's_cbranch_scc1 {top}')
        a('s_branch L_fin')
        a.label(slow)
        if NS==1: a(f'v_max3_f32 v{t}, v{R}, v{R+1}, v{R+2}'); a(f'v_max3_f32 v{t}, v{t}, v{R+3}, v{Rm}')
        else: a(f'v_max3_f32 v{t}, v{R}, v{R+1}, v{Rm}')
        for m in dpps: a(dpp(m,'max'))
        for k in range(nx): a(f'v_sub_f32 v{R+k}, v{R+k}, v{t}')
        a(f'v_sub_f32 v{Rm}, v{Rm}, v{t}')
        a(f'v_exp_f32 v{Em}, v{Rm}')
        for k in range(nx): a(f'v_exp_f32 v{E+k}, v{R+k}')
        for x in sm: a(x)
        a(mvd)
        for m in dpps: a(dpp(m))
        a(f'v_rcp_f32 v{t}, v{t}'); a('s_nop 0'); a(f's_branch {back}')
        for o in ool: o()
    return setup, body

SMH='v_smfmac_f32_16x16x32_bf16'
def gen_B(a, P):
    V_L16,V_IDX,V_LW,V_MS,V_HP,V_HS,V_LM,V_PA,V_PMA,V_XA,V_HV,V_CW,V_CR,V_O,V_CR2 = range(15)
    V_T=15
    V_VX=16; V_ACC=48; V_MB=80; V_WB=88; V_WV=112
    V_VM=88; V_P=96; V_D=80; V_R=68; V_PL=106; V_HQ=111
    NL=6; L_M=0; L_C=8192; L_W=16384
    S_FLAG=60; S_M2=61; S_MGO=62; S_X2=63
    abort='L_exit'
    ring=f's[{S_RING}:{S_RING+3}]'; ws=f's[{S_WS}:{S_WS+3}]'
    seq=[(i,t) for t in range(7) for i in range(8)]
    ldsidx=[9,18,27,36,45,54]
    resid=[k for k in range(56) if k not in ldsidx]
    CP=8*0+544
    def setup():
        l=V_VX; t=V_VX+1; u=V_VX+2
        a(f'v_mov_b32 v{l}, v0'); a(f'v_lshlrev_b32 v{V_L16}, 4, v{l}')
        mkidx(a,V_IDX,l,t)
        a(f's_mul_i32 s{S_T}, s{S_W}, {NL*2048}'); a(f's_add_u32 s{S_T}, s{S_T}, {L_W}'); a(f'v_add_u32 v{V_LW}, s{S_T}, v{V_L16}')
        a(f's_lshl_b32 s{S_T+2}, s{S_W}, 10'); a(f'v_add_u32 v{V_LM}, s{S_T+2}, v{V_L16}')
        a(f's_lshl_b32 s{S_T+1}, s{S_ID}, 1'); a(f's_add_u32 s{S_T+2}, s{S_T+1}, s{S_W}'); a(f's_lshl_b32 s{S_T+2}, s{S_T+2}, 8'); lx(a,V_MS,l,t,[(0,6,2)],f's{S_T+2}')
        lx(a,V_HP,l,t,[(0,4,2)],R_HP)
        a(f's_cmp_eq_u32 s{S_W}, 3'); a(f's_cselect_b32 s{S_T+2}, 0, 0x40000000'); a(f'v_or_b32 v{V_HQ}, s{S_T+2}, v{V_HP}')
        sk=a.new('sk'); a(f's_cmp_lg_u32 s{S_W}, 2'); a(f's_cbranch_scc1 {sk}')
        a(f'v_min_u32 v{V_HP}, 13, v{l}'); a(f'v_lshlrev_b32 v{V_HP}, 2, v{V_HP}'); a(f'v_add_u32 v{V_HP}, {R_HM}, v{V_HP}')
        a.label(sk)
        a(f's_lshl_b32 s{S_T+2}, s{S_ID}, 2'); a(f's_add_u32 s{S_T+2}, s{S_T+2}, {R_HM}')
        a(f'v_min_u32 v{t}, 1, v{l}'); a(f'v_lshlrev_b32 v{t}, 30, v{t}'); a(f'v_or_b32 v{V_HS}, s{S_T+2}, v{t}')
        a(f's_lshl_b32 s{S_T+2}, s{S_W}, 11'); lx(a,V_PA,l,t,[(0,6,4)],[f's{S_T+2}',R_P])
        a(f's_lshl_b32 s{S_T+2}, s{S_W}, 9'); lx(a,V_PMA,l,t,[(0,6,2)],[f's{S_T+2}',R_P+8192])
        a(f's_mul_i32 s{S_T+2}, s{S_T+1}, {H*1024}'); a(f's_lshl_b32 s{S_T+3}, s{S_W}, 12'); a(f's_add_u32 s{S_T+2}, s{S_T+2}, s{S_T+3}'); a(f's_add_u32 s{S_T+2}, s{S_T+2}, {VX_OFF}')
        a(f'v_add_u32 v{V_XA}, s{S_T+2}, v{V_L16}'); a(f's_mov_b32 s{S_X2}, {H*1024}')
        a(f's_mul_i32 s{S_T+2}, s{S_W}, {CP}'); lx(a,V_CW,l,t,[(4,2,7),(4,2,3),(0,4,3)],[f's{S_T+2}',L_C])
        a(f's_mul_i32 s{S_T+2}, s{S_W}, 2560'); lx(a,V_CR,l,t,[(4,2,7),(4,2,3),(3,1,6),(0,2,4),(2,1,2)],[f's{S_T+2}',L_C]); a(f'v_add_u32 v{V_CR2}, {2*CP}, v{V_CR}')
        a(f's_mul_i32 s{S_T+2}, s{S_W}, {4*WMAT}'); a(f's_mul_i32 s{S_T+3}, s{S_T+1}, {KK*1024}')
        a(f's_add_u32 s{S_T+2}, s{S_T+2}, s{S_T+3}'); a(f's_add_u32 s{S_T+2}, s{S_T+2}, {WB_OFF}')
        for k,(i,tt) in enumerate(seq):
            a(f's_add_u32 s{S_T+3}, s{S_T+2}, {(i%4)*WMAT+(i//4)*KK*1024+tt*2048}')
            if k in ldsidx:
                j=ldsidx.index(k)
                a(f's_add_u32 m0, s{S_T}, {j*2048}')
                a(f'buffer_load_dwordx4 v{V_L16}, {ws}, s{S_T+3} offen sc1 lds')
                a(f'buffer_load_dwordx4 v{V_L16}, {ws}, s{S_T+3} offen offset:1024 sc1 lds')
            else:
                f,r=wreg(resid.index(k),32,V_WV)
                a(f'buffer_load_dwordx4 {vr(r,4,f)}, v{V_L16}, {ws}, s{S_T+3} offen sc1')
                a(f'buffer_load_dwordx4 {vr(r+4,4,f)}, v{V_L16}, {ws}, s{S_T+3} offen offset:1024 sc1')
    def bpart():
        lg=Cnt(a,'lgkmcnt',15)
        mrd=lambda t:(a(f'ds_read_b128 {vr(V_MB+4*(t%2),4)}, v{V_L16} offset:{L_M+1024*t}'), lg.issue(f'm{t}'))
        def wrd(j,hh):
            a(f'ds_read_b128 {vr(V_WB+4*hh,4)}, v{V_LW} offset:{2048*j+1024*hh}'); lg.issue(f'w{j}')
        F={}
        def put(g,f):
            while g in F: g+=1
            F[g]=f
        I=lambda s:(lambda: a(s))
        for t in range(1,6): put(8*t, (lambda t=t: mrd(t+1)))
        for j in range(NL):
            for hh in range(2): put(ldsidx[j]-7, (lambda j=j,hh=hh: wrd(j,hh)))
        k0=P['vxpre']+P['vxe']
        for k in range(k0,P.get('vxn',8)): put(P['vx0']+P['vxs']*(k-k0), I(vxl(k)))
        if P['cpre']:
            for q in range(P['pollD']): put(P['cpre']+2*q, (lambda q=q: poll_ld(a,V_HQ,0,V_PL,q)))
        mrd(0); mrd(1)
        for k,(i,t) in enumerate(seq):
            if i==0: lg.wait(f'm{t}')
            if k in ldsidx:
                j=ldsidx.index(k); lg.wait(f'w{j}'); w=vr(V_WB,8)
            else:
                f,r=wreg(resid.index(k),32,V_WV); w=vr(r,8,f)
            a(f'{SMF} {vr(V_ACC+4*i,4)}, {vr(V_MB+4*(t%2),4)}, {w}, v{V_IDX}')
            if k in F: F.pop(k)()
        assert not F
        stamp(a,P,2)
    def pack(i):
        x=V_ACC+4*i
        a(f'v_pk_add_f32 {vr(x,2)}, {vr(x,2)}, {vr(x+2,2)}'); a(f'v_cvt_pk_bf16_f32 v{V_VM+i}, v{x}, v{x+1}')
    vxl=lambda k: f'buffer_load_dwordx4 {vr(V_VX+4*k,4)}, v{V_XA}, {ws}, {"0" if k<4 else f"s{S_X2}"} offen offset:{1024*(k%4)} sc1'
    def body(sc,tag):
        st = ' sc1' if sc else ''
        top=f'B_top_{tag}'; ool=[]
        vm=Cnt(a,'vmcnt',63)
        for k in range(P.get('vxn',8),8): a(vxl(k))
        a(f's_mov_b32 s{S_S}, 0'); a('s_waitcnt vmcnt(0)')
        a(f's_cmp_gt_u32 s{S_W}, 1'); a(f's_cbranch_scc1 {top}'); a('s_barrier')
        a.label(top)
        slots(a)
        a(f's_cmp_eq_u32 s{S_W}, 3'); a(f's_cselect_b32 s{S_M2}, 0, 4096'); a(f's_add_u32 s{S_M2}, s{S_M2}, s{S_MC}')
        mld=lambda:(a(f'buffer_load_dwordx4 {vr(V_MB,4)}, v{V_LM}, {ring}, s{S_MC} offen sc1'), a(f'buffer_load_dwordx4 {vr(V_MB+4,4)}, v{V_LM}, {ring}, s{S_M2} offen sc1'))
        nq=a.new('nq')
        a(f's_cmp_lt_u32 s{S_W}, 2'); a(f's_cbranch_scc1 {nq}')
        a(f's_cmp_lg_u32 s{S_W}, 2')
        a('s_barrier')
        a(f's_cbranch_scc1 {nq}')
        poll(a, V_HP, 0, V_PL, P['pollB'], abort)
        a.label(nq); a('s_barrier')
        a(f's_mov_b32 s{S_TO}, {TIMEOUT}')
        stamp(a,P,0)
        for r in range(P['bz']): a(f'v_mov_b64 {vr(V_ACC+2*r,2)}, 0')
        mld()
        zs=list(range(P['bz'],16)); ne=P['vxe']
        for k in range(ne):
            if k==0: a('s_barrier')
            for _ in range(2): a(f'v_mov_b64 {vr(V_ACC+2*zs.pop(0),2)}, 0')
            a(vxl(k))
        for r in zs: a(f'v_mov_b64 {vr(V_ACC+2*r,2)}, 0')
        a(f's_mov_b32 s{S_FLAG}, 0'); a(f's_add_u32 s{S_T+2}, s{S_EXP}, 1'); a(f'v_mov_b32 v{V_HV}, s{S_T+2}')
        a(f's_waitcnt vmcnt({ne})')
        rl=a.new('Bm'); a.label(rl)
        a(f'ds_write_b128 v{V_LM}, {vr(V_MB,4)}'); a(f'ds_write_b128 v{V_LM}, {vr(V_MB+4,4)} offset:4096')
        a(f'v_max3_u32 v{V_T}, v{V_MB}, v{V_MB+1}, v{V_MB+2}'); a(f'v_max3_u32 v{V_T}, v{V_T}, v{V_MB+3}, v{V_MB+4}')
        a(f'v_max3_u32 v{V_T}, v{V_T}, v{V_MB+5}, v{V_MB+6}'); a(f'v_max_u32 v{V_T}, v{V_T}, v{V_MB+7}'); a(f'v_cmp_eq_u32 vcc, -1, v{V_T}')
        rr=a.new('Bmr'); a(f's_cbranch_vccnz {rr}')
        def o1():
            a.label(rr); a(f's_add_u32 s{S_RETRY2}, s{S_RETRY2}, 1'); a('s_waitcnt lgkmcnt(0)'); mld(); a('s_waitcnt vmcnt(0)'); a(f's_sub_u32 s{S_TO}, s{S_TO}, 1'); a(f's_cbranch_scc0 {rl}'); a(f's_branch {abort}')
        ool.append(o1)
        last=a.new('Blast'); oth=a.new('Both'); jn=a.new('Bjoin'); sk=a.new('sk'); np_=a.new('np')
        a('s_waitcnt lgkmcnt(0)'); a('s_barrier')
        stamp(a,P,1)
        if P.get('mg',1):
            a(f's_cmp_gt_u32 s{S_W}, 1'); a(f's_cbranch_scc1 {sk}')
            a(f's_cmp_eq_u32 s{S_S}, 0'); a(f's_cselect_b32 s{S_MGO}, 64, s{S_S}'); a(f's_lshl_b32 s{S_MGO}, s{S_MGO}, 13'); a(f's_add_u32 s{S_MGO}, s{S_MGO}, {MG_OFF}')
            a(f'buffer_store_dword v{V_O}, v{V_MS}, {ws}, s{S_MGO} offen sc1')
            a.label(sk)
        for k in range(P['vxe'],P['vxe']+P['vxpre']): a(vxl(k))
        bpart()
        stamp(a,P,3)
        a(f's_cmp_lg_u32 s{S_W}, 3'); a(f's_cbranch_scc1 {np_}')
        poll(a, V_HP, S_CUR, V_PL, P['pollD'], abort, pre=not P['cpre'])
        a.label(np_)
        a('s_barrier')
        stamp(a,P,4)
        hs=f'buffer_store_dword v{V_HV}, v{V_HS}, {ring}, 0 offen{st}'
        LP=[f'buffer_load_dwordx4 {vr(V_P,4)}, v{V_PA}, {ring}, s{S_CUR} offen sc1', f'buffer_load_dwordx4 {vr(V_P+4,4)}, v{V_PA}, {ring}, s{S_CUR} offen offset:1024 sc1',
            f'buffer_load_dword v{V_P+8}, v{V_PMA}, {ring}, s{S_CUR} offen sc1', f'buffer_load_dword v{V_P+9}, v{V_PMA}, {ring}, s{S_CUR} offen offset:256 sc1']
        def ldp(sp=False):
            for k,x in enumerate(LP):
                a(x)
                if sp and k<2: pack(k)
            if sp:
                for i in range(2,8): pack(i)
        def cpart(hint):
            nan=a.new('Cnan'); nb=a.new('Cnanb'); rs=a.new('Crs')
            a.label(rs)
            for r in range(4): a(f'v_mov_b64 {vr(V_D+2*r,2)}, 0')
            a('s_waitcnt vmcnt(3)'); stamp(a,P,5)
            for tl in range(2): a(f'{SMF} {vr(V_D+4*tl,4)}, {vr(V_P,4)}, {vr(V_VX+16*tl,8)}, v{V_IDX}')
            x=0
            if hint and P['hintM']==0: a(hs); stamp(a,P,6); x=1
            a(f's_waitcnt vmcnt({2+x})')
            for tl in range(2): a(f'{SMF} {vr(V_D+4*tl,4)}, {vr(V_P+4,4)}, {vr(V_VX+16*tl+8,8)}, v{V_IDX}')
            a(f's_waitcnt vmcnt({x})')
            for tl in range(2): a(f'{SMH} {vr(V_D+4*tl,4)}, {vr(V_P+8,2)}, {vr(V_VM+4*tl,4)}, v{V_IDX}')
            if hint and P['hintM']==1: a(hs); stamp(a,P,6)
            a(f'v_pk_add_f32 {vr(V_D,2)}, {vr(V_D,2)}, {vr(V_D+2,2)}')
            if P['csplit']: a(f'ds_write_b64 v{V_CW}, {vr(V_D,2)}')
            a(f'v_pk_add_f32 {vr(V_D+4,2)}, {vr(V_D+4,2)}, {vr(V_D+6,2)}')
            if P['csplit']: a(f'ds_write_b64 v{V_CW}, {vr(V_D+4,2)} offset:2560')
            else: a(f'ds_write2st64_b64 v{V_CW}, {vr(V_D,2)}, {vr(V_D+4,2)} offset0:0 offset1:5')
            if hint and P['hintM']==2: a(hs); stamp(a,P,6)
            a(f'v_cmp_u_f32 vcc, v{V_D}, v{V_D+1}')
            a(f's_cbranch_vccnz {nan}'); a.label(nb)
            if hint and P['hintM']==3: a(hs); stamp(a,P,6)
            a('s_waitcnt lgkmcnt(0)')
            a('s_barrier')
            if hint and P['hintM']==4: a(hs); stamp(a,P,6)
            def o2():
                a.label(nan); a(f's_cmp_lg_u32 s{S_FLAG}, 0'); a(f's_cbranch_scc1 {nb}'); a(f's_mov_b32 s{S_FLAG}, 1')
                a(f's_add_u32 s{S_RETRY2}, s{S_RETRY2}, 0x10000'); a(f's_mov_b32 s{S_TO}, {TIMEOUT}')
                l=a.new('l'); a.label(l)
                ldp()
                a('s_waitcnt vmcnt(0) lgkmcnt(0)')
                a(f'v_max_u32 v{V_T}, v{V_P}, v{V_P+1}')
                for k in range(1,5): a(f'v_max3_u32 v{V_T}, v{V_T}, v{V_P+2*k}, v{V_P+2*k+1}')
                a(f'v_cmp_eq_u32 vcc, -1, v{V_T}'); a(f's_cbranch_vccz {rs}'); a(f's_sub_u32 s{S_TO}, s{S_TO}, 1'); a(f's_cbranch_scc0 {l}'); a(f's_branch {abort}')
            ool.append(o2)
        ldp(True)
        o3=a.new('Bo3')
        a(f's_cmp_gt_u32 s{S_W}, 1'); a(f's_cbranch_scc1 {oth}')
        cpart(False)
        for w in range(4): a(f'ds_read2_b32 {vr(V_R+2*w,2)}, v{V_CR if w<2 else V_CR2} offset0:{(w%2)*CP//4} offset1:{(w%2)*CP//4+2}')
        a('s_waitcnt lgkmcnt(2)'); a(f'v_pk_add_f32 {vr(V_R,2)}, {vr(V_R,2)}, {vr(V_R+2,2)}')
        a('s_waitcnt lgkmcnt(1)'); a(f'v_pk_add_f32 {vr(V_R,2)}, {vr(V_R,2)}, {vr(V_R+4,2)}')
        a('s_waitcnt lgkmcnt(0)'); a(f'v_pk_add_f32 {vr(V_R,2)}, {vr(V_R,2)}, {vr(V_R+6,2)}')
        a(f'v_cvt_pk_bf16_f32 v{V_O}, v{V_R}, v{V_R+1}')
        a(f'v_min_u32 v{V_O}, -2, v{V_O}')
        a(f'buffer_store_dword v{V_O}, v{V_MS}, {ring}, s{S_MN} offen{st}')
        stamp(a,P,6)
        a('s_barrier')
        a(f'v_mov_b32 v{V_T}, -1')
        a(f'buffer_store_dword v{V_T}, v{V_MS}, {ring}, s{S_MA} offen{st}')
        a(f's_branch {jn}')
        a.label(oth)
        a(f's_cmp_eq_u32 s{S_W}, 3'); a(f's_cbranch_scc1 {o3}')
        cpart(False); a(f's_branch {jn}')
        a.label(o3)
        cpart(True)
        a.label(jn)
        a(f'v_add_u32 v{V_XA}, {P["vxstride"]}, v{V_XA}')
        dump_stamps(a,P,7,V_R)
        if P.get('time'):
            sk=a.new('sk'); a(f's_cmp_lg_u32 s{S_S}, 7'); a(f's_cbranch_scc1 {sk}'); a('s_memtime s[80:81]'); a('s_memrealtime s[76:77]'); a.label(sk)
        a(f's_add_u32 s{S_S}, s{S_S}, 1'); a(f's_cmp_lt_u32 s{S_S}, {NSEG-1}'); a(f's_cbranch_scc1 {top}')
        a(f's_cmp_gt_u32 s{S_W}, 1'); a('s_cbranch_scc1 L_fin')
        a(f's_mov_b32 s{S_MGO}, {MG_OFF+63*8192}')
        a(f'buffer_store_dword v{V_O}, v{V_MS}, {ws}, s{S_MGO} offen sc1')
        a('s_branch L_fin')
        for o in ool: o()
    return setup, body

def proto(P):
    a=Asm()
    a('chain_kernel:')
    a('''s_cmp_ge_u32 s2, 256
s_cbranch_scc1 L_exit
s_load_dwordx2 s[36:37], s[0:1], 0
s_load_dwordx4 s[40:43], s[0:1], 96
s_getreg_b32 s3, hwreg(HW_REG_XCC_ID)
s_and_b32 s3, s3, 15
s_cmp_lg_u32 s3, 0
s_cbranch_scc1 L_exit
v_lshrrev_b32 v1, 6, v0
v_and_b32 v0, 63, v0
s_nop 0
v_readfirstlane_b32 s17, v1
s_waitcnt lgkmcnt(0)''')
    a(f'''s_mov_b32 s{S_X}, s36
s_mov_b32 s{S_X+1}, s37
s_mov_b32 s{S_X+2}, {2048*896}
s_mov_b32 s{S_X+3}, 0x20000
s_mov_b32 s{S_WS}, s42
s_mov_b32 s{S_WS+1}, s43
s_mov_b32 s{S_WS+2}, {WS_SIZE}
s_mov_b32 s{S_WS+3}, 0x20000
s_add_u32 s{S_RING}, s42, {RING_OFF}
s_addc_u32 s{S_RING+1}, s43, 0
s_mov_b32 s{S_RING+2}, {RING_SIZE}
s_mov_b32 s{S_RING+3}, 0x20000
s_cmp_lg_u32 s17, 0
s_cbranch_scc1 L_notick
v_mov_b32 v1, 0
v_mov_b32 v2, 1
s_mov_b64 exec, 1
global_atomic_add v3, v1, v2, s[40:41] sc0
s_waitcnt vmcnt(0)
ds_write_b32 v1, v3
s_waitcnt lgkmcnt(0)
s_mov_b64 exec, -1
L_notick:
s_barrier
v_mov_b32 v1, 0
ds_read_b32 v3, v1
s_waitcnt lgkmcnt(0)
v_readfirstlane_b32 s{S_G}, v3
s_barrier
s_mov_b32 s{S_RETRY}, 0
s_mov_b32 s{S_RETRY2}, 0
s_cmp_ge_u32 s{S_G}, 30
s_cbranch_scc1 L_exit
s_cmp_ge_u32 s{S_G}, 16
s_cbranch_scc1 L_roleB
s_mov_b32 s{S_ID}, s{S_G}''')
    su,bo=gen_A(a,P); su(); bo(P.get('sc',0),'f')
    a.label('L_roleB'); a(f's_sub_u32 s{S_ID}, s{S_G}, 16')
    su,bo=gen_B(a,P); su(); bo(P.get('sc',0),'f')
    a.label('L_fin')
    a(f'''s_memtime s[82:83]
s_memrealtime s[78:79]
s_waitcnt lgkmcnt(0)
s_sub_u32 s82, s82, s80
s_sub_u32 s78, s78, s76
s_lshl_b32 s78, s78, 8
s_or_b32 s{S_S}, s{S_S}, s78
s_lshl_b32 s{S_T}, s{S_G}, 2
s_add_u32 s{S_T}, s{S_T}, s{S_W}
s_lshl_b32 s{S_T}, s{S_T}, 4
s_add_u32 s{S_T}, s{S_T}, {DBG_OFF}
v_mov_b32 v20, s82
v_mov_b32 v21, s{S_RETRY}
v_mov_b32 v22, s{S_RETRY2}
v_mov_b32 v23, s{S_S}
v_mov_b32 v24, 0
buffer_store_dwordx4 v[20:23], v24, s[{S_WS}:{S_WS+3}], s{S_T} offen''')
    a.label('L_exit'); a('s_endpgm')
    lines,added=hazards(a.lines, verbose=P.get('verbose'))
    a.lines=lines
    hdr='''; @launch grid=(256,1,1) block=(256,1,1) lds=102400
.amdgcn_target "amdgcn-amd-amdhsa--gfx950"
.text
.globl chain_kernel
.p2align 8
.type chain_kernel,@function
'''
    ftr='''.section .rodata,"a"
.p2align 6
.amdhsa_kernel chain_kernel
  .amdhsa_next_free_vgpr 512
  .amdhsa_next_free_sgpr 102
  .amdhsa_accum_offset 256
  .amdhsa_group_segment_fixed_size 0
  .amdhsa_kernarg_size 112
  .amdhsa_user_sgpr_count 2
  .amdhsa_user_sgpr_kernarg_segment_ptr 1
  .amdhsa_system_sgpr_workgroup_id_x 1
.end_amdhsa_kernel
'''
    return hdr+a.text()+ftr

DEF=dict(nhm=14,pollD=5,zsplit=[2]*7,xdma=2,gl=[1,5,9,13,17,21,25,29],sm=1,wsplit=0,csplit=0,csp=3,warm=0,bz=0,cpre=43,pollB=3,vxe=4,vxpre=0,vx0=0,vxs=4,mg=0,hintP=12,hintM=2,vxstride=VX_SEG,xastride=XA_SEG,time=1,stamps=0,vmg=0,rot=1)
if __name__=='__main__':
    P=dict(DEF); P['verbose']=1
    open('chain.s','w').write(proto(P))
```

```python
H=16; D=448; NT=28; KK=14; NSEG=64
WMAT = NT*KK*1024
WA_OFF = 0
WB_OFF = H*WMAT
XA_OFF = 0xD00000
XA_SEG = 32768
VX_OFF = 0x1000000
VX_SEG = NT*H*1024
RING_OFF = 0x2C00000
SLOT = 32768
R_HM = 7680; R_HP = 7936; R_P = 8192; R_PM = R_P+8192
R_M = 4*SLOT
RING_SIZE = R_M+67*8192
MG_OFF = 0x3400000
FL_OFF = 0x2CD0000
FO_OFF = FL_OFF+16384
FK_OFF = FL_OFF+20480
FL_SIZE = 24576
FR_OFF = 0x2CB0000
FR_INIT=512; FR_ALL=544
G_OFF = 0x2CE0000
VM_OFF = 0x2D00000
VM_SEG = NT*H*256
DBG_OFF = 0x3500000
XF_OFF = 0x3600000
XF_SEG = 2*KK*1024
WQF_OFF = 0x3800000
WOF_OFF = WQF_OFF+1344*1024
KF_OFF = 0x3B00000
OF_OFF = 0x3F00000
PX_OFF = 0x4100000
PM_OFF = 0x4300000
WS_SIZE = 0x10000000

PI = [0,1,2,3,4,5,6,7]
def d1map(kk, g, e):
    return 32*kk + 16*(g//2) + 8*((e//2)%2) + 4*(g%2) + 2*(e//4) + e%2
def colmapA(n, c):
    w, i = divmod(n, 7)
    if i == 6: return 112*w + 96 + c
    q, T = divmod(i, 2)
    r = c%4
    return 112*w + 8*(4*q + c//4) + 4*(r//2) + 2*T + r%2
def xkey(kt, c): return 16*(c//8) + 4*(c%4) + 2*((c//4)%2) + kt
def tokmap(tt, c): return 8*(c//4) + 4*tt + c%4
def dhmap(g, e): return 16*(g//2) + 8*(e//4) + 4*(g%2) + e%4
def hslot(h): return 4*(h%4) + h//4
```

```python
from asmlib import *
from layout import *
from chain import Cnt, lx
MF='v_mfma_f32_16x16x32_bf16'

def srd(a, d, lo, size, off=0):
    if off: a(f's_add_u32 s{d}, s{lo}, {off}'); a(f's_addc_u32 s{d+1}, s{lo+1}, 0')
    else: a(f's_mov_b32 s{d}, s{lo}'); a(f's_mov_b32 s{d+1}, s{lo+1}')
    a(f's_mov_b32 s{d+2}, {size}'); a(f's_mov_b32 s{d+3}, 0x20000')

PREP_LDS = 57344 + 7*3*4096
def gen_prep(a, P):
    S_W1=4; S_W2=8; S_WS=12; S_X=16; S_TS=20; S_GW=24
    S_B=28; S_WV=29; S_H=30; S_ISB=31; S_DH=32; S_WQ=33; T=64; S_E=72; S_M1=80; S_O1=81; S_O2=82; S_SC=83; S_TO=84; S_XAO=85; S_XFO=86
    ws=f's[{S_WS}:{S_WS+3}]'; w1=f's[{S_W1}:{S_W1+3}]'; w2=f's[{S_W2}:{S_W2+3}]'; xs=f's[{S_X}:{S_X+3}]'; ts=f's[{S_TS}:{S_TS+3}]'; gw=f's[{S_GW}:{S_GW+3}]'
    L=1; t=2; u=3; V_L16=4; V_A=[5,6]; V_B=[7,8]; V_RA=[9,10]; V_RB=[11,12]; V_XA=13; V_XF=14; V_TA=15; V_TB=16; V_GA=17
    V_MX=20; V_MF=24; V_MT=28; V_ACC=40; V_FR=96
    a('prep_kernel:')
    a('s_cmp_ge_u32 s2, 256'); a('s_cbranch_scc1 P_exit')
    a('s_load_dwordx16 s[36:51], s[0:1], 0'); a('s_load_dwordx8 s[52:59], s[0:1], 64'); a('s_load_dwordx4 s[60:63], s[0:1], 96')
    a(f'v_lshrrev_b32 v{t}, 6, v0'); a(f'v_and_b32 v{L}, 63, v0'); a(f's_mov_b32 s{S_B}, s2'); a(f'v_readfirstlane_b32 s{S_WV}, v{t}')
    a(f'v_lshlrev_b32 v{V_L16}, 4, v{L}')
    a(f's_and_b32 s{T}, s2, 7'); a(f's_bfe_u32 s{S_ISB}, s2, 0x10006'); a(f's_bfe_u32 s{T+1}, s2, 0x10007'); a(f's_lshl_b32 s{S_H}, s{T}, 1'); a(f's_add_u32 s{S_H}, s{S_H}, s{T+1}')
    a(f's_bfe_u32 s{S_DH}, s2, 0x10005'); a(f's_bfe_u32 s{S_WQ}, s2, 0x20003')
    tl=lambda r: a(f's_memrealtime s[{r}:{r+1}]') if P.get('tl') else None
    tl(88)
    a('s_waitcnt lgkmcnt(0)')
    srd(a,S_WS,62,WS_SIZE); srd(a,S_X,36,2048*896); srd(a,S_GW,56,896)
    a(f's_lshr_b32 s{T}, s2, 2'); a(f's_mul_i32 s{T+1}, s{T}, {32*896}')
    a(f's_and_b32 s{T+2}, s2, 3'); a(f's_mul_i32 s{T+3}, s{T+2}, 224'); a(f's_add_u32 s{T+3}, s{T+3}, s{T+1}')
    a(f's_lshr_b32 s{T+4}, s{S_WV}, 2'); a(f's_mul_i32 s{T+4}, s{T+4}, 896'); a(f's_add_u32 s{T+3}, s{T+3}, s{T+4}')
    a(f's_bfe_u32 s{T+4}, s{S_WV}, 0x10001'); a(f's_lshl_b32 s{T+4}, s{T+4}, 3'); a(f's_and_b32 s{T+5}, s{S_WV}, 1'); a(f's_lshl_b32 s{T+5}, s{T+5}, 1'); a(f's_add_u32 s{T+4}, s{T+4}, s{T+5}')
    lx(a,u,L,t,[(4,1,2),(5,1,0)],f's{T+4}')
    lx(a,V_XA,L,t,[(3,1,4),(0,2,2),(2,1,1)]); a(f'v_mul_u32_u24 v{V_XA}, 896, v{V_XA}'); a(f'v_lshl_add_u32 v{V_XA}, v{u}, 4, v{V_XA}'); a(f'v_add_u32 v{V_XA}, s{T+3}, v{V_XA}')
    a(f'v_cmp_lt_u32 vcc, 13, v{u}'); a(f'v_mov_b32 v{t}, 0x40000000'); a(f'v_cndmask_b32 v{V_XA}, v{V_XA}, v{t}, vcc')
    a(f's_lshl_b32 s{S_XAO}, s2, 3'); a(f's_add_u32 s{S_XAO}, s{S_XAO}, s{S_WV}'); a(f's_lshl_b32 s{S_XAO}, s{S_XAO}, 10'); a(f's_add_u32 s{S_XAO}, s{S_XAO}, {XA_OFF}')
    a(f's_cmp_eq_u32 s{S_WV}, 7'); a('s_cbranch_scc1 P_misc')
    a(f's_cmp_eq_u32 s{S_ISB}, 0')
    a(f's_cselect_b32 s{S_W1}, s46, s50'); a(f's_cselect_b32 s{S_W1+1}, s47, s51'); a(f's_mov_b32 s{S_W1+2}, {448*8192}'); a(f's_mov_b32 s{S_W1+3}, 0x20000')
    a(f's_cselect_b32 s{S_W2}, s48, s52'); a(f's_cselect_b32 s{S_W2+1}, s49, s53'); a(f's_mov_b32 s{S_W2+2}, {448*8192}'); a(f's_mov_b32 s{S_W2+3}, 0x20000')
    a(f's_cselect_b32 s{S_SC}, 0x3db8aa3b, 1.0')
    a(f's_mul_i32 s{T}, s{S_DH}, 7'); a(f's_add_u32 s{T}, s{T}, s{S_WV}')
    a(f's_lshl_b32 s{S_O1}, s{T}, 18'); a(f's_lshl_b32 s{T+1}, s{S_H}, 9'); a(f's_add_u32 s{S_O1}, s{S_O1}, s{T+1}')
    lx(a,u,L,t,[(4,2,0)]); a(f'v_xor_b32 v{u}, v{u}, v{L}'); a(f'v_and_b32 v{u}, 7, v{u}')
    lx(a,V_A[0],L,t,[(4,1,16),(5,1,15),(3,1,13)]); a(f'v_lshl_add_u32 v{V_A[0]}, v{u}, 4, v{V_A[0]}'); a(f'v_xor_b32 v{V_A[1]}, 64, v{V_A[0]}')
    a(f's_mul_i32 s{S_TO}, s{S_ISB}, {WB_OFF-WA_OFF}'); a(f's_mul_i32 s{T+2}, s{S_H}, {WMAT}'); a(f's_add_u32 s{S_TO}, s{S_TO}, s{T+2}'); a(f's_mul_i32 s{T+2}, s{S_WQ}, {7*KK*1024}')
    a(f's_add_u32 s{S_TO}, s{S_TO}, s{T+2}'); a(f's_lshl_b32 s{T+2}, s{T}, 10'); a(f's_add_u32 s{S_TO}, s{S_TO}, s{T+2}')
    a(f's_mul_i32 s{S_M1}, s{S_WV}, {3*4096}'); a(f's_add_u32 s{S_M1}, s{S_M1}, 57344')
    lx(a,V_RB[0],L,t,[(1,3,0)]); lx(a,V_RB[1],L,t,[(4,2,0)]); a(f'v_xor_b32 v{V_RB[0]}, v{V_RB[0]}, v{V_RB[1]}'); a(f'v_lshlrev_b32 v{V_RB[0]}, 4, v{V_RB[0]}')
    lx(a,V_RB[1],L,t,[(0,4,7)]); a(f'v_add_u32 v{V_RB[0]}, v{V_RB[0]}, v{V_RB[1]}'); a(f'v_xor_b32 v{V_RB[1]}, 64, v{V_RB[0]}')
    a(f'v_add_u32 v{V_RA[0]}, s{S_M1}, v{V_RB[0]}'); a(f'v_add_u32 v{V_RA[1]}, s{S_M1}, v{V_RB[1]}')
    isb=a.new('isb'); j1=a.new('j')
    a(f's_cmp_lg_u32 s{S_ISB}, 0'); a(f's_cbranch_scc1 {isb}')
    a(f's_mul_i32 s{T+2}, s{S_WQ}, 112'); a(f's_lshr_b32 s{T+3}, s{S_WV}, 1'); a(f's_lshl_b32 s{T+3}, s{T+3}, 5'); a(f's_add_u32 s{T+2}, s{T+2}, s{T+3}')
    a(f's_and_b32 s{T+3}, s{S_WV}, 1'); a(f's_lshl_b32 s{T+3}, s{T+3}, 1'); a(f's_add_u32 s{T+2}, s{T+2}, s{T+3}'); a(f's_lshl_b32 s{S_O2}, s{T+2}, 13'); a(f's_add_u32 s{S_O2}, s{S_O2}, s{T+1}')
    lx(a,V_B[0],L,t,[(5,1,16),(4,1,15),(3,1,13)]); lx(a,V_B[1],L,t,[(3,3,13)])
    a(f's_cmp_eq_u32 s{S_WV}, 6'); a(f's_cselect_b64 vcc, -1, 0'); a(f's_cselect_b32 s{T+3}, {8*8192}, {16*8192}'.replace(f'{8*8192}, {16*8192}', '8, 16')); a(f's_lshl_b32 s{T+3}, s{T+3}, 13')
    a(f'v_cndmask_b32 v{V_B[0]}, v{V_B[0]}, v{V_B[1]}, vcc'); a(f'v_lshl_add_u32 v{V_B[0]}, v{u}, 4, v{V_B[0]}')
    a(f'v_xor_b32 v{V_B[1]}, 64, v{V_B[0]}'); a(f'v_add_u32 v{V_B[1]}, s{T+3}, v{V_B[1]}')
    a(f's_mov_b32 s{T+7}, 128')
    a(f's_branch {j1}')
    a.label(isb)
    a(f's_mul_i32 s{S_O2}, s{S_H}, {256*896}'); a(f's_mul_i32 s{T+2}, s{S_WQ}, 224'); a(f's_add_u32 s{S_O2}, s{S_O2}, s{T+2}')
    a(f's_lshl_b32 s{T+2}, s{S_WV}, 7')
    for jj in range(2):
        a(f'v_add_u32 v{u}, s{T+2}, v{L}')
        if jj: a(f'v_add_u32 v{u}, 64, v{u}')
        a(f'v_mul_u32_u24 v{t}, 4682, v{u}'); a(f'v_lshrrev_b32 v{t}, 16, v{t}')
        a(f'v_lshlrev_b32 v{u}, 4, v{u}'); a(f'v_mul_u32_u24 v{t}, {896-224}, v{t}'); a(f'v_add_u32 v{V_B[jj]}, v{u}, v{t}')
    lx(a,u,L,t,[(4,2,3),(2,2,0)]); a(f'v_mul_u32_u24 v{u}, 224, v{u}'); lx(a,V_RB[0],L,t,[(0,2,3)]); a(f'v_add_u32 v{V_RB[0]}, v{V_RB[0]}, v{u}')
    a(f's_mov_b32 s{T+7}, {64*896}')
    a.label(j1)
    vm=Cnt(a,'vmcnt',63)
    def dma1(ch):
        for j in range(4):
            a(f's_add_u32 m0, s{S_M1}, {(ch%3)*4096+j*1024}'); a(f's_add_u32 s{T}, s{S_O1}, {(16*(j%2)+2*(j//2))*8192+128*ch}')
            a(f'buffer_load_dwordx4 v{V_A[j%2]}, {w1}, s{T} offen lds'); vm.issue(f'c{ch}')
    def dma2(ch):
        for jj in range(2):
            a(f's_lshl_b32 s{T}, s{S_WV}, 11'); a(f's_add_u32 m0, s{T}, {ch*14336+jj*1024}')
            a(f'buffer_load_dwordx4 v{V_B[jj]}, {w2}, s{S_O2} offen lds'); vm.issue(f'c{ch}')
        a(f's_add_u32 s{S_O2}, s{S_O2}, s{T+7}')
    for ch in range(3): dma2(ch); dma1(ch)
    dma2(3)
    a(f's_and_b32 s{T}, s2, 3'); a(f's_mul_i32 s{T}, s{T}, 7'); a(f's_add_u32 s{T}, s{T}, s{S_WV}')
    a(f's_lshr_b32 s{T+1}, s2, 2'); a(f's_mul_i32 s{S_XFO}, s{T+1}, 28'); a(f's_add_u32 s{S_XFO}, s{S_XFO}, s{T}'); a(f's_lshl_b32 s{S_XFO}, s{S_XFO}, 10'); a(f's_add_u32 s{S_XFO}, s{S_XFO}, {XF_OFF}')
    a(f's_mul_i32 s{T+1}, s{T+1}, {32*896}'); a(f's_cmp_ge_u32 s{T}, 14'); a(f's_cselect_b32 s{T+2}, {4*896-14*64}, 0'); a(f's_add_u32 s{T+1}, s{T+1}, s{T+2}'); a(f's_lshl_b32 s{T}, s{T}, 6'); a(f's_add_u32 s{T+1}, s{T+1}, s{T}')
    lx(a,u,L,t,[(2,2,3),(0,2,0)]); a(f'v_mul_u32_u24 v{u}, 896, v{u}'); lx(a,V_XF,L,t,[(5,1,5),(4,1,3)]); a(f'v_add_u32 v{V_XF}, v{V_XF}, v{u}')
    a(f'buffer_load_dwordx4 {vr(V_MX,4)}, v{V_XA}, {xs}, 0 offen'); vm.issue('m')
    a(f'buffer_load_dwordx2 {vr(V_MF,2)}, v{V_XF}, {xs}, s{T+1} offen'); a(f'buffer_load_dwordx2 {vr(V_MF+2,2)}, v{V_XF}, {xs}, s{T+1} offen offset:16'); vm.issue('m'); vm.issue('m')
    S_TF=87
    a(f's_mul_i32 s{S_TF}, s2, 7'); a(f's_add_u32 s{S_TF}, s{S_TF}, s{S_WV}')
    wof=a.new('wof'); j2=a.new('j')
    a(f's_cmp_ge_u32 s{S_TF}, 1344'); a(f's_cbranch_scc1 {wof}')
    srd(a,S_TS,38,448*2688)
    a(f's_mul_i32 s{T}, s{S_TF}, 2341'); a(f's_lshr_b32 s{T}, s{T}, 16')
    a(f's_mul_i32 s{T+1}, s{T}, 28'); a(f's_sub_u32 s{T+1}, s{S_TF}, s{T+1}')
    a(f's_mul_i32 s{T+2}, s{T}, 21846'); a(f's_lshr_b32 s{T+2}, s{T+2}, 16')
    a(f's_mul_i32 s{T+3}, s{T+2}, 3'); a(f's_sub_u32 s{T+3}, s{T}, s{T+3}')
    a(f's_mul_i32 s{T+3}, s{T+3}, 896'); a(f's_mul_i32 s{T+2}, s{T+2}, 56'); a(f's_add_u32 s{T+3}, s{T+3}, s{T+2}'); a(f's_mul_i32 s{T+2}, s{T+1}, {16*2688}'); a(f's_add_u32 s{T+3}, s{T+3}, s{T+2}')
    for e,r in enumerate([0,1,8,9,2,3,10,11]): a(f's_add_u32 s{S_E+e}, s{T+3}, {r*2688}')
    lx(a,u,L,t,[(5,1,0)]); a(f'v_mul_u32_u24 v{u}, {4*2688}, v{u}'); lx(a,V_TA,L,t,[(0,5,1)]); a(f'v_cmp_lt_u32 vcc, 27, v{t}'); a(f'v_add_u32 v{V_TA}, v{V_TA}, v{u}')
    a(f'v_mov_b32 v{t}, 0x40000000'); a(f'v_cndmask_b32 v{V_TA}, v{V_TA}, v{t}, vcc'); a(f'v_mov_b32 v{V_TB}, v{V_TA}')
    a(f's_branch {j2}')
    a.label(wof)
    srd(a,S_TS,40,448*896)
    a(f's_sub_u32 s{T}, s{S_TF}, 1344'); a(f's_and_b32 s{T+2}, s{T}, 15'); a(f's_lshr_b32 s{T}, s{T}, 4'); a(f's_lshl_b32 s{T}, s{T}, 5'); a(f's_mul_i32 s{T+2}, s{T+2}, {28*896}'); a(f's_add_u32 s{T+3}, s{T}, s{T+2}')
    for e in range(8): a(f's_add_u32 s{S_E+e}, s{T+3}, {(8*(e//4)+e%4)*896}')
    lx(a,u,L,t,[(5,1,4),(4,1,2)]); a(f'v_mul_u32_u24 v{u}, 896, v{u}'); lx(a,V_TA,L,t,[(0,4,1)]); a(f'v_add_u32 v{V_TA}, v{V_TA}, v{u}')
    a(f'v_cmp_lt_u32 vcc, 47, v{L}'); a(f'v_mov_b32 v{t}, 0x40000000'); a(f'v_cndmask_b32 v{V_TB}, v{V_TA}, v{t}, vcc')
    a.label(j2)
    for e in range(8): a(f'buffer_load_ushort v{V_MT+e}, v{V_TA if e<4 else V_TB}, {ts}, s{S_E+e} offen'); vm.issue('m')
    for r in range(28): a(f'v_mov_b64 {vr(V_ACC+2*r,2)}, 0')
    def compute(isB):
        lg=Cnt(a,'lgkmcnt',15); v2=Cnt(a,'vmcnt',63); v2.q=list(vm.q)
        for ch in range(4):
            v2.wait(f'c{ch}'); a('s_barrier')
            if ch in (0,3): tl(90+(2 if ch else 0))
            for ks in range(2):
                F=V_FR+36*ks
                for T_ in range(2): a(f'ds_read_b128 {vr(F+4*T_,4)}, v{V_RA[ks]} offset:{(ch%3)*4096+T_*2048}'); lg.issue(f'a{ks}')
                def rdB(n):
                    if isB:
                        for hh in range(2): a(f'ds_read_b64_tr_b16 {vr(F+8+4*n+2*hh,2)}, v{V_RB[0]} offset:{ch*14336+(32*ks+4*hh)*224+n*32}'); lg.issue(f'b{ks}{n}')
                    else: a(f'ds_read_b128 {vr(F+8+4*n,4)}, v{V_RB[ks]} offset:{ch*14336+n*2048}'); lg.issue(f'b{ks}{n}')
                for n in range(5): rdB(n)
                for n in range(7):
                    lg.wait(f'b{ks}{n}')
                    if n+5<7: rdB(n+5)
                    for T_ in range(2):
                        d=vr(V_ACC+8*n+4*T_,4); a(f'{MF} {d}, {vr(F+4*T_,4)}, {vr(F+8+4*n,4)}, {d}')
            if ch==0:
                save=vm.q; vm.q=v2.q; dma1(3); v2.q=vm.q; vm.q=save
    cb=a.new('cb'); j3=a.new('j')
    a(f's_cmp_lg_u32 s{S_ISB}, 0'); a(f's_cbranch_scc1 {cb}')
    compute(False); a(f's_branch {j3}')
    a.label(cb); compute(True)
    a.label(j3); tl(94)
    ng=a.new('ng'); a(f's_cmp_ge_u32 s{S_TF}, 28'); a(f's_cbranch_scc1 {ng}')
    a(f's_lshl_b32 s{T}, s{S_TF}, 5'); lx(a,V_GA,L,t,[(5,1,3)]); a('s_mov_b32 exec_lo, 0x10000000'); a('s_mov_b32 exec_hi, 0x10000000')
    for e,r in enumerate([0,1,8,9,2,3,10,11]): a(f'buffer_load_ushort v{V_MT+e}, v{V_GA}, {gw}, s{T} offen offset:{2*r}')
    a('s_mov_b64 exec, -1')
    a.label(ng)
    a(f'v_swap_b32 v{V_MF+1}, v{V_MF+2}')
    a(f'buffer_store_dwordx4 {vr(V_MX,4)}, v{V_L16}, {ws}, s{S_XAO} offen')
    a(f'buffer_store_dwordx4 {vr(V_MF,4)}, v{V_L16}, {ws}, s{S_XFO} offen')
    for n in range(7):
        x=V_ACC+8*n
        for r in range(8): a(f'v_mul_f32 v{x+r}, s{S_SC}, v{x+r}')
        for r in range(4): a(f'v_cvt_pk_bf16_f32 v{x+r}, v{x+2*r}, v{x+2*r+1}')
        a(f'buffer_store_dwordx4 {vr(x,4)}, v{V_L16}, {ws}, s{S_TO} offen')
        if n<6: a(f's_add_u32 s{S_TO}, s{S_TO}, {KK*1024}')
    a('s_waitcnt vmcnt(9)')
    for r in range(4): a(f'v_lshl_or_b32 v{V_MT+r}, v{V_MT+2*r+1}, 16, v{V_MT+2*r}')
    a(f's_lshl_b32 s{T}, s{S_TF}, 10'); a(f's_add_u32 s{T}, s{T}, {WQF_OFF}')
    a(f'buffer_store_dwordx4 {vr(V_MT,4)}, v{V_L16}, {ws}, s{T} offen')
    if P.get('tl'):
        tl(96); a('s_waitcnt vmcnt(0)'); tl(98); a('s_waitcnt lgkmcnt(0)')
        a(f's_lshl_b32 s{T}, s2, 3'); a(f's_add_u32 s{T}, s{T}, s{S_WV}'); a(f's_lshl_b32 s{T}, s{T}, 5'); a(f's_add_u32 s{T}, s{T}, {DBG_OFF+0xC0000}')
        for k in range(6): a(f'v_mov_b32 v{100+k}, s{88+2*k}')
        a('v_mov_b32 v108, 0'); a(f'buffer_store_dwordx4 v[100:103], v108, {ws}, s{T} offen'); a(f'buffer_store_dwordx2 v[104:105], v108, {ws}, s{T} offen offset:16')
    a('s_endpgm')
    a.label('P_misc')
    a(f'buffer_load_dwordx4 {vr(V_MX,4)}, v{V_XA}, {xs}, 0 offen')
    n0=a.new('n0'); n1=a.new('n1'); n2=a.new('n2'); n3=a.new('n3')
    a(f'v_mov_b64 {vr(40,2)}, -1'); a(f'v_mov_b64 {vr(42,2)}, -1')
    a('s_cmp_lt_u32 s2, 4'); a(f's_cbranch_scc1 {n0}')
    a(f's_lshl_b32 s{T}, s2, 11'); a(f's_add_u32 s{T}, s{T}, {MG_OFF}')
    a(f'buffer_store_dwordx4 {vr(40,4)}, v{V_L16}, {ws}, s{T} offen'); a(f'buffer_store_dwordx4 {vr(40,4)}, v{V_L16}, {ws}, s{T} offen offset:1024')
    a.label(n0)
    a(f's_cmp_eq_u32 s2, 15'); a(f's_cselect_b32 s{T+1}, 0, -1'); a(f'v_mov_b32 v44, s{T+1}')
    a(f's_cmp_eq_u32 s2, 15'); a(f's_cselect_b32 s{T+1}, 7, 0'); a(f'v_cmp_gt_u32 vcc, s{T+1}, v{L}'); a(f'v_cndmask_b32 v44, v44, 1, vcc'); a('v_mov_b32 v45, v44')
    a(f's_lshl_b32 s{T}, s2, 9'); a(f's_add_u32 s{T}, s{T}, {RING_OFF}'); a(f'v_lshlrev_b32 v{t}, 3, v{L}')
    a(f'buffer_store_dwordx2 v[44:45], v{t}, {ws}, s{T} offen')
    a('s_cmp_ge_u32 s2, 16'); a(f's_cbranch_scc1 {n1}')
    a(f's_lshl_b32 s{T}, s2, 10'); a(f's_add_u32 s{T}, s{T}, {RING_OFF+R_M+8192}')
    a(f'buffer_store_dwordx4 {vr(40,4)}, v{V_L16}, {ws}, s{T} offen')
    a.label(n1)
    a(f's_cmp_ge_u32 s2, {FL_SIZE//256}'); a(f's_cbranch_scc1 {n2}')
    a(f's_lshl_b32 s{T}, s2, 8'); a(f's_add_u32 s{T}, s{T}, {FL_OFF}'); a(f'v_lshlrev_b32 v{u}, 2, v{L}'); a('v_mov_b32 v46, 0')
    a(f'buffer_store_dword v46, v{u}, {ws}, s{T} offen')
    a.label(n2)
    a('s_cmp_ge_u32 s2, 7'); a(f's_cbranch_scc1 {n3}')
    srd(a,S_TS,44,7168)
    lx(a,u,L,t,[(2,2,1),(0,1,0)]); a(f'v_mul_u32_u24 v{u}, 896, v{u}'); lx(a,V_TA,L,t,[(4,2,5),(1,1,4)]); a(f'v_add_u32 v{V_TA}, v{V_TA}, v{u}')
    a(f's_lshl_b32 s{T}, s2, 7'); a(f'buffer_load_dwordx4 v[48:51], v{V_TA}, {ts}, s{T} offen'); a('s_waitcnt vmcnt(0)')
    for r in range(4): a(f'v_min_u32 v{48+r}, -2, v{48+r}')
    a(f's_lshl_b32 s{T}, s2, 10'); a(f's_add_u32 s{T+1}, s{T}, {RING_OFF+R_M}'); a(f's_add_u32 s{T}, s{T}, {MG_OFF}')
    a(f'buffer_store_dwordx4 v[48:51], v{V_L16}, {ws}, s{T+1} offen'); a(f'buffer_store_dwordx4 v[48:51], v{V_L16}, {ws}, s{T} offen')
    a.label(n3)
    a('s_waitcnt vmcnt(0)')
    a(f'buffer_store_dwordx4 {vr(V_MX,4)}, v{V_L16}, {ws}, s{S_XAO} offen')
    a.label('P_exit'); a('s_endpgm')

def kd(name, vgpr, acc):
    return f'''.p2align 6
.amdhsa_kernel {name}
  .amdhsa_next_free_vgpr {vgpr}
  .amdhsa_next_free_sgpr 102
  .amdhsa_accum_offset {acc}
  .amdhsa_group_segment_fixed_size 0
  .amdhsa_kernarg_size 112
  .amdhsa_user_sgpr_count 2
  .amdhsa_user_sgpr_kernarg_segment_ptr 1
  .amdhsa_system_sgpr_workgroup_id_x 1
.end_amdhsa_kernel
'''
def prep_only(P={}):
    a=Asm(); gen_prep(a,P); a.lines,_=hazards(a.lines,verbose=P.get('verbose'))
    return f'''; @launch grid=(256,1,1) block=(512,1,1) lds={PREP_LDS}
.amdgcn_target "amdgcn-amd-amdhsa--gfx950"
.text
.globl prep_kernel
.p2align 8
.type prep_kernel,@function
'''+a.text()+'.section .rodata,"a"\n'+kd('prep_kernel',168,168)
if __name__=='__main__':
    open('prep.s','w').write(prep_only(dict(verbose=1)))
```

```python
from asmlib import *
from layout import *
from chain import Cnt, lx, S_WS, S_W, S_T, S_TO, S_G, MF
from prep import srd
ws=f's[{S_WS}:{S_WS+3}]'
S_DBG=56
K=64
PX,PQKV,PWO,PM0,PWQ,PWK,PWV,PWOB,PG=K,K+2,K+4,K+8,K+10,K+12,K+14,K+16,K+20
S_W1=20; S_W2=24; S_XS=28; S_U=18; S_H=19; S_ISB=32; S_O1=33; S_O2=42; S_OUTO=43; S_SC=44; S_CNT=45; S_E=48; S_LB=47
S_FO=62; S_CN2=16
WTIME=300000
T=S_T
def zero_flags(a):
    sk=a.new('zf'); a('s_cmp_lg_u32 s2, 0'); a(f's_cbranch_scc1 {sk}')
    a('v_lshlrev_b32 v1, 7, v0'); a('v_mov_b32 v2, 0'); a(f's_mul_i32 s{T}, s{S_W}, {3*8192}'); a(f's_min_u32 s{T}, s{T}, {6*8192}'); a(f's_add_u32 s{T}, s{T}, {FR_OFF}')
    for k in range(3):
        a(f'buffer_store_dword v2, v1, {ws}, s{T} offen sc1')
        if k<2: a(f's_add_u32 s{T}, s{T}, 8192')
    a('s_waitcnt vmcnt(0)'); a('s_barrier')
    a(f's_cmp_lg_u32 s{S_W}, 1'); a(f's_cbranch_scc1 {sk}')
    a('v_mov_b32 v1, 1'); a('s_mov_b64 exec, 1'); a(f'global_store_dword v2, v1, s[{S_DBG}:{S_DBG+1}] offset:132 sc1'); a('s_mov_b64 exec, -1')
    a.label(sk)
def wait0(a, v):
    lp=a.new('w0l'); dn=a.new('w0d')
    a(f's_mov_b32 s{S_TO}, {WTIME}'); a(f'v_mov_b32 v{v}, 0')
    a.label(lp)
    a(f'global_load_dword v{v+1}, v{v}, s[{S_DBG}:{S_DBG+1}] offset:132 sc1'); a('s_waitcnt vmcnt(0)')
    a(f'v_cmp_eq_u32 vcc, 0, v{v+1}'); a(f's_cbranch_vccz {dn}')
    a('s_sleep 4'); a(f's_sub_u32 s{S_TO}, s{S_TO}, 1'); a(f's_cbranch_scc0 {lp}'); a('s_branch L_exit')
    a.label(dn)
def dsignal(a, sline, v1, first, keep=0):
    s0=a.new('sg'); s1=a.new('sg')
    if first:
        a(f's_cmp_lg_u32 s{S_W}, 0'); a(f's_cbranch_scc1 {s0}'); wait0(a,v1); a.label(s0)
    a(f's_waitcnt vmcnt({keep})'); a('s_barrier')
    a(f's_cmp_lg_u32 s{S_W}, 0'); a(f's_cbranch_scc1 {s1}')
    a(f's_lshl_b32 s{S_FO}, s{sline}, 7'); a(f's_add_u32 s{S_FO}, s{S_FO}, {FR_OFF}'); a('s_waitcnt lgkmcnt(0)'); a(f's_mov_b32 s2, 1')
    a(f's_atomic_or s2, s[{S_DBG+2}:{S_DBG+3}], s{S_FO} glc')
    a.label(s1)
def fpoll(a, voff, soff, v, sleep):
    lp=a.new('fp'); dn=a.new('fpd')
    a(f's_mov_b32 s{S_TO}, {WTIME}')
    a.label(lp)
    a(f'buffer_load_dword v{v}, v{voff}, {ws}, s{soff} offen sc1'); a('s_waitcnt vmcnt(0)')
    a(f'v_cmp_eq_u32 vcc, 0, v{v}'); a(f's_cbranch_vccz {dn}')
    a(f's_sleep {sleep}'); a(f's_sub_u32 s{S_TO}, s{S_TO}, 1'); a(f's_cbranch_scc0 {lp}'); a('s_branch L_exit')
    a.label(dn)
def matoff(a, lane, v, four):
    a(f'v_and_b32 v{v}, 15, v{lane}'); a(f'v_min_u32 v{v}, 13, v{v}')
    if four: a(f'v_and_b32 v{v+1}, 48, v{lane}'); a(f'v_add_u32 v{v}, v{v}, v{v+1}')
    a(f'v_lshlrev_b32 v{v}, 7, v{v}')
def wait_mat(a, lane, v, smat, four=False, sleep=2):
    sk=a.new('wm')
    if not four: a(f's_cmp_lg_u32 s{S_W}, 0'); a(f's_cbranch_scc1 {sk}')
    matoff(a,lane,v,four); a(f's_lshl_b32 s{T}, s{smat}, 11'); a(f's_add_u32 s{T}, s{T}, {FR_OFF}')
    fpoll(a,v,T,v+1,sleep)
    a.label(sk)
    if not four: a('s_barrier')
def wait_all(a, v, sleep=4):
    sk=a.new('wa')
    a(f's_cmp_lg_u32 s{S_W}, 0'); a(f's_cbranch_scc1 {sk}')
    a(f's_lshr_b32 s{T}, s{S_G}, 5'); a(f's_lshl_b32 s{T}, s{T}, 7'); a(f's_add_u32 s{T}, s{T}, {FR_OFF+FR_ALL*128}'); a(f'v_mov_b32 v{v}, 0')
    fpoll(a,v,T,v+1,sleep)
    a.label(sk); a('s_barrier')
def aggregate(a, v):
    sk=a.new('ag')
    matoff(a,0,v,True)
    for k in range(2):
        a(f's_lshl_b32 s{T}, s{S_W}, 13'); a(f's_add_u32 s{T}, s{T}, {FR_OFF+32768*k}'); fpoll(a,v,T,v+1,2)
    a(f'v_and_b32 v{v}, 31, v0'); a(f'v_lshlrev_b32 v{v}, 7, v{v}'); a(f's_mov_b32 s{T}, {FR_OFF+FR_INIT*128}'); fpoll(a,v,T,v+1,2)
    a('s_barrier')
    a(f's_cmp_lg_u32 s{S_W}, 0'); a(f's_cbranch_scc1 {sk}')
    a(f's_mov_b32 s{T}, {FR_OFF+FR_ALL*128}'); a(f'v_mov_b32 v{v+1}, 1'); a('s_mov_b64 exec, 0xff')
    a(f'buffer_store_dword v{v+1}, v{v}, {ws}, s{T} offen sc1'); a('s_mov_b64 exec, -1')
    a.label(sk)

def early_touch(a, P, label, what):
    S=S_XS
    a('v_lshlrev_b32 v249, 7, v0'); a(f's_lshl_b32 s{T+4}, s2, 2'); a(f's_add_u32 s{T+4}, s{T+4}, s{S_W}')
    if P['tcode'] and label:
        sk=a.new('tc'); a(f's_cmp_lg_u32 s{S_W}, 3'); a(f's_cbranch_scc1 {sk}')
        a(f's_getpc_b64 s[{T}:{T+1}]'); a(f's_and_b32 s{T}, s{T}, 0xffffff00')
        a(f's_bfe_u32 s{T+2}, s2, 0x30003'); a(f's_lshl_b32 s{T+2}, s{T+2}, 13'); a(f'v_add_u32 v6, s{T+2}, v249'); a(f'v_min_u32 v6, L_exit-{label}-512, v6')
        a(f'global_load_dword v250, v6, s[{T}:{T+1}]')
        a.label(sk)
    def two(pa,pb,v):
        a(f's_cmp_lt_u32 s{T+4}, 512'); a(f's_cselect_b32 s{S}, s{pa}, s{pb}'); a(f's_cselect_b32 s{S+1}, s{pa+1}, s{pb+1}'); a(f's_mov_b32 s{S+2}, {448*8192}'); a(f's_mov_b32 s{S+3}, 0x20000')
        a(f's_and_b32 s{T}, s{T+4}, 511'); a(f's_lshl_b32 s{T}, s{T}, 13'); a(f'buffer_load_dword v{v}, v249, s[{S}:{S+3}], s{T} offen')
    for ch in what:
        if ch=='B': two(PWV,PWOB,251)
        if ch=='A': two(PWQ,PWK,252)
        if ch=='x':
            a(f's_lshr_b32 s{T+1}, s{T+4}, 8'); a(f's_and_b32 s{T}, s{T+4}, 255'); a(f's_lshl_b32 s{T}, s{T}, 13')
            a(f's_cmp_eq_u32 s{T+1}, 0'); a(f's_cselect_b32 s{S}, s{PX}, s{PQKV}'); a(f's_cselect_b32 s{S+1}, s{PX+1}, s{PQKV+1}'); a(f's_mov_b32 s{S+2}, {448*2688}'); a(f's_cselect_b32 s{S+2}, {2048*896}, s{S+2}')
            a(f's_cmp_ge_u32 s{T+1}, 2'); a(f's_cselect_b32 s{S}, s{PWO}, s{S}'); a(f's_cselect_b32 s{S+1}, s{PWO+1}, s{S+1}'); a(f's_cselect_b32 s{S+2}, {448*896}, s{S+2}')
            a(f's_cmp_eq_u32 s{T+1}, 3'); a(f's_cselect_b32 s{S+2}, 0, s{S+2}'); a(f's_mov_b32 s{S+3}, 0x20000')
            a(f'buffer_load_dword v253, v249, s[{S}:{S+3}], s{T} offen')

def gen_tasks(a, P):
    w1=f's[{S_W1}:{S_W1+3}]'; w2=f's[{S_W2}:{S_W2+3}]'; xs=f's[{S_XS}:{S_XS+3}]'
    L=0; t=1; u=2; V_L16=3; V_D=4; V_DT=5; V_RA=6; V_RB=10; V_BO=14; V_XF=21; V_TA=22; V_TB=23; V_GA=24
    V_MF=28; V_MT=36; V_ACC=52; V_FR=108
    LW2=32768
    tl=lambda r: a(f's_memrealtime s[{r}:{r+1}]') if P.get('tl') else None
    a(f's_sub_u32 s{S_U}, s{S_G}, 32')
    def setup():
        a(f'v_lshlrev_b32 v{V_L16}, 4, v{L}')
        lx(a,u,L,t,[(5,1,0)]); a(f'v_xor_b32 v{u}, v{u}, v{L}'); a(f'v_and_b32 v{u}, 31, v{u}'); lx(a,V_D,L,t,[(5,1,13)]); a(f'v_lshl_add_u32 v{V_D}, v{u}, 4, v{V_D}')
        lx(a,u,L,t,[(4,2,0)]); a(f'v_xor_b32 v{u}, v{u}, v{L}'); a(f'v_and_b32 v{u}, 15, v{u}'); lx(a,V_DT,L,t,[(0,4,9)]); a(f'v_lshl_add_u32 v{V_DT}, v{u}, 4, v{V_DT}')
        a(f's_and_b32 s{T}, s{S_W}, 1'); a(f's_lshl_b32 s{T}, s{T}, 14')
        for q in range(4): a(f'v_xor_b32 v{V_RA+q}, {64*q}, v{V_DT}'); a(f'v_add_u32 v{V_RA+q}, s{T}, v{V_RA+q}')
        for q in range(7):
            a(f'v_add_u32 v{u}, {64*q}, v{L}'); a(f'v_mul_u32_u24 v{t}, 2341, v{u}'); a(f'v_lshrrev_b32 v{t}, 16, v{t}'); a(f'v_mul_u32_u24 v{V_BO+q}, 28, v{t}'); a(f'v_sub_u32 v{u}, v{u}, v{V_BO+q}')
            a(f'v_lshrrev_b32 v{V_BO+q}, 2, v{t}'); a(f'v_and_b32 v{V_BO+q}, 2, v{V_BO+q}'); a(f'v_xor_b32 v{u}, v{u}, v{V_BO+q}'); a(f'v_mul_u32_u24 v{t}, 896, v{t}'); a(f'v_lshl_add_u32 v{V_BO+q}, v{u}, 4, v{t}')
    def ids(rnd):
        a(f's_mul_i32 s{T}, s{S_U}, 4682'); a(f's_lshr_b32 s{T}, s{T}, 16'); a(f's_mul_i32 s{T+1}, s{T}, 14'); a(f's_sub_u32 s{T+1}, s{S_U}, s{T+1}')
        a(f's_cmp_ge_u32 s{T+1}, 7'); a(f's_cselect_b32 s{T+2}, 1, 0'); a(f's_cselect_b32 s{T+3}, 7, 0'); a(f's_sub_u32 s{T+1}, s{T+1}, s{T+3}')
        a(f's_mov_b32 s{S_ISB}, {1 if P["order"][rnd]=="B" else 0}'); a(f's_mov_b32 s{S_H}, s{T}')
    def touch(rnd):
        ids(rnd); isB=P['order'][rnd]=='B'; p1,p2=(PWV,PWOB) if isB else (PWQ,PWK)
        a(f's_add_u32 s{T+1}, s{T+1}, s{T+3}'); a(f's_lshl_b32 s{T+1}, s{T+1}, 1'); a(f's_and_b32 s{T+2}, s{S_W}, 1'); a(f's_add_u32 s{T+1}, s{T+1}, s{T+2}')
        a(f's_lshl_b32 s{T+2}, s{T+1}, 17'); a(f's_lshl_b32 s{T+3}, s{S_H}, 9'); a(f's_add_u32 s{T+2}, s{T+2}, s{T+3}')
        lx(a,248,L,t,[(2,4,13),(0,2,7)])
        if isB:
            a(f's_mul_i32 s{T+3}, s{S_H}, 28'); a(f's_add_u32 s{T+3}, s{T+3}, s{T+1}'); a(f's_lshl_b32 s{T+3}, s{T+3}, 13'); a(f'v_lshlrev_b32 v{t}, 7, v{L}')
        a(f's_cmp_lt_u32 s{S_W}, 2'); a(f's_cselect_b32 s{S_XS}, s{p1}, s{p2}'); a(f's_cselect_b32 s{S_XS+1}, s{p1+1}, s{p2+1}'); a(f's_mov_b32 s{S_XS+2}, {448*8192}'); a(f's_mov_b32 s{S_XS+3}, 0x20000')
        if isB: a(f's_cselect_b32 s{T+2}, s{T+2}, s{T+3}'); a('s_cselect_b64 vcc, -1, 0'); a(f'v_cndmask_b32 v248, v{t}, v248, vcc')
        a(f'buffer_load_dword v{254+rnd}, v248, {xs}, s{T+2} offen')
    def task(rnd, mid=None):
        ids(rnd)
        a(f's_lshl_b32 s{S_CNT}, s{S_ISB}, 4'); a(f's_add_u32 s{S_CNT}, s{S_CNT}, s{S_H}')
        a(f's_mul_i32 s{S_OUTO}, s{S_CNT}, {WMAT}'); a(f's_lshl_b32 s{S_CNT}, s{S_CNT}, 4'); a(f's_add_u32 s{S_CNT}, s{S_CNT}, s{T+1}'); a(f's_add_u32 s{S_CNT}, s{S_CNT}, s{T+3}')
        a(f's_lshr_b32 s{T+3}, s{S_W}, 1'); a(f's_lshl_b32 s{T+4}, s{T+2}, 1'); a(f's_add_u32 s{T+4}, s{T+4}, s{T+3}')
        a(f's_mul_i32 s{T+5}, s{T+4}, {7*KK*1024}'); a(f's_add_u32 s{S_OUTO}, s{S_OUTO}, s{T+5}')
        a(f's_and_b32 s{T+6}, s{S_W}, 1'); a(f's_lshl_b32 s{T+5}, s{T+1}, 1'); a(f's_add_u32 s{T+5}, s{T+5}, s{T+6}'); a(f's_lshl_b32 s{T+5}, s{T+5}, 10'); a(f's_add_u32 s{S_OUTO}, s{S_OUTO}, s{T+5}')
        a(f's_cmp_eq_u32 s{S_ISB}, 0')
        a(f's_cselect_b32 s{S_W1}, s{PWQ}, s{PWV}'); a(f's_cselect_b32 s{S_W1+1}, s{PWQ+1}, s{PWV+1}'); a(f's_mov_b32 s{S_W1+2}, {448*8192}'); a(f's_mov_b32 s{S_W1+3}, 0x20000')
        a(f's_cselect_b32 s{S_W2}, s{PWK}, s{PWOB}'); a(f's_cselect_b32 s{S_W2+1}, s{PWK+1}, s{PWOB+1}'); a(f's_mov_b32 s{S_W2+2}, {448*8192}'); a(f's_mov_b32 s{S_W2+3}, 0x20000')
        a(f's_cselect_b32 s{S_SC}, 0x3db8aa3b, 1.0')
        a(f's_lshl_b32 s{S_O1}, s{T+1}, 6'); a(f's_lshl_b32 s{T+5}, s{T+3}, 5'); a(f's_add_u32 s{S_O1}, s{S_O1}, s{T+5}'); a(f's_lshl_b32 s{T+5}, s{T+6}, 1'); a(f's_add_u32 s{S_O1}, s{S_O1}, s{T+5}')
        a(f's_lshl_b32 s{S_O1}, s{S_O1}, 13'); a(f's_lshl_b32 s{T+7}, s{S_H}, 9'); a(f's_add_u32 s{S_O1}, s{S_O1}, s{T+7}')
        a(f's_lshl_b32 s{S_LB}, s{S_W}, 13')
        for j in range(8):
            a(f'v_xor_b32 v{t}, {32*j}, v{V_D}'); a(f's_add_u32 m0, s{S_LB}, {1024*j}'); a(f's_add_u32 s{T+5}, s{S_O1}, {(16*(j>>2)+8*(j&1)+4*((j>>1)&1))*8192}')
            a(f'buffer_load_dwordx4 v{t}, {w1}, s{T+5} offen lds')
        if mid: mid()
        isb=a.new('isb'); j1=a.new('j')
        a(f's_cmp_lg_u32 s{S_ISB}, 0'); a(f's_cbranch_scc1 {isb}')
        a(f's_mul_i32 s{S_O2}, s{T+4}, 112'); a(f's_lshl_b32 s{S_O2}, s{S_O2}, 13'); a(f's_add_u32 s{S_O2}, s{S_O2}, s{T+7}')
        a(f's_mul_i32 s{S_LB}, s{T+3}, {7*8192}'); a(f's_add_u32 s{S_LB}, s{S_LB}, {LW2}')
        for q in range(4): a(f'v_xor_b32 v{V_RB+q}, {64*q}, v{V_DT}'); a(f'v_add_u32 v{V_RB+q}, s{S_LB}, v{V_RB+q}')
        a(f's_lshl_b32 s{T+5}, s{T+6}, 12'); a(f's_add_u32 s{S_LB}, s{S_LB}, s{T+5}'); a(f's_lshl_b32 s{T+5}, s{T+6}, 7'); a(f'v_xor_b32 v{u}, s{T+5}, v{V_D}')
        a(f's_lshl_b32 s{T+5}, s{T+6}, 16'); a(f's_add_u32 s{T+7}, s{S_O2}, s{T+5}'); a(f's_add_u32 s{S_O2}, s{T+7}, s{T+5}')
        for jj in range(4):
            a(f'v_xor_b32 v{t}, {32*jj}, v{u}')
            for n in range(7):
                row = 32*(n//2)+2*(n%2)+4*jj if n<6 else 96+2*jj
                a(f's_add_u32 m0, s{S_LB}, {8192*n+1024*jj}'); a(f's_add_u32 s{T+5}, s{S_O2 if n<6 else T+7}, {row*8192}')
                a(f'buffer_load_dwordx4 v{t}, {w2}, s{T+5} offen lds')
        a(f's_branch {j1}')
        a.label(isb)
        a(f's_lshl_b32 s{S_O2}, s{S_H}, 8'); a(f's_lshl_b32 s{T+5}, s{S_W}, 6'); a(f's_add_u32 s{S_O2}, s{S_O2}, s{T+5}'); a(f's_mul_i32 s{S_O2}, s{S_O2}, 896'); a(f's_mul_i32 s{T+5}, s{T+2}, 448'); a(f's_add_u32 s{S_O2}, s{S_O2}, s{T+5}')
        a(f's_mul_i32 s{S_LB}, s{S_W}, {28*1024}'); a(f's_add_u32 s{S_LB}, s{S_LB}, {LW2}')
        for k in range(28):
            a(f's_add_u32 m0, s{S_LB}, {1024*k}')
            if k and k%7==0: a(f's_add_u32 s{S_O2}, s{S_O2}, {16*896}')
            a(f'buffer_load_dwordx4 v{V_BO+k%7}, {w2}, s{S_O2} offen lds')
        lx(a,u,L,t,[(4,2,3),(2,2,0)]); a(f'v_mul_u32_u24 v{u}, 448, v{u}'); a(f's_mul_i32 s{T+5}, s{T+3}, 224'); lx(a,V_RB,L,t,[(0,2,3)],[f's{T+5}',LW2]); a(f'v_add_u32 v{V_RB}, v{V_RB}, v{u}')
        a(f's_cmp_eq_u32 s{T+3}, 0'); a(f's_cselect_b32 s{T+5}, 32, -32'); a(f'v_bfe_u32 v{t}, v{L}, 4, 1'); a(f'v_mul_i32_i24 v{t}, s{T+5}, v{t}')
        a(f'v_sub_u32 v{V_RB+1}, v{V_RB}, v{t}'); a(f'v_add_u32 v{V_RB}, v{V_RB}, v{t}')
        a(f'v_add_u32 v{V_RB+2}, {128*448}, v{V_RB}'); a(f'v_add_u32 v{V_RB+3}, {128*448}, v{V_RB+1}')
        a.label(j1)
        nm=0
        if rnd==P['miscr']: nm=misc_loads()
        if rnd==0 and P['lt']==2: touch(1); ids(0); nm+=1
        if rnd==0:
            s0=a.new('sg'); a(f's_cmp_lg_u32 s{S_W}, 0'); a(f's_cbranch_scc1 {s0}'); a(f'v_mov_b32 v{t}, 0'); a(f'global_load_dword v247, v{t}, s[{S_DBG}:{S_DBG+1}] offset:132 sc1'); a(f's_waitcnt vmcnt({nm+1})'); a.label(s0)
            a(f's_cmp_eq_u32 s{S_W}, 0'); a(f's_cbranch_scc1 {s0}b')
        a(f's_waitcnt vmcnt({nm})')
        if rnd==0: a.label(s0+'b')
        a('s_barrier')
        tl(88+6*rnd)
        def compute(isB):
            lg=Cnt(a,'lgkmcnt',15)
            items=[]
            for ks in range(8):
                F=V_FR+36*(ks%2)
                for T_ in range(2): items.append((f'a{ks}',[f'ds_read_b128 {vr(F+4*T_,4)}, v{V_RA+ks%4} offset:{T_*8192+(ks//4)*256}']))
                for n in range(7):
                    if isB: items.append((f'b{ks}{n}',[f'ds_read_b64_tr_b16 {vr(F+8+4*n+2*hh,2)}, v{V_RB+n%2+2*(ks//4)} offset:{(32*(ks%4)+4*hh)*448+n*32}' for hh in range(2)]))
                    else: items.append((f'b{ks}{n}',[f'ds_read_b128 {vr(F+8+4*n,4)}, v{V_RB+ks%4} offset:{n*8192+(ks//4)*256}']))
            def rd():
                if items:
                    tg,xs_=items.pop(0)
                    for x in xs_: a(x); lg.issue(tg)
            for _ in range(7): rd()
            for ks in range(8):
                F=V_FR+36*(ks%2)
                for n in range(7):
                    lg.wait(f'b{ks}{n}')
                    for T_ in range(2):
                        d=vr(V_ACC+8*n+4*T_,4); a(f'{MF} {d}, {vr(F+4*T_,4)}, {vr(F+8+4*n,4)}, {d if ks else 0}')
                        if T_==0 or n in (2,3): rd()
        compute(P['order'][rnd]=='B')
        tl(90+6*rnd)
        for n in range(7):
            x=V_ACC+8*n
            for r in range(8): a(f'v_mul_f32 v{x+r}, s{S_SC}, v{x+r}')
            for r in range(4): a(f'v_cvt_pk_bf16_f32 v{x+r}, v{x+2*r}, v{x+2*r+1}')
            a(f'buffer_store_dwordx4 {vr(x,4)}, v{V_L16}, {ws}, s{S_OUTO} offen sc1')
            if n<6: a(f's_add_u32 s{S_OUTO}, s{S_OUTO}, {KK*1024}')
        if rnd==P['miscr']: misc_stores()
        if rnd==1: dsignal(a,S_CNT,t,False); tl(98)
        else: a(f's_mov_b32 s{S_CN2}, s{S_CNT}'); a('s_barrier')
    S_F=60
    def misc_loads():
        srd(a,S_XS,PX,2048*896)
        a(f's_lshl_b32 s{S_F}, s{S_U}, 3'); a(f's_lshl_b32 s{T}, s{S_W}, 1'); a(f's_add_u32 s{S_F}, s{S_F}, s{T}')
        lx(a,u,L,t,[(2,2,3),(0,2,0)]); a(f'v_mul_u32_u24 v{u}, 896, v{u}'); lx(a,V_XF,L,t,[(5,1,5),(4,1,3)]); a(f'v_add_u32 v{V_XF}, v{V_XF}, v{u}')
        a(f's_mul_i32 s{T}, s{S_F}, 2341'); a(f's_lshr_b32 s{T}, s{T}, 16'); a(f's_mul_i32 s{T+1}, s{T}, 28'); a(f's_sub_u32 s{T+1}, s{S_F}, s{T+1}')
        a(f's_mul_i32 s{T+2}, s{T}, {32*896}'); a(f's_cmp_ge_u32 s{T+1}, 14'); a(f's_cselect_b32 s{T+3}, {4*896-14*64}, 0'); a(f's_add_u32 s{T+2}, s{T+2}, s{T+3}'); a(f's_lshl_b32 s{T+3}, s{T+1}, 6'); a(f's_add_u32 s{T+2}, s{T+2}, s{T+3}')
        for k in range(2):
            for hh in range(2): a(f'buffer_load_dwordx2 {vr(V_MF+4*k+2*hh,2)}, v{V_XF}, {xs}, s{T+2} offen offset:{64*k+16*hh}')
        wof=a.new('wof'); j2=a.new('j')
        a(f's_cmp_ge_u32 s{S_F}, 1344'); a(f's_cbranch_scc1 {wof}')
        srd(a,S_XS,PQKV,448*2688)
        a(f's_mul_i32 s{T+2}, s{T}, 21846'); a(f's_lshr_b32 s{T+2}, s{T+2}, 16'); a(f's_mul_i32 s{T+3}, s{T+2}, 3'); a(f's_sub_u32 s{T+3}, s{T}, s{T+3}')
        a(f's_mul_i32 s{T+3}, s{T+3}, 896'); a(f's_mul_i32 s{T+2}, s{T+2}, 56'); a(f's_add_u32 s{T+3}, s{T+3}, s{T+2}'); a(f's_mul_i32 s{T+2}, s{T+1}, {16*2688}'); a(f's_add_u32 s{T+3}, s{T+3}, s{T+2}')
        for e,r in enumerate([0,1,8,9,2,3,10,11]): a(f's_add_u32 s{S_E+e}, s{T+3}, {r*2688}')
        lx(a,u,L,t,[(5,1,0)]); a(f'v_mul_u32_u24 v{u}, {4*2688}, v{u}'); lx(a,V_TA,L,t,[(0,5,1)]); a(f'v_cmp_lt_u32 vcc, 27, v{t}'); a(f'v_add_u32 v{V_TA}, v{V_TA}, v{u}')
        a(f'v_mov_b32 v{t}, 0x40000000'); a(f'v_cndmask_b32 v{V_TA}, v{V_TA}, v{t}, vcc'); a(f'v_mov_b32 v{V_TB}, v{V_TA}')
        a(f's_mov_b32 s{S_F+1}, {16*2688}')
        a(f's_branch {j2}')
        a.label(wof)
        srd(a,S_XS,PWO,448*896)
        a(f's_sub_u32 s{T}, s{S_F}, 1344'); a(f's_and_b32 s{T+2}, s{T}, 15'); a(f's_lshr_b32 s{T}, s{T}, 4'); a(f's_lshl_b32 s{T}, s{T}, 5'); a(f's_mul_i32 s{T+2}, s{T+2}, {28*896}'); a(f's_add_u32 s{T+3}, s{T}, s{T+2}')
        for e in range(8): a(f's_add_u32 s{S_E+e}, s{T+3}, {(8*(e//4)+e%4)*896}')
        lx(a,u,L,t,[(5,1,4),(4,1,2)]); a(f'v_mul_u32_u24 v{u}, 896, v{u}'); lx(a,V_TA,L,t,[(0,4,1)]); a(f'v_add_u32 v{V_TA}, v{V_TA}, v{u}')
        a(f'v_cmp_lt_u32 vcc, 47, v{L}'); a(f'v_mov_b32 v{t}, 0x40000000'); a(f'v_cndmask_b32 v{V_TB}, v{V_TA}, v{t}, vcc')
        a(f's_mov_b32 s{S_F+1}, {28*896}')
        a.label(j2)
        for k in range(2):
            for e in range(8):
                a(f'buffer_load_ushort v{V_MT+8*k+e}, v{V_TA if e<4 else V_TB}, {xs}, s{S_E+e} offen')
                if k==0: a(f's_add_u32 s{S_E+e}, s{S_E+e}, s{S_F+1}')
        return 20
    def misc_stores():
        ng=a.new('ng'); a(f's_cmp_ge_u32 s{S_F}, 28'); a(f's_cbranch_scc1 {ng}')
        srd(a,S_XS,PG,896)
        a(f's_lshl_b32 s{T}, s{S_F}, 5'); lx(a,V_GA,L,t,[(5,1,3)]); a('s_mov_b32 exec_lo, 0x10000000'); a('s_mov_b32 exec_hi, 0x10000000')
        for k in range(2):
            for e,r in enumerate([0,1,8,9,2,3,10,11]): a(f'buffer_load_ushort v{V_MT+8*k+e}, v{V_GA}, {xs}, s{T} offen offset:{2*r+32*k}')
        a('s_mov_b64 exec, -1'); a('s_waitcnt vmcnt(0)')
        a.label(ng)
        a('s_waitcnt vmcnt(7)')
        a(f's_lshl_b32 s{T}, s{S_F}, 10'); a(f's_add_u32 s{T+1}, s{T}, {XF_OFF}'); a(f's_add_u32 s{T}, s{T}, {WQF_OFF}')
        for k in range(2):
            a(f'v_swap_b32 v{V_MF+4*k+1}, v{V_MF+4*k+2}')
            a(f'buffer_store_dwordx4 {vr(V_MF+4*k,4)}, v{V_L16}, {ws}, s{T+1} offen offset:{1024*k} sc1')
            x=V_MT+8*k
            for r in range(4): a(f'v_lshl_or_b32 v{x+r}, v{x+2*r+1}, 16, v{x+2*r}')
            a(f'buffer_store_dwordx4 {vr(x,4)}, v{V_L16}, {ws}, s{T} offen offset:{1024*k} sc1')
    if P['lt']: touch(0)
    if P['lt']==1: touch(1)
    setup()
    def mid():
        ok=a.new('ok')
        a('s_waitcnt vmcnt(8)')
        a(f's_cmp_lg_u32 s{S_W}, 0'); a(f's_cbranch_scc1 {ok}'); a('v_cmp_eq_u32 vcc, 0, v247'); a(f's_cbranch_vccz {ok}'); wait0(a,t); a.label(ok)
        dsignal(a,S_CN2,t,False,8); tl(92)
    task(0); task(1,mid)

def gen_init(a, P):
    xs=f's[{S_XS}:{S_XS+3}]'
    L=0; t=1; u=2; V_L16=3; V_X=4; V_X2=5; V_N=8; V_Z=12; V_F=16; S_GW=18
    a(f'v_lshlrev_b32 v{V_L16}, 4, v{L}')
    a(f's_and_b32 s{S_GW}, s{S_G}, 15'); a(f's_lshl_b32 s{S_GW}, s{S_GW}, 2'); a(f's_add_u32 s{S_GW}, s{S_GW}, s{S_W}')
    oth=a.new('ini'); dn=a.new('inid')
    a(f's_cmp_ge_u32 s{S_G}, 16'); a(f's_cbranch_scc1 {oth}')
    srd(a,S_XS,PX,2048*896)
    lx(a,V_X,L,t,[(3,1,4),(0,2,2),(2,1,1)]); a(f'v_mul_u32_u24 v{V_X}, 896, v{V_X}'); lx(a,u,L,t,[(4,1,6),(5,1,4)]); a(f'v_add_u32 v{V_X}, v{V_X}, v{u}')
    lx(a,u,L,t,[(4,1,30)]); a(f'v_or_b32 v{V_X2}, v{V_X}, v{u}')
    a(f's_mul_i32 s{T}, s{S_GW}, {32*896}')
    for k in range(32):
        kt,ks,z=(k>>2)&1,(k>>1)&1,k&1
        a(f'buffer_load_dwordx4 {vr(V_F+4*k,4)}, v{V_X2 if ks and z else V_X}, {xs}, s{T} offen offset:{(k>>3)*224+kt*896+(8*ks+2*z)*16}')
    a(f's_lshl_b32 s{T}, s{S_GW}, 15'); a(f's_add_u32 s{T}, s{T}, {XA_OFF}')
    a('s_waitcnt vmcnt(0)')
    for k in range(32):
        a(f'buffer_store_dwordx4 {vr(V_F+4*k,4)}, v{V_L16}, {ws}, s{T} offen offset:{1024*(k%4)} sc1')
        if k%4==3 and k<31: a(f's_add_u32 s{T}, s{T}, 4096')
    a(f's_branch {dn}')
    a.label(oth)
    n0=a.new('n0'); n1=a.new('n1'); n2=a.new('n2'); n3=a.new('n3'); n4=a.new('n4')
    a(f'v_mov_b64 {vr(V_N,2)}, -1'); a(f'v_mov_b64 {vr(V_N+2,2)}, -1')
    a(f's_cmp_eq_u32 s{S_GW}, 0'); a(f's_cbranch_scc1 {n0}')
    a(f's_lshl_b32 s{T}, s{S_GW}, 13'); a(f's_add_u32 s{T}, s{T}, {MG_OFF}'); a(f's_add_u32 s{T+1}, s{T}, 4096')
    for k in range(7): a(f'buffer_store_dwordx4 {vr(V_N,4)}, v{V_L16}, {ws}, s{T+k//4} offen offset:{1024*(k%4)} sc1')
    a.label(n0)
    a(f's_cmp_ge_u32 s{S_GW}, 16'); a(f's_cbranch_scc1 {n1}')
    a(f's_lshl_b32 s{T}, s{S_GW}, 10'); a(f's_add_u32 s{T}, s{T}, {RING_OFF+R_M+8192}'); a(f'buffer_store_dwordx4 {vr(V_N,4)}, v{V_L16}, {ws}, s{T} offen sc1')
    a.label(n1)
    a(f's_cmp_ge_u32 s{S_GW}, {FL_SIZE//1024}'); a(f's_cbranch_scc1 {n2}')
    a(f'v_mov_b64 {vr(V_Z,2)}, 0'); a(f'v_mov_b64 {vr(V_Z+2,2)}, 0')
    a(f's_lshl_b32 s{T}, s{S_GW}, 10'); a(f's_add_u32 s{T}, s{T}, {FL_OFF}'); a(f'buffer_store_dwordx4 {vr(V_Z,4)}, v{V_L16}, {ws}, s{T} offen sc1')
    a.label(n2)
    a(f's_lshl_b32 s{T}, s{S_GW}, 11'); a(f's_add_u32 s{T}, s{T}, {RING_OFF}'); a(f'buffer_store_dwordx4 {vr(V_N,4)}, v{V_L16}, {ws}, s{T} offen sc1')
    a(f's_cmp_lg_u32 s{S_GW}, 3'); a(f's_cbranch_scc1 {n3}')
    for r in range(4):
        a(f'v_lshl_add_u32 v{t}, v{L}, 2, {r}'); a(f'v_subrev_u32 v{t}, {(R_HM-7168)//4}, v{t}'); a(f'v_cmp_gt_u32 vcc, 14, v{t}'); a(f'v_cndmask_b32 v{V_N+r}, 0, 1, vcc')
    a.label(n3)
    a(f'buffer_store_dwordx4 {vr(V_N,4)}, v{V_L16}, {ws}, s{T} offen offset:1024 sc1')
    a(f's_sub_u32 s{T+2}, s{S_GW}, 56'); a(f's_cmp_ge_u32 s{T+2}, 7'); a(f's_cbranch_scc1 {n4}')
    srd(a,S_W1,PM0,7168)
    lx(a,u,L,t,[(2,2,1),(0,1,0)]); a(f'v_mul_u32_u24 v{u}, 896, v{u}'); lx(a,V_X,L,t,[(4,2,5),(1,1,4)]); a(f'v_add_u32 v{V_X}, v{V_X}, v{u}')
    a(f's_lshl_b32 s{T}, s{T+2}, 7'); a(f'buffer_load_dwordx4 {vr(V_Z,4)}, v{V_X}, s[{S_W1}:{S_W1+3}], s{T} offen'); a('s_waitcnt vmcnt(0)')
    for r in range(4): a(f'v_min_u32 v{V_Z+r}, -2, v{V_Z+r}')
    a(f's_lshl_b32 s{T}, s{T+2}, 10'); a(f's_add_u32 s{T+1}, s{T}, {RING_OFF+R_M}'); a(f's_add_u32 s{T}, s{T}, {MG_OFF}')
    a(f'buffer_store_dwordx4 {vr(V_Z,4)}, v{V_L16}, {ws}, s{T+1} offen sc1'); a(f'buffer_store_dwordx4 {vr(V_Z,4)}, v{V_L16}, {ws}, s{T} offen sc1')
    a.label(n4)
    if P['tq']:
        a(f'v_lshlrev_b32 v{V_X}, 7, v{L}'); srd(a,S_XS,PQKV,448*2688); a(f's_lshl_b32 s{T}, s{S_GW}, 13')
        for k in range(3): a(f'buffer_load_dword v{V_F+k}, v{V_X}, {xs}, s{T} offen'); a(f's_add_u32 s{T}, s{T}, {64*8192}')
        srd(a,S_XS,PWO,448*896); a(f's_lshl_b32 s{T}, s{S_GW}, 13'); a(f'buffer_load_dword v{V_F+3}, v{V_X}, {xs}, s{T} offen')
    a.label(dn)
    a(f's_add_u32 s{S_CNT}, s{S_G}, {FR_INIT}'); dsignal(a,S_CNT,t,True)
```

```python
from asmlib import *
from layout import *
from chain import Cnt, lx, mkidx, wreg, S_RING, S_WS, S_ID, S_W, S_S, S_TO, S_T, SMF, MF, MFH
M32='v_mfma_f32_32x32x16_bf16'
S_OUT=8
S_J=19
WTIME=300000
ws=f's[{S_WS}:{S_WS+3}]'
abort='L_exit'
NV=3; NSW=3

def wpoll(a, voff, soff, tmp, thr, sleep=1):
    lp=a.new('wp'); dn=a.new('wpd')
    a(f's_mov_b32 s{S_TO}, {WTIME}')
    a.label(lp)
    a(f'buffer_load_dword v{tmp}, v{voff}, {ws}, {soff} offen sc1'); a('s_waitcnt vmcnt(0)')
    a(f'v_cmp_gt_u32 vcc, {thr}, v{tmp}'); a(f's_cbranch_vccz {dn}')
    if sleep: a(f's_sleep {sleep}')
    a(f's_sub_u32 s{S_TO}, s{S_TO}, 1'); a(f's_cbranch_scc0 {lp}'); a(f's_branch {abort}')
    a.label(dn)
def wave0(a, fn):
    sk=a.new('w0'); a(f's_cmp_lg_u32 s{S_W}, 0'); a(f's_cbranch_scc1 {sk}'); fn(); a.label(sk)
def setflag(a, vone, voob, soff):
    wave0(a, lambda: a(f'buffer_store_dword v{vone}, v{voob}, {ws}, s{soff} offen sc1'))
def flagregs(a, vone, voob, lane):
    a(f'v_mov_b32 v{vone}, 1'); a(f'v_min_u32 v{voob}, 1, v{lane}'); a(f'v_lshlrev_b32 v{voob}, 30, v{voob}')

V_WV=120
def tl(a,P,r):
    if P.get('tl'): a(f's_memrealtime s[{r}:{r+1}]')
def Wf(n,kk,cnt=4):
    f,r=wreg(n*7+kk//2,32,V_WV); return vr(r+4*(kk%2),cnt,f)
def load_weights(a, off, vl16):
    a(f's_mul_i32 s{S_T}, s{S_ID}, {WMAT}'); a(f's_mul_i32 s{S_T+1}, s{S_W}, {7*KK*1024}'); a(f's_add_u32 s{S_T}, s{S_T}, s{S_T+1}')
    if off: a(f's_add_u32 s{S_T}, s{S_T}, {off}')
    for q in range(98):
        n,kk=divmod(q,14)
        a(f'buffer_load_dwordx4 {Wf(n,kk)}, v{vl16}, {ws}, s{S_T} offen offset:{1024*(q%4)} sc1')
        if q%4==3: a(f's_add_u32 s{S_T}, s{S_T}, 4096')
S_XB=20; S_XS=21
def xdma(a, vl16, sseg):
    a(f's_mul_i32 s{S_T}, s{sseg}, {XF_SEG}'); a(f's_mul_i32 s{S_T+1}, s{S_W}, 7168'); a(f's_add_u32 s{S_T}, s{S_T}, s{S_T+1}'); a(f's_add_u32 s{S_T}, s{S_T}, {XF_OFF}')
    a(f's_add_u32 m0, s{S_T+1}, s{S_XB}')
    for k in range(7):
        if k==4: a(f's_add_u32 s{S_T}, s{S_T}, 4096'); a('s_add_u32 m0, m0, 4096')
        a(f'buffer_load_dwordx4 v{vl16}, {ws}, s{S_T} offen offset:{1024*(k%4)} sc1 lds')
def gemm32(a, vxr, xb, acc, wfirst, fill=None):
    lg=Cnt(a,'lgkmcnt',15)
    def rd(kk):
        for tt in range(2): a(f'ds_read_b128 {vr(xb+8*(kk%2)+4*tt,4)}, v{vxr} offset:{tt*14336+kk*1024}'); lg.issue(f'x{kk}')
    rd(0); rd(1)
    for kk in range(14):
        lg.wait(f'x{kk}')
        for n in range(7):
            for tt in range(2):
                d=vr(acc(tt,n),4); x=vr(xb+8*(kk%2)+4*tt,4)
                A,B=(Wf(n,kk),x) if wfirst else (x,Wf(n,kk))
                a(f'{MF} {d}, {A}, {B}, {d if kk else 0}')
            if n==0 and 1<=kk<13: rd(kk+1)
            if n==3 and fill and kk<len(fill): fill[kk]()

def gen_V(a, P):
    V_L16,V_IDX,V_ONE,V_OOB,V_XR,V_L4,V_PO,V_T = range(8)
    V_ACC=16; V_XB=72; V_M=72
    S_O=22; S_F=24; S_NX=25
    l=V_ACC; t=V_ACC+1
    a(f'v_mov_b32 v{l}, v0'); a(f'v_lshlrev_b32 v{V_L16}, 4, v{l}'); mkidx(a,V_IDX,l,t); flagregs(a,V_ONE,V_OOB,l)
    a(f'v_lshlrev_b32 v{V_L4}, 2, v{l}'); a(f'v_min_u32 v{V_PO}, 55, v{l}'); a(f'v_lshlrev_b32 v{V_PO}, 7, v{V_PO}')
    a(f's_mov_b32 s{S_XB}, 0'); a(f's_mov_b32 s{S_S}, s{S_J}')
    from prep2 import wait_mat, wait_all
    a(f's_add_u32 s{S_O}, s{S_ID}, 16'); wait_mat(a,l,l+1,S_O)
    load_weights(a,WB_OFF,V_L16)
    wait_all(a,l+1)
    xdma(a,V_L16,S_S)
    if P.get('tl'): a('s_waitcnt vmcnt(0)'); tl(a,P,72)
    top=a.new('Vtop'); nf=a.new('nf'); nd=a.new('nd'); done=a.new('Vdone')
    a.label(top)
    a('s_waitcnt vmcnt(0)'); a('s_barrier')
    a(f's_cmp_eq_u32 s{S_S}, s{S_J}'); a(f's_cbranch_scc1 {nf}')
    setflag(a,V_ONE,V_OOB,S_F)
    a.label(nf)
    a(f's_cmp_ge_u32 s{S_S}, {NSEG}'); a(f's_cbranch_scc1 {done}')
    a(f'v_add_u32 v{V_XR}, s{S_XB}, v{V_L16}'); a(f's_xor_b32 s{S_XB}, s{S_XB}, 32768')
    a(f's_add_u32 s{S_NX}, s{S_S}, {NV}'); a(f's_cmp_ge_u32 s{S_NX}, {NSEG}'); a(f's_cbranch_scc1 {nd}')
    xdma(a,V_L16,S_NX)
    a.label(nd)
    acc=lambda tt,n: V_ACC+8*n+4*tt
    gemm32(a,V_XR,V_XB,acc,False)
    a(f's_mul_i32 s{S_O}, s{S_S}, {VX_SEG}'); a(f's_mul_i32 s{S_T}, s{S_W}, {7*H*1024}'); a(f's_add_u32 s{S_O}, s{S_O}, s{S_T}'); a(f's_lshl_b32 s{S_T}, s{S_ID}, 10')
    a(f's_add_u32 s{S_O}, s{S_O}, s{S_T}'); a(f's_add_u32 s{S_O}, s{S_O}, {VX_OFF}')
    for n in range(7):
        x=V_ACC+8*n
        for r in range(4): a(f'v_cvt_pk_bf16_f32 v{x+r}, v{x+2*r}, v{x+2*r+1}')
        a(f'buffer_store_dwordx4 {vr(x,4)}, v{V_L16}, {ws}, s{S_O} offen sc1')
        if n<6: a(f's_add_u32 s{S_O}, s{S_O}, {H*1024}')
    a(f's_lshl_b32 s{S_F}, s{S_S}, 8'); a(f's_lshl_b32 s{S_T}, s{S_ID}, 2'); a(f's_add_u32 s{S_F}, s{S_F}, s{S_T}'); a(f's_add_u32 s{S_F}, s{S_F}, {FL_OFF}')
    a(f's_mov_b32 s{S_S}, s{S_NX}'); a(f's_branch {top}')
    a.label(done); tl(a,P,74)
    a(f's_mov_b32 s{S_S}, s{S_J}')
    t2=a.new('Vm'); lp=a.new('Vmp'); bad=a.new('Vmb'); ok=a.new('Vmo')
    a.label(t2)
    a(f's_lshl_b32 s{S_O}, s{S_S}, 13'); a(f's_add_u32 s{S_O}, s{S_O}, {MG_OFF}'); a(f's_add_u32 s{S_NX}, s{S_O}, 4096'); a(f's_mov_b32 s{S_TO}, {WTIME}')
    for r in range(14): a(f'v_mov_b64 {vr(V_ACC+2*r,2)}, 0')
    a.label(lp)
    a(f'buffer_load_dword v{V_T}, v{V_PO}, {ws}, s{S_O} offen sc1'); a('s_waitcnt vmcnt(0)')
    a(f'v_cmp_eq_u32 vcc, -1, v{V_T}'); a(f's_cbranch_vccnz {bad}')
    for i in range(7): a(f'buffer_load_dwordx4 {vr(V_M+4*i,4)}, v{V_L16}, {ws}, s{S_O if i<4 else S_NX} offen offset:{1024*(i%4)} sc1')
    a('s_waitcnt vmcnt(0)')
    a(f'v_max_u32 v{V_T}, v{V_M}, v{V_M+1}')
    for k in range(1,14): a(f'v_max3_u32 v{V_T}, v{V_T}, v{V_M+2*k}, v{V_M+2*k+1}')
    a(f'v_cmp_eq_u32 vcc, -1, v{V_T}'); a(f's_cbranch_vccz {ok}')
    a.label(bad)
    a('s_sleep 1'); a(f's_sub_u32 s{S_TO}, s{S_TO}, 1'); a(f's_cbranch_scc0 {lp}'); a(f's_branch {abort}')
    a.label(ok)
    a(f's_mul_i32 s{S_O}, s{S_S}, {VM_SEG}'); a(f's_mul_i32 s{S_T}, s{S_W}, {7*H*256}'); a(f's_add_u32 s{S_O}, s{S_O}, s{S_T}'); a(f's_lshl_b32 s{S_T}, s{S_ID}, 8')
    a(f's_add_u32 s{S_O}, s{S_O}, s{S_T}'); a(f's_add_u32 s{S_O}, s{S_O}, {VM_OFF}')
    def fin(n):
        x=V_ACC+4*n
        return [f'v_add_f32 v{x}, v{x}, v{x+2}', f'v_add_f32 v{x+1}, v{x+1}, v{x+3}', f'v_cvt_pk_bf16_f32 v{x}, v{x}, v{x+1}',
                f'buffer_store_dword v{x}, v{V_L4}, {ws}, s{S_O} offen sc1\ns_add_u32 s{S_O}, s{S_O}, {H*256}']
    for n in range(7):
        f=fin(n-1) if n else []
        for i in range(7):
            a(f'{SMF} {vr(V_ACC+4*n,4)}, {vr(V_M+4*i,4)}, {Wf(n,2*i,8)}, v{V_IDX}')
            if i>=2 and f: a(f.pop(0))
    for x in fin(6): a(x)
    a(f's_lshl_b32 s{S_F}, s{S_S}, 8'); a(f's_lshl_b32 s{S_T}, s{S_ID}, 2'); a(f's_add_u32 s{S_F}, s{S_F}, s{S_T}'); a(f's_add_u32 s{S_F}, s{S_F}, {FL_OFF+128}')
    a('s_waitcnt vmcnt(0)'); a('s_barrier')
    setflag(a,V_ONE,V_OOB,S_F)
    a(f's_add_u32 s{S_S}, s{S_S}, {NV}'); a(f's_cmp_lt_u32 s{S_S}, {NSEG}'); a(f's_cbranch_scc1 {t2}')
    a('s_branch L_fin')

def gen_S(a, P):
    V_L16,V_ONE,V_OOB,V_XR,V_KX,V_KXH,V_KM,V_KMH,V_SW,V_SWM,V_SR,V_SRM,V_PX,V_PM,V_NEG,V_T = range(16)
    V_ACC=16; V_XB=72; V_K=88; V_MK=72
    S_O=22; S_F=24; S_NX=25; S_KA=26; S_MK=48
    L_S=65536; RS=176; WSZ=32*RS
    l=V_ACC; t=V_ACC+1; u=V_ACC+2
    a(f'v_mov_b32 v{l}, v0'); a(f'v_lshlrev_b32 v{V_L16}, 4, v{l}'); flagregs(a,V_ONE,V_OOB,l)
    lx(a,V_KX,l,t,[(5,1,10),(4,1,9),(0,4,4)]); lx(a,V_KXH,l,t,[(5,1,9),(4,1,3),(0,4,4)],2048+256)
    a(f's_mul_i32 s{S_T}, s{S_W}, {7*256}')
    lx(a,V_KM,l,t,[(5,1,8),(4,1,5),(1,2,6),(0,1,4)],f's{S_T}'); lx(a,V_KMH,l,t,[(5,1,5),(4,1,3),(1,2,6),(0,1,4)],[f's{S_T}',1536])
    a(f's_mul_i32 s{S_T}, s{S_W}, {WSZ}'); a(f's_add_u32 s{S_T}, s{S_T}, {L_S}')
    lx(a,u,l,t,[(0,4,0)]); a(f'v_mul_u32_u24 v{u}, {RS}, v{u}'); a(f'v_add_u32 v{u}, s{S_T}, v{u}')
    lx(a,V_SW,l,t,[(5,1,6),(4,1,3)]); a(f'v_add_u32 v{V_SW}, v{V_SW}, v{u}'); lx(a,V_SWM,l,t,[(4,1,4)],128); a(f'v_add_u32 v{V_SWM}, v{V_SWM}, v{u}')
    a(f's_mul_i32 s{S_T}, s{S_W}, {8*RS}'); a(f's_add_u32 s{S_T}, s{S_T}, {L_S}')
    lx(a,u,l,t,[(3,3,0)]); a(f'v_mul_u32_u24 v{u}, {RS}, v{u}'); a(f'v_add_u32 v{u}, s{S_T}, v{u}')
    lx(a,V_SR,l,t,[(0,3,4)]); a(f'v_add_u32 v{V_SR}, v{V_SR}, v{u}'); lx(a,V_SRM,l,t,[(0,3,2)],128); a(f'v_add_u32 v{V_SRM}, v{V_SRM}, v{u}')
    a(f's_lshr_b32 s{S_T}, s{S_W}, 1'); a(f's_and_b32 s{S_T+1}, s{S_W}, 1')
    a(f's_lshl_b32 s{S_T+2}, s{S_T}, 4'); a(f's_add_u32 s{S_T+2}, s{S_T+2}, s{S_ID}')
    a(f's_lshl_b32 s{S_T+3}, s{S_T+2}, 10'); a(f's_lshl_b32 s{S_T+4}, s{S_T+1}, 7'); a(f's_add_u32 s{S_T+3}, s{S_T+3}, s{S_T+4}')
    lx(a,V_PX,l,t,[(1,2,8),(3,3,4),(0,1,3)],[f's{S_T+3}',PX_OFF])
    a(f's_lshl_b32 s{S_T+3}, s{S_T+2}, 8'); a(f's_lshl_b32 s{S_T+4}, s{S_T+1}, 5'); a(f's_add_u32 s{S_T+3}, s{S_T+3}, s{S_T+4}')
    lx(a,V_PM,l,t,[(1,2,6),(3,3,2),(0,1,30)],[f's{S_T+3}',PM_OFF])
    a(f's_lshl_b32 s{S_T+3}, s{S_T+1}, 4'); a(f's_lshl_b32 s{S_T+4}, s{S_T}, 2'); a(f's_add_u32 s{S_T+3}, s{S_T+3}, s{S_T+4}')
    lx(a,u,l,t,[(5,1,3),(3,2,0)],f's{S_T+3}'); lx(a,V_T,l,t,[(0,3,2)])
    for r in range(4):
        a(f'v_cmp_le_u32 s[{S_MK+2*r}:{S_MK+2*r+1}], v{V_T}, v{u}'); a(f'v_add_u32 v{V_T}, 1, v{V_T}')
    a(f'v_mov_b32 v{V_NEG}, 0xceabfb8f')
    a(f's_mov_b32 s{S_XB}, 0'); a(f's_mov_b32 s{S_S}, s{S_J}')
    if P.get('sdelay',1):
        lx(a,u,l,t,[(0,4,2)]); a(f's_mov_b32 s{S_O}, {FL_OFF}'); wpoll(a,u,f's{S_O}',V_T,1,sleep=8)
    xdma(a,V_L16,S_S)
    load_weights(a,WA_OFF,V_L16)
    top=a.new('Stop'); nd=a.new('nd'); lp=a.new('Smp'); ok=a.new('Smo')
    a('s_waitcnt vmcnt(0)'); a('s_barrier'); tl(a,P,72)
    a.label(top)
    a(f'v_add_u32 v{V_XR}, s{S_XB}, v{V_L16}'); a(f's_xor_b32 s{S_XB}, s{S_XB}, 32768')
    a(f's_add_u32 s{S_NX}, s{S_S}, {NSW}'); a(f's_cmp_ge_u32 s{S_NX}, {NSEG}'); a(f's_cbranch_scc1 {nd}')
    xdma(a,V_L16,S_NX)
    a.label(nd)
    a(f's_lshl_b32 s{S_KA}, s{S_S}, 15'); a(f's_lshl_b32 s{S_T}, s{S_W}, 13'); a(f's_add_u32 s{S_KA}, s{S_KA}, s{S_T}'); a(f's_add_u32 s{S_KA}, s{S_KA}, {XA_OFF}'); a(f's_add_u32 s{S_KA+1}, s{S_KA}, 4096')
    fill=[]
    for kt in range(2):
        for q in range(3): fill.append(lambda kt=kt,q=q: a(f'buffer_load_dwordx4 {vr(V_K+14*kt+4*q,4)}, v{V_KX}, {ws}, s{S_KA+kt} offen offset:{(q//2)*2048+(q%2)*256} sc1'))
        fill.append(lambda kt=kt: a(f'buffer_load_dwordx2 {vr(V_K+14*kt+12,2)}, v{V_KXH}, {ws}, s{S_KA+kt} offen sc1'))
    acc=lambda tt,n: V_ACC+28*tt+4*n
    gemm32(a,V_XR,V_XB,acc,True,fill)
    def mload():
        for q in range(3): a(f'buffer_load_dwordx4 {vr(V_MK+4*q,4)}, v{V_KM}, {ws}, s{S_O} offen offset:{512*q} sc1')
        a(f'buffer_load_dwordx2 {vr(V_MK+12,2)}, v{V_KMH}, {ws}, s{S_O} offen sc1')
    a(f's_lshl_b32 s{S_O}, s{S_S}, 13'); a(f's_add_u32 s{S_O}, s{S_O}, {MG_OFF}'); a(f's_mov_b32 s{S_TO}, {WTIME}')
    mload()
    for q in range(4):
        for tt in range(2):
            x=acc(tt,2*q); y=x+4
            if q<3:
                a(f'v_cvt_pk_bf16_f32 v{x}, v{x}, v{x+1}'); a(f'v_cvt_pk_bf16_f32 v{x+1}, v{y}, v{y+1}'); a(f'v_cvt_pk_bf16_f32 v{x+2}, v{x+2}, v{x+3}'); a(f'v_cvt_pk_bf16_f32 v{x+3}, v{y+2}, v{y+3}')
            else: a(f'v_cvt_pk_bf16_f32 v{x}, v{x}, v{x+1}'); a(f'v_cvt_pk_bf16_f32 v{x+1}, v{x+2}, v{x+3}')
    S=lambda kt,tt: acc(tt,2*kt+1)
    def s2(kts):
        for q in range(4):
            for kt in kts:
                for tt in range(2):
                    d=vr(S(kt,tt),4); k=(V_K+14*kt if kt<2 else V_MK)+4*q
                    if q<3: a(f'{MF} {d}, {vr(k,4)}, {vr(acc(tt,2*q),4)}, {d if q else 0}')
                    else: a(f'{MFH} {d}, {vr(k,2)}, {vr(acc(tt,6),2)}, {d}')
    a('s_waitcnt vmcnt(4)')
    s2([0,1])
    for tt in range(2):
        if tt: a(f'v_add_u32 v{V_T}, {16*RS}, v{V_SW}')
        for r in range(4): a(f'ds_write2_b32 v{V_T if tt else V_SW}, v{S(0,tt)+r}, v{S(1,tt)+r} offset0:{4*r} offset1:{4*r+1}')
    a.label(lp)
    a('s_waitcnt vmcnt(0)')
    a(f'v_max_u32 v{V_T}, v{V_MK}, v{V_MK+1}')
    for k in range(1,7): a(f'v_max3_u32 v{V_T}, v{V_T}, v{V_MK+2*k}, v{V_MK+2*k+1}')
    a(f'v_cmp_eq_u32 vcc, -1, v{V_T}'); a(f's_cbranch_vccz {ok}')
    a('s_sleep 1'); mload()
    a(f's_sub_u32 s{S_TO}, s{S_TO}, 1'); a(f's_cbranch_scc0 {lp}'); a(f's_branch {abort}')
    a.label(ok); tl(a,P,74)
    s2([2])
    for tt in range(2): a(f'ds_write_b128 v{V_SWM}, {vr(S(2,tt),4)} offset:{tt*16*RS}')
    a('s_waitcnt lgkmcnt(0)'); a('s_barrier')
    R=V_ACC; Rm=V_ACC+16; E=V_ACC+20; t=V_ACC+28
    for w in range(4): a(f'ds_read_b128 {vr(R+4*w,4)}, v{V_SR} offset:{w*WSZ}')
    for w in range(4): a(f'ds_read_b32 v{Rm+w}, v{V_SRM} offset:{w*WSZ}')
    a(f's_lshl_b32 s{S_O}, s{S_S}, 15'); a(f's_lshl_b32 s{S_T+1}, s{S_S}, 13')
    a(f's_lshl_b32 s{S_F}, s{S_S}, 8'); a(f's_lshl_b32 s{S_T}, s{S_ID}, 2'); a(f's_add_u32 s{S_F}, s{S_F}, s{S_T}'); a(f's_add_u32 s{S_F}, s{S_F}, {FL_OFF+64}')
    a('s_waitcnt lgkmcnt(0)')
    pk=lambda d,x,y: a(f'v_pk_add_f32 {vr(d,2)}, {vr(x,2)}, {vr(y,2)}')
    pk(R,R,R+4); pk(R+2,R+2,R+6); pk(R+8,R+8,R+12); pk(R+10,R+10,R+14); pk(Rm,Rm,Rm+2); pk(R,R,R+8); pk(R+2,R+2,R+10); a(f'v_add_f32 v{R+4}, v{Rm}, v{Rm+1}')
    for r in range(4): a(f'v_cndmask_b32 v{R+r}, v{V_NEG}, v{R+r}, s[{S_MK+2*r}:{S_MK+2*r+1}]')
    dpps=['quad_perm:[1,0,3,2]','quad_perm:[2,3,0,1]','row_half_mirror']
    a(f'v_max3_f32 v{t}, v{R}, v{R+1}, v{R+2}'); a(f'v_max3_f32 v{t}, v{t}, v{R+3}, v{R+4}')
    for m in dpps: a(f'v_max_f32_dpp v{t}, v{t}, v{t} {m} row_mask:0xf bank_mask:0xf')
    for k in range(5): a(f'v_sub_f32 v{R+k}, v{R+k}, v{t}')
    for k in (4,0,1,2,3): a(f'v_exp_f32 v{E+k}, v{R+k}')
    a(f'v_mov_b32_dpp v{E+5}, v{E+4} quad_perm:[1,0,3,2] row_mask:0xf bank_mask:0xf')
    pk(t,E,E+2); a(f'v_add_f32 v{t}, v{t}, v{E+4}'); a(f'v_add_f32 v{t}, v{t}, v{t+1}')
    for m in dpps: a(f'v_add_f32_dpp v{t}, v{t}, v{t} {m} row_mask:0xf bank_mask:0xf')
    a(f'v_rcp_f32 v{t}, v{t}')
    for k in range(3): a(f'v_pk_mul_f32 {vr(E+2*k,2)}, {vr(E+2*k,2)}, {vr(t,2)} op_sel_hi:[1,0]')
    for k in range(3): a(f'v_cvt_pk_bf16_f32 v{t+2+k}, v{E+2*k}, v{E+2*k+1}')
    a(f'buffer_store_dwordx2 {vr(t+2,2)}, v{V_PX}, {ws}, s{S_O} offen sc1')
    a(f'buffer_store_dword v{t+4}, v{V_PM}, {ws}, s{S_T+1} offen sc1')
    a('s_waitcnt vmcnt(0)'); a('s_barrier')
    setflag(a,V_ONE,V_OOB,S_F)
    a(f's_mov_b32 s{S_S}, s{S_NX}'); a(f's_cmp_lt_u32 s{S_S}, {NSEG}'); a(f's_cbranch_scc1 {top}')
    a('s_branch L_fin')

def gen_PF(a, P):
    V_PO,V_TH,V_T,V_L,V_HS,V_HV,V_FI=1,2,3,4,5,6,7; V_D=8; V_MO=15; V_MD=20; S_PM=30; S_PG=31; V_L1=36; V_L2=37
    S_O=60; S_R=66
    S_I=28
    t=V_T; NTI=(5+7*P['pfl']+5)//6; assert P['pfl']<=4
    def setup():
        a(f'v_lshlrev_b32 v{V_L}, 7, v0')
        a(f'v_subrev_u32 v{t}, 16, v0'); a(f'v_min_u32 v{t}, 13, v{t}'); a(f'v_lshlrev_b32 v{t}, 2, v{t}'); a(f'v_add_u32 v{t}, {RING_OFF+(R_HP if P["pfp"] else R_HM)}, v{t}')
        a(f'v_lshlrev_b32 v{V_PO}, 2, v0'); a(f'v_add_u32 v{V_PO}, {FL_OFF}, v{V_PO}')
        a('v_cmp_gt_u32 vcc, 16, v0'); a(f'v_cndmask_b32 v{V_PO}, v{t}, v{V_PO}, vcc')
        a(f'v_mov_b32 v{t}, 256'); a(f'v_cndmask_b32 v{V_FI}, 0, v{t}, vcc')
        a(f's_mul_i32 s{S_I}, s{S_ID}, 3'); a(f's_add_u32 s{S_I}, s{S_I}, s{S_W}'); a(f's_sub_u32 s{S_I}, s{S_I}, 1')
        a(f'v_add_u32 v{t}, s{S_I}, v0'); a(f'v_min_u32 v{t}, 1, v{t}'); a(f'v_lshlrev_b32 v{t}, 30, v{t}'); a(f'v_or_b32 v{V_HS}, {R_HM+14*4}, v{t}')
        a(f's_mul_i32 s{S_T}, s{S_ID}, 3072'); a(f'v_lshlrev_b32 v{V_MO}, 4, v0'); a(f'v_add_u32 v{V_MO}, s{S_T}, v{V_MO}')
        a(f's_mov_b32 s{S_PM}, {R_M+8192}'); a(f's_mov_b32 s{S_PG}, {MG_OFF+8192}')
        lx(a,V_L2,0,t,[(5,1,15),(3,2,12),(0,3,7)])
        for k in range(NTI):
            a(f's_add_u32 s{S_T}, s{S_I}, {6*k-5 if k else (6*k-5)&0xffffffff}')
            a(f's_mul_i32 s{S_T+1}, s{S_T}, 37'); a(f's_lshr_b32 s{S_T+1}, s{S_T+1}, 8'); a(f's_mul_i32 s{S_T+2}, s{S_T+1}, 7'); a(f's_sub_u32 s{S_T+2}, s{S_T}, s{S_T+2}')
            a(f's_lshl_b32 s{S_T+2}, s{S_T+2}, 16'); a(f's_lshl_b32 s{S_T+1}, s{S_T+1}, 10'); a(f's_sub_u32 s{S_T+2}, s{S_T+2}, s{S_T+1}'); a(f's_add_u32 s{S_O+k}, s{S_T+2}, {VX_OFF+16384+3072}')
            a(f's_cmp_ge_u32 s{S_T}, {7*P["pfl"]}'); a(f's_cselect_b32 s{S_O+k}, 0x40000000, s{S_O+k}'); a(f's_mov_b32 s{S_R+k}, {VX_SEG}')
        a(f's_cmp_lt_u32 s{S_I}, 5'); a('s_cselect_b64 vcc, -1, 0'); a(f'v_cndmask_b32 v{V_L1}, v{V_L2}, v{V_L}, vcc')
        a(f's_lshl_b32 s{S_T}, s{S_I}, 13'); a(f's_add_u32 s{S_T}, s{S_T}, {XA_OFF+XA_SEG}')
        a(f's_cmp_lt_u32 s{S_I}, 4'); a(f's_cselect_b32 s{S_O}, s{S_T}, s{S_O}'); a(f's_cselect_b32 s{S_R}, {XA_SEG}, s{S_R}')
        a(f's_cmp_eq_u32 s{S_I}, 4'); a(f's_cselect_b32 s{S_O}, {RING_OFF+R_M+2*8192}, s{S_O}'); a(f's_cselect_b32 s{S_R}, 8192, s{S_R}')
        a(f's_lshl_b32 s{S_T}, s{S_ID}, 2'); a(f's_add_u32 s{S_T}, s{S_T}, s{S_W}'); a(f's_lshl_b32 s{S_T+1}, s{S_T}, 14'); a(f's_add_u32 s{S_T+1}, s{S_T+1}, {RING_OFF}')
        a(f'buffer_load_dword v{V_D}, v{V_L}, {ws}, s{S_T+1} offen sc1'); a(f's_add_u32 s{S_T+1}, s{S_T+1}, 8192'); a(f'buffer_load_dword v{V_D}, v{V_L}, {ws}, s{S_T+1} offen sc1')
        a(f's_and_b32 s{S_T}, s{S_T}, 1'); a(f's_lshl_b32 s{S_T}, s{S_T}, 13'); a(f's_add_u32 s{S_T}, s{S_T}, {RING_OFF+R_M}'); a(f'buffer_load_dword v{V_D}, v{V_L}, {ws}, s{S_T} offen sc1')
    def body(sc,tag):
        st=' sc1' if sc else ''
        AH=P['pfah']; LD=P['pfld']
        pub=a.new('PFpub')
        a(f's_cmp_eq_u32 s{S_W}, 0'); a(f's_cbranch_scc1 {pub}')
        a('v_cmp_gt_u32 vcc, 16, v0'); a(f'v_cndmask_b32 v{V_TH}, 0, 1, vcc')
        for k in range(AH): wpoll(a,V_PO,'0',V_T,f'v{V_TH}',sleep=2); a(f'v_add_u32 v{V_PO}, v{V_PO}, v{V_FI}')
        a(f's_mov_b32 s{S_S}, 0')
        top=a.new('PFtop'); sk=a.new('sk')
        a.label(top)
        a(f's_sub_i32 s{S_T}, s{S_S}, {LD-1}'); a(f's_max_i32 s{S_T}, s{S_T}, 0'); a(f'v_mov_b32 v{V_TH}, s{S_T}'); a('v_cmp_gt_u32 vcc, 16, v0'); a(f'v_cndmask_b32 v{V_TH}, v{V_TH}, 1, vcc')
        a(f's_add_u32 s{S_T+1}, s{S_S}, {AH}'); a(f'v_mov_b32 v{V_HV}, s{S_T+1}')
        wpoll(a,V_PO,'0',V_T,f'v{V_TH}',sleep=1)
        a(f'buffer_store_dword v{V_HV}, v{V_HS}, s[{S_RING}:{S_RING+3}], 0 offen{st}')
        for k in range(NTI): a(f'buffer_load_dword v{V_D+k}, v{V_L2 if k else V_L1}, {ws}, s{S_O+k} offen sc1'); a(f's_add_u32 s{S_O+k}, s{S_O+k}, s{S_R+k}')
        a(f's_cmp_ge_u32 s{S_T+1}, {NSEG-1}'); a(f's_cbranch_scc1 {sk}'); a(f'v_add_u32 v{V_PO}, v{V_PO}, v{V_FI}'); a.label(sk)
        a(f's_add_u32 s{S_S}, s{S_S}, 1'); a(f's_cmp_lt_u32 s{S_S}, {NSEG-1}'); a(f's_cbranch_scc1 {top}')
        a('s_branch L_fin')
        a.label(pub)
        a(f's_mov_b32 s{S_S}, 1')
        nx=a.new('pubn'); lp=a.new('pub'); ok=a.new('pubok')
        a.label(nx); a(f's_mov_b32 s{S_TO}, {WTIME}'); a.label(lp)
        for k in range(4): a(f'buffer_load_dwordx4 {vr(V_MD+4*k,4)}, v{V_MO}, s[{S_RING}:{S_RING+3}], s{S_PM} offen offset:{1024*k} sc1')
        a('s_waitcnt vmcnt(0)')
        a(f'v_max_u32 v{V_T}, v{V_MD}, v{V_MD+1}')
        for k in range(1,8): a(f'v_max3_u32 v{V_T}, v{V_T}, v{V_MD+2*k}, v{V_MD+2*k+1}')
        a(f'v_cmp_eq_u32 vcc, -1, v{V_T}'); a(f's_cbranch_vccz {ok}')
        a('s_sleep 2'); a(f's_sub_u32 s{S_TO}, s{S_TO}, 1'); a(f's_cbranch_scc0 {lp}'); a(f's_branch {abort}')
        a.label(ok)
        for k in range(4): a(f'buffer_store_dwordx4 {vr(V_MD+4*k,4)}, v{V_MO}, {ws}, s{S_PG} offen offset:{1024*k} sc1')
        a(f's_add_u32 s{S_PM}, s{S_PM}, 8192'); a(f's_add_u32 s{S_PG}, s{S_PG}, 8192')
        a(f's_add_u32 s{S_S}, s{S_S}, 1'); a(f's_cmp_lt_u32 s{S_S}, {NSEG-1}'); a(f's_cbranch_scc1 {nx}')
        a('s_branch L_fin')
    return setup, body

def gen_G(a, P):
    S_I=26; S_X0=20; S_X1=21; S_WO=27; S_F=24; S_O=22; S_THR=30; S_FLR=31; S_KB=32; S_KO=33
    V_L16,V_ONE,V_OOB,V_XO,V_T,V_T2,V_OO,V_PO,V_L = range(9)
    l=V_L; t=V_T
    a(f'v_mov_b32 v{l}, v0'); a(f'v_lshlrev_b32 v{V_L16}, 4, v{l}'); flagregs(a,V_ONE,V_OOB,l)
    lx(a,V_T2,l,t,[(4,1,0)]); a(f'v_mul_u32_u24 v{V_T2}, 14336, v{V_T2}'); lx(a,V_XO,l,t,[(5,1,8),(0,4,4)]); a(f'v_add_u32 v{V_XO}, v{V_XO}, v{V_T2}')
    lx(a,V_OO,l,t,[(4,1,14),(5,1,8),(0,4,4)])
    a(f's_lshl_b32 s{S_S}, s{S_J}, 3'); a(f's_lshl_b32 s{S_T}, s{S_W}, 1'); a(f's_add_u32 s{S_S}, s{S_S}, s{S_T}')
    a(f's_mul_i32 s{S_X0}, s{S_S}, {XF_SEG}'); a(f's_add_u32 s{S_X0}, s{S_X0}, {XF_OFF}'); a(f's_add_u32 s{S_X1}, s{S_X0}, {XF_SEG}')
    a(f's_mul_i32 s{S_WO}, s{S_ID}, {84*1024}'); a(f's_add_u32 s{S_WO}, s{S_WO}, {WQF_OFF}'); a(f's_add_u32 s{S_WO+1}, s{S_WO}, {28*1024}'); a(f's_add_u32 s{S_WO+2}, s{S_WO}, {56*1024}')
    ACC=16; BUF=112; DEP=5
    acc=lambda b,sel: ACC+48*b+16*sel
    vm=Cnt(a,'vmcnt',63)
    def ld(ks):
        r=BUF+20*(ks%DEP)
        if ks and ks%8==0: a(f's_add_u32 s{S_X0}, s{S_X0}, 4096'); a(f's_add_u32 s{S_X1}, s{S_X1}, 4096')
        if ks and ks%4==0:
            for q in range(3): a(f's_add_u32 s{S_WO+q}, s{S_WO+q}, 4096')
        L=[f'buffer_load_dwordx4 {vr(r+4*b,4)}, v{V_XO}, {ws}, s{S_X0+b} offen offset:{512*(ks%8)} sc1' for b in range(2)]
        L+=[f'buffer_load_dwordx4 {vr(r+8+4*q,4)}, v{V_L16}, {ws}, s{S_WO+q} offen offset:{1024*(ks%4)} sc1' for q in range(3)]
        return L
    for ks in range(DEP-1):
        for x in ld(ks): a(x); vm.issue(f'k{ks}')
    a(f'v_and_b32 v{t}, 31, v{l}'); a(f'v_cmp_eq_u32 vcc, 28, v{t}'); a(f'v_cndmask_b32 v{t}, 0, 1.0, vcc')
    for b in range(2):
        for r in range(16): a(f'v_mov_b32 v{acc(b,2)+r}, v{t}')
    for ks in range(28):
        vm.wait(f'k{ks}'); r=BUF+20*(ks%DEP)
        L=ld(ks+DEP-1) if ks+DEP-1<28 else []
        for b in range(2):
            for sel in range(3):
                d=vr(acc(b,sel),16); x=vr(r+4*b,4); w=vr(r+8+4*sel,4)
                A,B=(w,x) if sel<2 else (x,w)
                a(f'{M32} {d}, {A}, {B}, {d if (ks or sel==2) else 0}')
                if L and (b or sel): a(L.pop(0)); vm.issue(f'k{ks+DEP-1}')
    Q=112
    a(f's_lshl_b32 s{S_O}, s{S_ID}, 6'); a(f's_add_u32 s{S_O}, s{S_O}, s{S_S}'); a(f's_lshl_b32 s{S_O}, s{S_O}, 12'); a(f's_add_u32 s{S_O}, s{S_O}, {KF_OFF}')
    for b in range(2):
        for sel in (1,2):
            x=acc(b,sel)
            for r in range(8): a(f'v_cvt_pk_bf16_f32 v{x+r}, v{x+2*r}, v{x+2*r+1}')
            for f in range(2): a(f'buffer_store_dwordx4 {vr(x+4*f,4)}, v{V_L16}, {ws}, s{S_O} offen offset:{(2*(sel-1)+f)*1024} sc1')
        if b==0: a(f's_add_u32 s{S_O}, s{S_O}, 4096')
    ng=a.new('ng'); a(f's_cmp_lg_u32 s{S_ID}, 0'); a(f's_cbranch_scc1 {ng}')
    a(f's_lshl_b32 s{S_T}, s{S_S}, 7'); a(f's_add_u32 s{S_T}, s{S_T}, {G_OFF}')
    lx(a,V_T2,l,t,[(0,5,2),(5,1,30)]); a(f'v_xor_b32 v{V_T2}, 0x40000000, v{V_T2}')
    for b in range(2):
        y=BUF+20+b
        a(f'v_mul_f32 v{y}, 0xbfb8aa3b, v{acc(b,0)+12}'); a(f'v_exp_f32 v{y}, v{y}'); a(f'v_add_f32 v{y}, 1.0, v{y}'); a(f'v_rcp_f32 v{y}, v{y}'); a('s_nop 0')
        a(f'buffer_store_dword v{y}, v{V_T2}, {ws}, s{S_T} offen offset:{128*b} sc1')
    a.label(ng)
    a(f's_mov_b32 s{S_T}, 0x3e8b97f6')
    for b in range(2):
        x=acc(b,0)
        for r in range(16): a(f'v_mul_f32 v{x+r}, s{S_T}, v{x+r}')
        for r in range(8): a(f'v_cvt_pk_bf16_f32 v{Q+8*b+r}, v{x+2*r}, v{x+2*r+1}')
    a(f's_lshl_b32 s{S_O}, s{S_ID}, 8'); a(f's_add_u32 s{S_O}, s{S_O}, {FK_OFF}'); a(f's_lshl_b32 s{S_F}, s{S_J}, 2'); a(f's_add_u32 s{S_F}, s{S_F}, s{S_O}')
    a('s_waitcnt vmcnt(0)'); a('s_barrier')
    lx(a,V_PO,l,t,[(0,3,2)])
    wave0(a, lambda:(a(f'buffer_store_dword v{V_ONE}, v{V_OOB}, {ws}, s{S_F} offen sc1'), wpoll(a,V_PO,f's{S_O}',V_T,1,sleep=2)))
    a('s_barrier')
    tl(a,P,72)
    S=[16,32]; C=[48,64]; O=[80,96]; Pp=[128,136]; KV=144; NR=4
    kv=lambda i,f: vr(KV+16*(i%NR)+4*f,4)
    a(f's_lshl_b32 s{S_KO}, s{S_ID}, 18'); a(f's_add_u32 s{S_KO}, s{S_KO}, {KF_OFF}')
    kld=lambda i,f: f'buffer_load_dwordx4 {kv(i,f)}, v{V_L16}, {ws}, s{S_KO} offen offset:{1024*f} sc1'
    nxt=f's_add_u32 s{S_KO}, s{S_KO}, 4096'
    for i in range(2):
        for f in range(4): a(kld(i,f))
        a(nxt)
    for r in range(32): a(f'v_mov_b64 {vr(48+2*r,2)}, 0')
    for r in range(4): a(f'v_mov_b64 {vr(Pp[1]+2*r,2)}, 0')
    for r in range(4): a(f'v_mov_b64 {vr(KV+16*(NR-1)+8+2*r,2)}, 0')
    a(f's_mov_b32 s{S_THR}, 0xff800000'); a(f's_mov_b32 s{S_FLR}, 0xff800000'); a(f's_mov_b32 s{S_KB}, 0')
    qk=lambda b,i:[f'{M32} {vr(S[b],16)}, {kv(i,0)}, {vr(Q+8*b,4)}, {vr(C[b],16)}', f'{M32} {vr(S[b],16)}, {kv(i,1)}, {vr(Q+8*b+4,4)}, {vr(S[b],16)}']
    pv=lambda b,i:[f'{M32} {vr(O[b],16)}, {kv(i,2+f)}, {vr(Pp[b]+4*f,4)}, {vr(O[b],16)}' for f in range(2)]
    a('s_waitcnt vmcnt(4)')
    for x in qk(0,0): a(x)
    a('s_nop 15')
    top=a.new('Atop'); a.label(top); ool=[]
    def phase(b, mf, extra):
        s=S[b]; rsc=a.new('rsc'); bk=a.new('rsb')
        a(mf[0])
        a(f'v_max3_f32 v{t}, v{s}, v{s+1}, v{s+2}'); a(f'v_max3_f32 v{V_T2}, v{s+3}, v{s+4}, v{s+5}')
        a(f'v_max3_f32 v{t}, v{t}, v{s+6}, v{s+7}'); a(f'v_max3_f32 v{V_T2}, v{V_T2}, v{s+8}, v{s+9}')
        a(f'v_max3_f32 v{t}, v{t}, v{s+10}, v{s+11}'); a(f'v_max3_f32 v{V_T2}, v{V_T2}, v{s+12}, v{s+13}')
        a(mf[1])
        a(f'v_max3_f32 v{t}, v{t}, v{s+14}, v{s+15}'); a(f'v_max_f32 v{t}, v{t}, v{V_T2}')
        a(f'v_cmp_lt_f32 vcc, s{S_THR}, v{t}')
        for x in extra: a(x)
        a(f's_cbranch_vccnz {rsc}'); a.label(bk)
        for r in range(16):
            a(f'v_exp_f32 v{s+r}, v{s+r}')
            if r==1: a(mf[2])
            if r==5: a(mf[3])
            if r>=9 : a(f'v_cvt_pk_bf16_f32 v{Pp[b]+r-9}, v{s+2*(r-9)}, v{s+2*(r-9)+1}')
        a(f'v_cvt_pk_bf16_f32 v{Pp[b]+7}, v{s+14}, v{s+15}')
        def out():
            a.label(rsc)
            a(f'v_mov_b32 v{V_T2}, v{t}'); a(f'v_permlane32_swap_b32 v{t}, v{V_T2}'); a(f'v_max3_f32 v{t}, v{t}, v{V_T2}, s{S_FLR}')
            a(f'v_max_f32 v{V_T2}, 0, v{t}'); a(f'v_exp_f32 v{V_T2}, -v{V_T2}')
            for r in range(16): a(f'v_sub_f32 v{s+r}, v{s+r}, v{t}')
            for r in range(16): a(f'v_sub_f32 v{C[b]+r}, v{C[b]+r}, v{t}')
            for r in range(16): a(f'v_mul_f32 v{O[b]+r}, v{O[b]+r}, v{V_T2}')
            a(f's_branch {bk}')
        ool.append(out)
    for i in range(NR):
        phase(0, qk(1,i)+pv(1,i-1), [kld(i+2,0),kld(i+2,1)])
        a('s_waitcnt vmcnt(4)')
        phase(1, qk(0,i+1)+pv(0,i), [kld(i+2,2),kld(i+2,3),nxt])
        if i==0: a(f's_mov_b32 s{S_THR}, 0x41000000'); a(f's_mov_b32 s{S_FLR}, 0')
    a(f's_add_u32 s{S_KB}, s{S_KB}, {NR}'); a(f's_cmp_lt_u32 s{S_KB}, 64'); a(f's_cbranch_scc1 {top}')
    for x in pv(1,NR-1): a(x)
    a(f's_lshl_b32 s{S_O}, s{S_S}, 15'); a(f's_lshl_b32 s{S_T}, s{S_ID}, 10'); a(f's_add_u32 s{S_O}, s{S_O}, s{S_T}'); a(f's_add_u32 s{S_O}, s{S_O}, {OF_OFF}')
    for b in range(2):
        o=O[b]
        a(f'v_mov_b32 v{t}, v{o+12}'); a(f'v_mov_b32 v{V_T2}, v{o+12}'); a(f'v_permlane32_swap_b32 v{t}, v{V_T2}'); a(f'v_rcp_f32 v{V_T2}, v{V_T2}')
        for r in range(16): a(f'v_mul_f32 v{o+r}, v{o+r}, v{V_T2}')
        for r in range(8): a(f'v_cvt_pk_bf16_f32 v{o+r}, v{o+2*r}, v{o+2*r+1}')
        for f in range(2): a(f'buffer_store_dwordx4 {vr(o+4*f,4)}, v{V_OO}, {ws}, s{S_O} offen offset:{512*f} sc1')
        if b==0: a(f's_add_u32 s{S_O}, s{S_O}, 32768')
    a(f's_lshl_b32 s{S_F}, s{S_J}, 8'); a(f's_lshl_b32 s{S_T}, s{S_ID}, 2'); a(f's_add_u32 s{S_F}, s{S_F}, s{S_T}'); a(f's_add_u32 s{S_F}, s{S_F}, {FO_OFF}')
    a('s_waitcnt vmcnt(0)'); a('s_barrier')
    setflag(a,V_ONE,V_OOB,S_F)
    ot=a.new('Otask'); a(f's_branch {ot}')
    for o in ool: o()
    a.label(ot); tl(a,P,74)
    a(f's_cmp_ge_u32 s{S_I}, 126'); a('s_cbranch_scc1 L_fin')
    S_CG=20; S_A=21; S_B=27
    V_L4=9; V_G=10; V_CW=12; V_CR=13; V_ST=14; V_PB=15; V_C4=V_XO
    FX=16; FP=80; FM=112; FPM=128; AA=136; AB=168; G1=200
    WO=lambda n,hl: ar(16*n+4*hl,4)
    a(f's_mul_i32 s{S_S}, s{S_I}, 147'); a(f's_lshr_b32 s{S_S}, s{S_S}, 10'); a(f's_mul_i32 s{S_T}, s{S_S}, 7'); a(f's_sub_u32 s{S_CG}, s{S_I}, s{S_T}')
    a(f's_lshl_b32 s{S_T}, s{S_CG}, 16'); a(f's_lshl_b32 s{S_T+1}, s{S_W}, 12'); a(f's_add_u32 s{S_T}, s{S_T}, s{S_T+1}'); a(f's_add_u32 s{S_T}, s{S_T}, {WOF_OFF}')
    for n in range(4):
        for hl in range(4): a(f'buffer_load_dwordx4 {WO(n,hl)}, v{V_L16}, {ws}, s{S_T} offen offset:{1024*hl} sc1')
        a(f's_add_u32 s{S_T}, s{S_T}, 16384')
    a(f'v_lshlrev_b32 v{V_L4}, 2, v{l}'); lx(a,V_C4,l,t,[(0,4,2)]); lx(a,V_PB,l,t,[(0,5,2)],64)
    a(f's_lshl_b32 s{S_T}, s{S_W}, 13'); a(f'v_add_u32 v{V_CW}, s{S_T}, v{V_L16}'); a(f's_lshl_b32 s{S_T}, s{S_W}, 11'); a(f'v_add_u32 v{V_CR}, s{S_T}, v{V_L16}')
    lx(a,V_T2,l,t,[(2,2,3),(0,2,0)]); a(f'v_mul_u32_u24 v{V_T2}, 896, v{V_T2}')
    a(f's_lshl_b32 s{S_T}, s{S_CG}, 7'); a(f's_lshl_b32 s{S_T+1}, s{S_W}, 5'); a(f's_add_u32 s{S_T}, s{S_T}, s{S_T+1}'); lx(a,V_ST,l,t,[(4,2,3)],f's{S_T}'); a(f'v_add_u32 v{V_ST}, v{V_ST}, v{V_T2}')
    top=a.new('Otop'); a.label(top)
    a(f's_lshl_b32 s{S_F}, s{S_S}, 8'); a(f's_add_u32 s{S_F}, s{S_F}, {FL_OFF}')
    a(f's_lshr_b32 s{S_O}, s{S_S}, 3'); a(f's_lshl_b32 s{S_O}, s{S_O}, 8'); a(f's_add_u32 s{S_O}, s{S_O}, {FO_OFF}')
    wave0(a, lambda:(wpoll(a,V_C4,f's{S_O}',V_T,1,sleep=4), wpoll(a,V_C4,f's{S_F}',V_T,1,sleep=4)))
    a('s_barrier')
    a(f's_lshl_b32 s{S_A}, s{S_S}, 15'); a(f's_lshl_b32 s{S_T+1}, s{S_W}, 12'); a(f's_add_u32 s{S_A}, s{S_A}, s{S_T+1}')
    def frags(dst, off):
        a(f's_add_u32 s{S_T}, s{S_A}, {off}')
        for tt in range(2):
            for hl in range(4): a(f'buffer_load_dwordx4 {vr(dst+16*tt+4*hl,4)}, v{V_L16}, {ws}, s{S_T} offen offset:{1024*hl} sc1')
            if tt==0: a(f's_add_u32 s{S_T}, s{S_T}, 16384')
    a(f's_lshl_b32 s{S_T}, s{S_S}, 7'); a(f's_add_u32 s{S_T}, s{S_T}, {G_OFF}')
    for tt in range(2): a(f'buffer_load_dword v{V_G+tt}, v{V_C4}, {ws}, s{S_T} offen offset:{64*tt} sc1')
    frags(FP,OF_OFF)
    a(f's_mul_i32 s{S_T}, s{S_S}, {VX_SEG}'); a(f's_lshl_b32 s{S_T+2}, s{S_CG}, 16'); a(f's_add_u32 s{S_B}, s{S_T}, s{S_T+2}'); a(f's_add_u32 s{S_B}, s{S_B}, s{S_T+1}'); a(f's_add_u32 s{S_T}, s{S_B}, {VX_OFF}')
    for n in range(4):
        for hl in range(4): a(f'buffer_load_dwordx4 {vr(FX+16*n+4*hl,4)}, v{V_L16}, {ws}, s{S_T} offen offset:{1024*hl} sc1')
        if n<3: a(f's_add_u32 s{S_T}, s{S_T}, 16384')
    a('s_waitcnt vmcnt(16)')
    for hl in range(4):
        for n in range(4):
            for tt in range(2):
                d=vr(AA+8*n+4*tt,4); a(f'{MF} {d}, {WO(n,hl)}, {vr(FP+16*tt+4*hl,4)}, {d if hl else 0}')
    for tt in range(2): a(f'v_sub_f32 v{G1+tt}, 1.0, v{V_G+tt}')
    for n in range(4):
        for tt in range(2):
            for r in range(4): a(f'v_mul_f32 v{AA+8*n+4*tt+r}, v{AA+8*n+4*tt+r}, v{V_G+tt}')
    wave0(a, lambda: wpoll(a,V_PB,f's{S_F}',V_T,1,sleep=1))
    a('s_barrier'); tl(a,P,70)
    frags(FP,PX_OFF)
    a(f's_lshr_b32 s{S_T}, s{S_A}, 2'); a(f's_add_u32 s{S_T}, s{S_T}, {PM_OFF}')
    for tt in range(2):
        for hl in range(4): a(f'buffer_load_dword v{FPM+4*tt+hl}, v{V_L4}, {ws}, s{S_T} offen offset:{256*hl} sc1')
        if tt==0: a(f's_add_u32 s{S_T}, s{S_T}, 4096')
    a(f's_lshr_b32 s{S_T}, s{S_B}, 2'); a(f's_add_u32 s{S_T}, s{S_T}, {VM_OFF}')
    for n in range(4):
        for hl in range(4): a(f'buffer_load_dword v{FM+4*n+hl}, v{V_L4}, {ws}, s{S_T} offen offset:{256*hl} sc1')
        if n<3: a(f's_add_u32 s{S_T}, s{S_T}, 4096')
    for tt in range(2):
        for hl in range(4):
            a(f's_waitcnt vmcnt({24+7-4*tt-hl})')
            for n in range(4):
                d=vr(AB+8*n+4*tt,4); a(f'{MF} {d}, {vr(FX+16*n+4*hl,4)}, {vr(FP+16*tt+4*hl,4)}, {d if hl else 0}')
    for n in range(4):
        a(f's_waitcnt vmcnt({12-4*n})')
        for tt in range(2):
            d=vr(AB+8*n+4*tt,4); a(f'{MF} {d}, {vr(FM+4*n,4)}, {vr(FPM+4*tt,4)}, {d}')
    for n in range(4):
        for tt in range(2):
            x=8*n+4*tt
            for r in range(4): a(f'v_fmac_f32 v{AA+x+r}, v{AB+x+r}, v{G1+tt}')
            a(f'ds_write_b128 v{V_CW}, {vr(AA+x,4)} offset:{256*x}')
    a(f's_mul_i32 s{S_O}, s{S_S}, {32*896}')
    a('s_waitcnt lgkmcnt(0)'); a('s_barrier')
    for tt in range(2):
        for w in range(4): a(f'ds_read_b128 {vr(AB+16*tt+4*w,4)}, v{V_CR} offset:{8192*w+1024*tt}')
    for tt in range(2):
        x=AB+16*tt
        a(f's_waitcnt lgkmcnt({4-4*tt})')
        for (d,p,q) in ((0,0,4),(2,2,6),(8,8,12),(10,10,14),(0,0,8),(2,2,10)): a(f'v_pk_add_f32 {vr(x+d,2)}, {vr(x+p,2)}, {vr(x+q,2)}')
        a(f'v_cvt_pk_bf16_f32 v{x}, v{x}, v{x+1}'); a(f'v_cvt_pk_bf16_f32 v{x+1}, v{x+2}, v{x+3}')
        a(f'buffer_store_dwordx2 {vr(x,2)}, v{V_ST}, s[{S_OUT}:{S_OUT+3}], s{S_O} offen offset:{4*896*tt}')
    a(f's_add_u32 s{S_S}, s{S_S}, 18'); a(f's_cmp_lt_u32 s{S_S}, {NSEG}'); a(f's_cbranch_scc1 {top}')
    a('s_branch L_fin')
```

```python
import sys
from asmlib import *
from layout import *
import chain, workers, prep
from chain import *
from workers import *
from prep import srd, kd, PREP_LDS
NAME='gated_mix__softmax_full_mha__memory_aug_recurrent_mem_tr__prompt'
MAIN=NAME+'_kernel'
MAIN_LDS=147456+1024
TICK_LDS=147456
S_DBG=56
def census(a, v, fast, allin):
    lp=a.new('cs'); T=S_T
    a(f's_mov_b32 s{S_TO}, {WTIME}'); a(f'v_mbcnt_lo_u32_b32 v{v}, -1, 0'); a(f'v_cmp_gt_u32 vcc, 8, v{v}'); a(f'v_lshlrev_b32 v{v}, 5, v{v}'); a(f'v_cndmask_b32 v{v}, 4, v{v}, vcc')
    a.label(lp)
    a(f'global_load_dword v{v+1}, v{v}, s[{S_DBG}:{S_DBG+1}] sc1'); a('s_waitcnt vmcnt(0)')
    a(f'v_min_u32 v{v+2}, 32, v{v+1}'); a(f'v_readlane_b32 s{T+1}, v{v+1}, 8')
    for r in range(8):
        a(f'v_readlane_b32 s{T}, v{v+2}, {r}')
        if r==0 and fast: a(f's_cmp_eq_u32 s{T}, 32'); a(f's_cbranch_scc1 {fast}')
        a(f's_add_u32 s{T+1}, s{T+1}, s{T}')
    a(f's_cmp_ge_u32 s{T+1}, 256'); a(f's_cbranch_scc1 {allin}')
    a(f's_sub_u32 s{S_TO}, s{S_TO}, 1'); a(f's_cbranch_scc0 {lp}'); a('s_branch L_exit')
from prep2 import gen_tasks, gen_init, zero_flags, early_touch, wait_mat, wait_all, aggregate, K
def gen_main(a,P):
    nV=16*NV; nS=16*NSW
    a(MAIN+':')
    a(f"""s_cmp_ge_u32 s2, 256
s_cbranch_scc1 L_exit
s_load_dwordx4 s[{S_DBG}:{S_DBG+3}], s[0:1], 96
s_load_dwordx16 s[{K}:{K+15}], s[0:1], 0
s_load_dwordx8 s[{K+16}:{K+23}], s[0:1], 64
s_getreg_b32 s3, hwreg(HW_REG_XCC_ID)
s_and_b32 s3, s3, 15
v_lshrrev_b32 v1, 6, v0
v_and_b32 v0, 63, v0
s_nop 0
v_readfirstlane_b32 s{S_W}, v1""")
    if P.get('tl'): a('s_memrealtime s[100:101]')
    a('s_waitcnt lgkmcnt(0)')
    srd(a,S_OUT,K+22,2048*896); srd(a,S_WS,S_DBG+2,WS_SIZE); srd(a,S_RING,S_DBG+2,RING_SIZE,RING_OFF)
    T=S_T
    a(f"""s_sub_u32 s{T+6}, s3, {P['cx']}
s_and_b32 s{T+6}, s{T+6}, 7
s_mov_b32 s{T+7}, 1
s_cmp_lg_u32 s{S_W}, 0
s_cbranch_scc1 L_t0
s_lshl_b32 s{T+5}, s{T+6}, 5
s_cmp_ge_u32 s3, 8
s_cselect_b32 s{T+5}, 8, s{T+5}
{'s_bitcmp1_b32 s2, 3' if P.get('fo') else ''}
{f's_cselect_b32 s{T+5}, 8, s{T+5}' if P.get('fo') else ''}
s_atomic_add s{T+7}, s[{S_DBG}:{S_DBG+1}], s{T+5} glc
L_t0:""")
    early_touch(a,P,MAIN,P['touch'])
    zero_flags(a)
    a(f"""s_cmp_lg_u32 s{S_W}, 0
s_cbranch_scc1 L_notick
s_waitcnt lgkmcnt(0)
s_lshl_b32 s{T+1}, s{T+6}, 5
s_add_u32 s{T+1}, s{T+1}, s{T+7}
s_cmp_eq_u32 s{T+5}, 8
s_cselect_b32 s{T+7}, 32, s{T+7}
s_cmp_lt_u32 s{T+7}, 32
s_cbranch_scc1 L_gottick
s_mov_b32 s{T+7}, 1
s_atomic_add s{T+7}, s[{S_DBG}:{S_DBG+1}], 4 glc
s_waitcnt lgkmcnt(0)""")
    census(a,12,None,'L_all')
    a('L_all:')
    a(f's_mov_b32 s{T+1}, 0')
    for r in range(8):
        nx=a.new('sl')
        a(f'v_readlane_b32 s{T}, v14, {r}'); a(f's_sub_u32 s{T+2}, 32, s{T}'); a(f's_cmp_lt_u32 s{T+7}, s{T+2}'); a(f's_cbranch_scc0 {nx}')
        a(f's_add_u32 s{T+1}, s{T}, s{T+7}'); a(f's_add_u32 s{T+1}, s{T+1}, {32*r}')
        a.label(nx); a(f's_sub_u32 s{T+7}, s{T+7}, s{T+2}')
    a(f"""L_gottick:
v_mov_b32 v3, s{T+1}
v_mov_b32 v1, {TICK_LDS}
ds_write_b32 v1, v3
s_waitcnt lgkmcnt(0)
L_notick:
s_barrier
v_mov_b32 v1, {TICK_LDS}
ds_read_b32 v3, v1
s_waitcnt lgkmcnt(0)
v_readfirstlane_b32 s{S_G}, v3
s_and_b32 s{S_G}, s{S_G}, 255
{'s_memrealtime s[0:1]' if P.get('tl') else ''}
s_cmp_ge_u32 s{S_G}, 32
s_cbranch_scc1 L_worker""")
    gen_init(a,P)
    if P.get('tl'): a('s_memrealtime s[88:89]')
    a(f"""s_mov_b32 s{S_RETRY}, 0
s_mov_b32 s{S_RETRY2}, 0
s_and_b32 s{S_ID}, s{S_G}, 15
s_cmp_ge_u32 s{S_G}, 30
s_cbranch_scc1 L_rolePF
s_cmp_ge_u32 s{S_G}, 16
s_cbranch_scc1 L_roleB""")
    tl=lambda r: a(f's_memrealtime s[{r}:{r+1}]') if P.get('tl') else None
    def mode(slow, vt):
        fast=a.new('fast'); census(a,vt,fast,slow); a.label(fast); tl(72)
    wait_mat(a,0,16,S_ID); tl(90)
    su,bo=gen_A(a,P); su(); wait_all(a,16); mode('L_Aslow',16); bo(P.get('sc',0),'f'); a.label('L_Aslow'); bo(1,'s')
    a.label('L_roleB')
    a(f's_lshl_b32 s{T+1}, s{S_W}, 2'); a(f's_add_u32 s{T+1}, s{T+1}, 16'); wait_mat(a,0,16,T+1,True); tl(90)
    su,bo=gen_B(a,P); su()
    if P.get('tl'): a('s_waitcnt vmcnt(0)'); tl(74)
    wait_all(a,16)
    a('v_lshrrev_b32 v16, 2, v0'); a('v_and_b32 v16, 63, v16'); a(f's_mov_b32 s{S_T}, {FL_OFF}'); wpoll(a,16,f's{S_T}',17,1)
    mode('L_Bslow',16); bo(P.get('sc',0),'f'); a.label('L_Bslow'); bo(1,'s')
    a.label('L_rolePF'); a(f's_and_b32 s{S_ID}, s{S_G}, 1')
    a(f's_cmp_lg_u32 s{S_ID}, 0'); a('s_cbranch_scc1 L_noagg'); aggregate(a,16); a.label('L_noagg'); wait_all(a,16)
    su,bo=gen_PF(a,P); su(); mode('L_Pslow',16); bo(P.get('sc',0),'f'); a.label('L_Pslow'); bo(1,'s')
    a.label('L_worker')
    gen_tasks(a,P)
    tab=0; nvs=0; ng=0
    for r in range(1,8):
        if r in P['vsx']: tab|=(8|nvs)<<(4*r); nvs+=1
        else: tab|=ng<<(4*r); ng+=1
    assert nvs==3 and ng==4
    a(f"""s_mov_b32 s{S_RETRY}, 0
s_mov_b32 s{S_RETRY2}, 0
s_lshr_b32 s{T}, s{S_G}, 5
s_lshl_b32 s{T}, s{T}, 2
s_lshr_b32 s{T}, {tab}, s{T}
s_and_b32 s{T+1}, s{T}, 3
s_bitcmp1_b32 s{T}, 3
s_cbranch_scc0 L_roleG
s_lshl_b32 s{T+1}, s{T+1}, 4
s_and_b32 s{T+2}, s{S_G}, 15
s_add_u32 s{T+1}, s{T+1}, s{T+2}
s_mul_i32 s{S_ID}, s{T+1}, 21846
s_lshr_b32 s{S_ID}, s{S_ID}, 16
s_mul_i32 s{T+2}, s{S_ID}, 3
s_sub_u32 s{S_J}, s{T+1}, s{T+2}
s_bitcmp1_b32 s{S_G}, 4
s_cbranch_scc1 L_roleS""")
    gen_V(a,P)
    a.label('L_roleS'); wait_all(a,16); gen_S(a,P)
    a.label('L_roleG'); a(f's_lshl_b32 s26, s{T+1}, 5'); a(f's_and_b32 s{T+2}, s{S_G}, 31'); a(f's_add_u32 s26, s26, s{T+2}'); a(f's_lshr_b32 s{S_ID}, s26, 3'); a(f's_and_b32 s{S_J}, s26, 7')
    wait_all(a,16); gen_G(a,P)
    a.label('L_fin')
    if P.get('tl'):
        a('s_memrealtime s[78:79]'); a('s_waitcnt lgkmcnt(0)')
        a(f's_lshl_b32 s{S_T}, s{S_G}, 2'); a(f's_add_u32 s{S_T}, s{S_T}, s{S_W}'); a(f's_lshl_b32 s{S_T}, s{S_T}, 6'); a(f's_add_u32 s{S_T}, s{S_T}, {DBG_OFF}')
        for k,r in enumerate([100,72,74,78,S_RETRY,S_RETRY2,3,70,88,90,92,94,96,98,0,62]): a(f'v_mov_b32 v{20+k}, s{r}')
        a('v_mov_b32 v40, 0')
        for k in range(4): a(f'buffer_store_dwordx4 v[{20+4*k}:{23+4*k}], v40, s[{S_WS}:{S_WS+3}], s{S_T} offen offset:{16*k}')
    a.label('L_exit'); a('s_endpgm')

DEF=dict(chain.DEF); DEF.update(time=0,nhm=15,cx=0,pfah=2,pfld=2,pfl=1,pfp=1,sdelay=1,tl=0,order='BA',touch='',lt=2,tq=1,tcode=1,miscr=1,vsx=(1,2,3))
def full(P):
    b=Asm(); gen_main(b,P); b.lines,_=hazards(b.lines,verbose=P.get('verbose'))
    hdr=open('cdna_kernels/'+NAME+'.s.ref').read().split('; Override launch')[0] if P.get('hdr') else ''
    return hdr+f"""; @launch grid=(256,1,1) block=(256,1,1) lds={MAIN_LDS}
.amdgcn_target "amdgcn-amd-amdhsa--gfx950"
.text
.globl {MAIN}
.p2align 8
.type {MAIN},@function
"""+b.text()+'.section .rodata,"a"\n'+kd(MAIN,512,256)
if __name__=='__main__':
    P=dict(DEF); P.update(eval('dict(%s)'%(sys.argv[2] if len(sys.argv)>2 else ''))); P['hdr']=1
    open(sys.argv[1] if len(sys.argv)>1 else 'full.s','w').write(full(P))
```

```python
import sys
from asmlib import *
from layout import *
import chain, workers, prep
from chain import *
from workers import *
from prep import srd, kd, PREP_LDS
NAME='gated_mix__softmax_full_mha__memory_aug_recurrent_mem_tr__prompt'
MAIN=NAME+'_kernel'
MAIN_LDS=147456+1024
TICK_LDS=147456
S_DBG=56
def census(a, v, fast, allin):
    lp=a.new('cs'); T=S_T
    a(f's_mov_b32 s{S_TO}, {WTIME}'); a(f'v_mbcnt_lo_u32_b32 v{v}, -1, 0'); a(f'v_cmp_gt_u32 vcc, 8, v{v}'); a(f'v_lshlrev_b32 v{v}, 5, v{v}'); a(f'v_cndmask_b32 v{v}, 4, v{v}, vcc')
    a.label(lp)
    a(f'global_load_dword v{v+1}, v{v}, s[{S_DBG}:{S_DBG+1}] sc1'); a('s_waitcnt vmcnt(0)')
    a(f'v_min_u32 v{v+2}, 32, v{v+1}'); a(f'v_readlane_b32 s{T+1}, v{v+1}, 8')
    for r in range(8):
        a(f'v_readlane_b32 s{T}, v{v+2}, {r}')
        if r==0 and fast: a(f's_cmp_eq_u32 s{T}, 32'); a(f's_cbranch_scc1 {fast}')
        a(f's_add_u32 s{T+1}, s{T+1}, s{T}')
    a(f's_cmp_ge_u32 s{T+1}, 256'); a(f's_cbranch_scc1 {allin}')
    a(f's_sub_u32 s{S_TO}, s{S_TO}, 1'); a(f's_cbranch_scc0 {lp}'); a('s_branch L_exit')
from prep2 import gen_tasks, gen_init, zero_flags, early_touch, wait_mat, wait_all, aggregate, K
def gen_main(a,P):
    nV=16*NV; nS=16*NSW
    a(MAIN+':')
    a(f"""s_cmp_ge_u32 s2, 256
s_cbranch_scc1 L_exit
s_load_dwordx4 s[{S_DBG}:{S_DBG+3}], s[0:1], 96
s_load_dwordx16 s[{K}:{K+15}], s[0:1], 0
s_load_dwordx8 s[{K+16}:{K+23}], s[0:1], 64
s_getreg_b32 s3, hwreg(HW_REG_XCC_ID)
s_and_b32 s3, s3, 15
v_lshrrev_b32 v1, 6, v0
v_and_b32 v0, 63, v0
s_nop 0
v_readfirstlane_b32 s{S_W}, v1""")
    if P.get('tl'): a('s_memrealtime s[100:101]')
    a('s_waitcnt lgkmcnt(0)')
    srd(a,S_OUT,K+22,2048*896); srd(a,S_WS,S_DBG+2,WS_SIZE); srd(a,S_RING,S_DBG+2,RING_SIZE,RING_OFF)
    T=S_T
    a(f"""s_sub_u32 s{T+6}, s3, {P['cx']}
s_and_b32 s{T+6}, s{T+6}, 7
s_mov_b32 s{T+7}, 1
s_cmp_lg_u32 s{S_W}, 0
s_cbranch_scc1 L_t0
s_lshl_b32 s{T+5}, s{T+6}, 5
s_cmp_ge_u32 s3, 8
s_cselect_b32 s{T+5}, 8, s{T+5}
{'s_bitcmp1_b32 s2, 3' if P.get('fo') else ''}
{f's_cselect_b32 s{T+5}, 8, s{T+5}' if P.get('fo') else ''}
s_atomic_add s{T+7}, s[{S_DBG}:{S_DBG+1}], s{T+5} glc
L_t0:""")
    early_touch(a,P,MAIN,P['touch'])
    zero_flags(a)
    a(f"""s_cmp_lg_u32 s{S_W}, 0
s_cbranch_scc1 L_notick
s_waitcnt lgkmcnt(0)
s_lshl_b32 s{T+1}, s{T+6}, 5
s_add_u32 s{T+1}, s{T+1}, s{T+7}
s_cmp_eq_u32 s{T+5}, 8
s_cselect_b32 s{T+7}, 32, s{T+7}
s_cmp_lt_u32 s{T+7}, 32
s_cbranch_scc1 L_gottick
s_mov_b32 s{T+7}, 1
s_atomic_add s{T+7}, s[{S_DBG}:{S_DBG+1}], 4 glc
s_waitcnt lgkmcnt(0)""")
    census(a,12,None,'L_all')
    a('L_all:')
    a(f's_mov_b32 s{T+1}, 0')
    for r in range(8):
        nx=a.new('sl')
        a(f'v_readlane_b32 s{T}, v14, {r}'); a(f's_sub_u32 s{T+2}, 32, s{T}'); a(f's_cmp_lt_u32 s{T+7}, s{T+2}'); a(f's_cbranch_scc0 {nx}')
        a(f's_add_u32 s{T+1}, s{T}, s{T+7}'); a(f's_add_u32 s{T+1}, s{T+1}, {32*r}')
        a.label(nx); a(f's_sub_u32 s{T+7}, s{T+7}, s{T+2}')
    a(f"""L_gottick:
v_mov_b32 v3, s{T+1}
v_mov_b32 v1, {TICK_LDS}
ds_write_b32 v1, v3
s_waitcnt lgkmcnt(0)
L_notick:
s_barrier
v_mov_b32 v1, {TICK_LDS}
ds_read_b32 v3, v1
s_waitcnt lgkmcnt(0)
v_readfirstlane_b32 s{S_G}, v3
s_and_b32 s{S_G}, s{S_G}, 255
{'s_memrealtime s[0:1]' if P.get('tl') else ''}
s_cmp_ge_u32 s{S_G}, 32
s_cbranch_scc1 L_worker""")
    gen_init(a,P)
    if P.get('tl'): a('s_memrealtime s[88:89]')
    a(f"""s_mov_b32 s{S_RETRY}, 0
s_mov_b32 s{S_RETRY2}, 0
s_and_b32 s{S_ID}, s{S_G}, 15
s_cmp_ge_u32 s{S_G}, 30
s_cbranch_scc1 L_rolePF
s_cmp_ge_u32 s{S_G}, 16
s_cbranch_scc1 L_roleB""")
    tl=lambda r: a(f's_memrealtime s[{r}:{r+1}]') if P.get('tl') else None
    def mode(slow, vt):
        fast=a.new('fast'); census(a,vt,fast,slow); a.label(fast); tl(72)
    wait_mat(a,0,16,S_ID); tl(90)
    su,bo=gen_A(a,P); su(); wait_all(a,16); mode('L_Aslow',16); bo(P.get('sc',0),'f'); a.label('L_Aslow'); bo(1,'s')
    a.label('L_roleB')
    a(f's_lshl_b32 s{T+1}, s{S_W}, 2'); a(f's_add_u32 s{T+1}, s{T+1}, 16'); wait_mat(a,0,16,T+1,True); tl(90)
    su,bo=gen_B(a,P); su()
    if P.get('tl'): a('s_waitcnt vmcnt(0)'); tl(74)
    wait_all(a,16)
    a('v_lshrrev_b32 v16, 2, v0'); a('v_and_b32 v16, 63, v16'); a(f's_mov_b32 s{S_T}, {FL_OFF}'); wpoll(a,16,f's{S_T}',17,1)
    mode('L_Bslow',16); bo(P.get('sc',0),'f'); a.label('L_Bslow'); bo(1,'s')
    a.label('L_rolePF'); a(f's_and_b32 s{S_ID}, s{S_G}, 1')
    a(f's_cmp_lg_u32 s{S_ID}, 0'); a('s_cbranch_scc1 L_noagg'); aggregate(a,16); a.label('L_noagg'); wait_all(a,16)
    su,bo=gen_PF(a,P); su(); mode('L_Pslow',16); bo(P.get('sc',0),'f'); a.label('L_Pslow'); bo(1,'s')
    a.label('L_worker')
    gen_tasks(a,P)
    tab=0; nvs=0; ng=0
    for r in range(1,8):
        if r in P['vsx']: tab|=(8|nvs)<<(4*r); nvs+=1
        else: tab|=ng<<(4*r); ng+=1
    assert nvs==3 and ng==4
    a(f"""s_mov_b32 s{S_RETRY}, 0
s_mov_b32 s{S_RETRY2}, 0
s_lshr_b32 s{T}, s{S_G}, 5
s_lshl_b32 s{T}, s{T}, 2
s_lshr_b32 s{T}, {tab}, s{T}
s_and_b32 s{T+1}, s{T}, 3
s_bitcmp1_b32 s{T}, 3
s_cbranch_scc0 L_roleG
s_lshl_b32 s{T+1}, s{T+1}, 4
s_and_b32 s{T+2}, s{S_G}, 15
s_add_u32 s{T+1}, s{T+1}, s{T+2}
s_mul_i32 s{S_ID}, s{T+1}, 21846
s_lshr_b32 s{S_ID}, s{S_ID}, 16
s_mul_i32 s{T+2}, s{S_ID}, 3
s_sub_u32 s{S_J}, s{T+1}, s{T+2}
s_bitcmp1_b32 s{S_G}, 4
s_cbranch_scc1 L_roleS""")
    gen_V(a,P)
    a.label('L_roleS'); wait_all(a,16); gen_S(a,P)
    a.label('L_roleG'); a(f's_lshl_b32 s26, s{T+1}, 5'); a(f's_and_b32 s{T+2}, s{S_G}, 31'); a(f's_add_u32 s26, s26, s{T+2}'); a(f's_lshr_b32 s{S_ID}, s26, 3'); a(f's_and_b32 s{S_J}, s26, 7')
    wait_all(a,16); gen_G(a,P)
    a.label('L_fin')
    if P.get('tl'):
        a('s_memrealtime s[78:79]'); a('s_waitcnt lgkmcnt(0)')
        a(f's_lshl_b32 s{S_T}, s{S_G}, 2'); a(f's_add_u32 s{S_T}, s{S_T}, s{S_W}'); a(f's_lshl_b32 s{S_T}, s{S_T}, 6'); a(f's_add_u32 s{S_T}, s{S_T}, {DBG_OFF}')
        for k,r in enumerate([100,72,74,78,S_RETRY,S_RETRY2,3,70,88,90,92,94,96,98,0,62]): a(f'v_mov_b32 v{20+k}, s{r}')
        a('v_mov_b32 v40, 0')
        if P.get('dbgtl'):
            gx=[r for r in range(1,8) if r not in P['vsx']]; gid=32*gx[1]+31; vid=32*P['vsx'][0]
            for wid,items in ((0,[(3,20),(4,29),(5,21),(6,23)]),(16,[(7,21)]),(gid,[(9,23),(10,28),(11,30),(12,33),(14,21),(15,22)]),(vid,[(13,21)])):
                sk=a.new('dt'); a(f's_cmp_lg_u32 s{S_G}, {wid}'); a(f's_cbranch_scc1 {sk}')
                for dw,v in items: a(f'global_store_dword v40, v{v}, s[{S_DBG}:{S_DBG+1}] offset:{4*dw}')
                a.label(sk)
        for k in range(4): a(f'buffer_store_dwordx4 v[{20+4*k}:{23+4*k}], v40, s[{S_WS}:{S_WS+3}], s{S_T} offen offset:{16*k}')
    a.label('L_exit'); a('s_endpgm')

DEF=dict(chain.DEF); DEF.update(time=0,nhm=15,cx=0,pfah=2,pfld=2,pfl=1,pfp=1,sdelay=1,tl=0,order='BA',touch='',lt=2,tq=1,tcode=1,miscr=1,vsx=(2,4,6))
def full(P):
    b=Asm(); gen_main(b,P); b.lines,_=hazards(b.lines,verbose=P.get('verbose'))
    hdr=open('cdna_kernels/'+NAME+'.s.ref').read().split('; Override launch')[0] if P.get('hdr') else ''
    return hdr+f"""; @launch grid=(256,1,1) block=(256,1,1) lds={MAIN_LDS}
.amdgcn_target "amdgcn-amd-amdhsa--gfx950"
.text
.globl {MAIN}
.p2align 8
.type {MAIN},@function
"""+b.text()+'.section .rodata,"a"\n'+kd(MAIN,512,256)
if __name__=='__main__':
    P=dict(DEF); P.update(eval('dict(%s)'%(sys.argv[2] if len(sys.argv)>2 else ''))); P['hdr']=1
    open(sys.argv[1] if len(sys.argv)>1 else 'full.s','w').write(full(P))
```

```python
from asmlib import *
from layout import *

class Cnt:
    def __init__(self, a, name, mx): self.a=a; self.name=name; self.q=[]; self.mx=mx
    def issue(self, tag): self.q.append(tag)
    def wait(self, tag):
        idx = max(i for i,t in enumerate(self.q) if t==tag) if tag in self.q else None
        if idx is None: return
        n = len(self.q)-1-idx
        assert n <= self.mx, (self.name, n)
        self.a(f's_waitcnt {self.name}({n})')
        self.q = self.q[idx+1:]
    def all(self):
        self.a(f's_waitcnt {self.name}(0)'); self.q=[]
    def reset(self): self.q=[]

SMF='v_smfmac_f32_16x16x64_bf16'
MF='v_mfma_f32_16x16x32_bf16'
MFH='v_mfma_f32_16x16x16_bf16'
S_RING=4; S_X=8; S_WS=12
S_ID=16; S_W=17; S_S=18; S_CUR=19; S_NXT=20; S_OLD=21; S_EXP=22; S_TO=23; S_CH=24
S_T=34
S_RETRY=42; S_RETRY2=43; S_BOUND=44; S_XO=45; S_G=46;S_G2=47
S_ST=84
TIMEOUT=200000

def poll_ld(a, voff, soff, tmp, i):
    a(f'buffer_load_dword v{tmp+i}, v{voff}, s[{S_RING}:{S_RING+3}], 0 offen sc1')
def poll(a, voff, soff, tmp, D, abort, gap=4, pre=True, sexp=None):
    lp=a.new('poll'); dn=a.new('polld')
    a(f's_mov_b32 s{S_TO}, {TIMEOUT}')
    for i in range(D):
        if not pre: break
        poll_ld(a,voff,soff,tmp,i)
        if i<D-1: a(f's_nop {gap}')
    a.label(lp)
    for i in range(D):
        a(f's_waitcnt vmcnt({D-1})')
        a(f'v_cmp_gt_u32 vcc, s{sexp or S_EXP}, v{tmp+i}')
        poll_ld(a,voff,soff,tmp,i)
        if i==D-1: a(f's_sub_u32 s{S_TO}, s{S_TO}, 1')
        a(f's_cbranch_vccz {dn}')
    a(f's_cbranch_scc0 {lp}')
    a(f's_branch {abort}')
    a.label(dn)

S_MC=48; S_MN=49; S_MA=50; S_K4=63; S_CU2=53
def k4(k): return f's{S_K4+k}' if k else '0'
def k4init(a):
    for k in range(1,8): a(f's_mov_b32 s{S_K4+k}, {4096*k}')
def slots(a):
    a(f's_lshl_b32 s{S_MC}, s{S_S}, 13'); a(f's_add_u32 s{S_MC}, s{S_MC}, {R_M}'); a(f's_add_u32 s{S_MN}, s{S_MC}, 8192'); a(f's_add_u32 s{S_MA}, s{S_MC}, {3*8192}')
    a(f's_and_b32 s{S_T}, s{S_S}, 3'); a(f's_lshl_b32 s{S_CUR}, s{S_T}, 15')
    a(f's_add_u32 s{S_EXP}, s{S_S}, 1')
    a(f's_add_u32 s{S_T}, s{S_S}, 3'); a(f's_and_b32 s{S_T}, s{S_T}, 3'); a(f's_lshl_b32 s{S_OLD}, s{S_T}, 15')

def stamp(a, P, i):
    if P.get('stamps'): a(f's_memtime s[{S_ST+2*i}:{S_ST+2*i+1}]')

def dump_stamps(a, P, n, vt):
    if not P.get('stamps'): return
    a(f's_memtime s[72:73]'); a(f's_memrealtime s[74:75]')
    a(f's_lshl_b32 s78, s{S_W}, 6'); a(f's_add_u32 s78, s78, s{S_S}'); a(f's_lshl_b32 s78, s78, 6'); a(f's_add_u32 s78, s78, 98304')
    a(f'v_lshrrev_b32 v{vt+1}, 2, v0'); a(f'v_add_u32 v{vt+1}, s78, v{vt+1}')
    a('s_waitcnt lgkmcnt(0)')
    a(f'v_writelane_b32 v{vt}, s72, 8'); a(f'v_writelane_b32 v{vt}, s74, 9')
    for i in range(n): a(f'v_writelane_b32 v{vt}, s{S_ST+2*i}, {i}')
    a('s_mov_b64 exec, 0x3ff')
    a(f'ds_write_b32 v{vt+1}, v{vt}')
    a('s_mov_b64 exec, -1')
def flush_stamps(a, P):
    if not P.get('stamps'): return
    sk=a.new('fs'); a(f's_cmp_ge_u32 s{S_G}, 30'); a(f's_cbranch_scc1 {sk}')
    a(f's_lshl_b32 s78, s{S_W}, 12'); a(f's_add_u32 s79, s78, 98304'); a('v_add_u32 v20, s79, v0')
    a(f's_lshl_b32 s79, s{S_G}, 14'); a('s_add_u32 s78, s78, s79'); a(f's_add_u32 s78, s78, {DBG_OFF+65536}')
    a('s_waitcnt vmcnt(0) lgkmcnt(0)')
    for k in range(4): a(f'ds_read_b128 v[{24+4*k}:{27+4*k}], v20 offset:{1024*k}')
    a('s_waitcnt lgkmcnt(0)')
    for k in range(4): a(f'buffer_store_dwordx4 v[{24+4*k}:{27+4*k}], v0, s[{S_WS}:{S_WS+3}], s78 offen offset:{1024*k}')
    a.label(sk)

def wreg(f, nag, vbase):
    return ('a', 8*f) if f<nag else ('v', vbase+8*(f-nag))


def lx(a, dst, lane, tmp, terms, add=None):
    first=True
    for lo,n,sh in terms:
        a(f'v_bfe_u32 v{tmp}, v{lane}, {lo}, {n}')
        if first: a(f'v_lshlrev_b32 v{dst}, {sh}, v{tmp}')
        else: a(f'v_lshl_add_u32 v{dst}, v{tmp}, {sh}, v{dst}')
        first=False
    if add is not None:
        for x in (add if isinstance(add,list) else [add]):
            if x!=0: a(f'v_add_u32 v{dst}, {x}, v{dst}')
def mkidx(a, dst, lane, tmp):
    a(f'v_bfe_u32 v{tmp}, v{lane}, 1, 1'); a(f'v_mov_b32 v{dst}, 0xaaaa'); a(f'v_mul_u32_u24 v{dst}, v{dst}, v{tmp}'); a(f'v_add_u32 v{dst}, 0x4444, v{dst}')
def modadd(a, dst, src, i, m, t):
    a(f's_add_u32 s{dst}, s{src}, {i}'); a(f's_cmp_ge_u32 s{dst}, {m}'); a(f's_cselect_b32 s{t}, {m}, 0'); a(f's_sub_u32 s{dst}, s{dst}, s{t}')

def gen_A(a, P):
    V_L16,V_IDX,V_QW,V_QW6,V_QR,V_KA,V_SXW,V_SMW,V_PX,V_PM,V_HP,V_MA,V_HV,V_SXR,V_SMR = range(15)
    V_M=16; V_ACC=44; V_XO=72; V_MK=104; V_WV=120
    V_T=V_MK; V_LR=15; S_D=51; L_M=16384
    V_S=V_M; Q=[V_ACC+4, V_ACC+12]
    L_Q=0; L_SX=8192; L_SM=12288; L_X=16384
    S_FLAG=S_CH+8; S_XN=S_CH+9
    abort='L_exit'; NS=P['sm']
    PW=2
    W=lambda n,i: vr(wreg(n*7+i,32,V_WV)[1],8,wreg(n*7+i,32,V_WV)[0])
    ring=f's[{S_RING}:{S_RING+3}]'; ws=f's[{S_WS}:{S_WS+3}]'
    def setup():
        l=V_M; t=V_M+1; u=V_M+2
        a(f'v_mov_b32 v{l}, v0')
        a(f'v_lshlrev_b32 v{V_L16}, 4, v{l}')
        mkidx(a,V_IDX,l,t)
        a(f's_lshl_b32 s{S_T}, s{S_W}, 11')
        lx(a,u,l,t,[(2,2,0),(4,2,0)]); a(f'v_and_b32 v{u}, 3, v{u}'); lx(a,V_QW,l,t,[(0,4,5)],f's{S_T}'); a(f'v_lshl_add_u32 v{V_QW}, v{u}, 3, v{V_QW}')
        lx(a,u,l,t,[(3,1,0),(4,2,0)]); a(f'v_and_b32 v{u}, 3, v{u}'); lx(a,V_QW6,l,t,[(3,1,7),(2,1,6),(0,1,5),(1,1,2)],f's{S_T}'); a(f'v_lshl_add_u32 v{V_QW6}, v{u}, 3, v{V_QW6}')
        lx(a,u,l,t,[(0,2,0),(4,2,0)]); a(f'v_and_b32 v{u}, 3, v{u}'); lx(a,V_QR,l,t,[(2,4,5)],f's{S_T}'); a(f'v_lshl_add_u32 v{V_QR}, v{u}, 3, v{V_QR}')
        lx(a,u,l,t,[(0,6,2)],[f's{S_T}',1536+256]); a(f'v_mov_b32 v{t}, 0'); a(f'ds_write_b32 v{u}, v{t}')
        a(f's_mul_i32 s{S_T+1}, s{S_W}, {7*256}'); lx(a,V_KA,l,t,[(4,1,9),(5,1,5),(1,2,6),(0,1,4)],[f's{S_T+1}',L_M])
        lx(a,u,l,t,[(0,6,2)],L_M+7168); a(f'v_mov_b32 v{t}, 0'); a(f'ds_write_b32 v{u}, v{t}')
        a(f's_lshl_b32 s{S_D}, s{S_W}, 10'); a(f's_add_u32 s{S_D+1}, s{S_D}, 4096'); a(f's_min_u32 s{S_D+1}, s{S_D+1}, 6144')
        a(f's_lshl_b32 s{S_T+1}, s{S_W}, 10'); lx(a,V_SXW,l,t,[(4,2,8),(0,4,3)],[f's{S_T+1}',L_SX])
        a(f's_lshl_b32 s{S_T+1}, s{S_W}, 2'); lx(a,V_SMW,l,t,[(0,6,4)],[f's{S_T+1}',L_SM])
        a(f's_lshr_b32 s{S_T+1}, s{S_ID}, 2'); a(f's_lshl_b32 s{S_T+1}, s{S_T+1}, 10'); a(f's_and_b32 s{S_T+2}, s{S_ID}, 1'); a(f's_lshl_b32 s{S_T+2}, s{S_T+2}, 9'); a(f's_add_u32 s{S_T+1}, s{S_T+1}, s{S_T+2}')
        a(f's_and_b32 s{S_T+2}, s{S_ID}, 2'); a(f's_lshl_b32 s{S_T+2}, s{S_T+2}, 11'); a(f's_add_u32 s{S_T+1}, s{S_T+1}, s{S_T+2}')
        a(f's_lshr_b32 s{S_T+3}, s{S_ID}, 1'); a(f's_lshl_b32 s{S_T+3}, s{S_T+3}, 8'); a(f's_and_b32 s{S_T+2}, s{S_ID}, 1'); a(f's_lshl_b32 s{S_T+2}, s{S_T+2}, 3')
        a(f's_add_u32 s{S_T+3}, s{S_T+3}, s{S_T+2}')
        if NS==1:
            lx(a,V_PX,l,t,[(2,1,8),(4,2,6),(1,1,5),(3,1,4),(0,1,3)],[f's{S_T+1}',R_P])
            lx(a,V_PM,l,t,[(1,2,6),(4,2,4),(3,1,2),(0,1,30)],[f's{S_T+3}',R_PM])
        else:
            a(f's_and_b32 s{S_T+2}, s{S_W}, 1')
            a(f's_lshl_b32 s{S_T+4}, s{S_T+2}, 7'); lx(a,V_PX,l,t,[(3,1,8),(5,1,6),(2,1,5),(4,1,4),(0,2,2)],[f's{S_T+1}',f's{S_T+4}',R_P])
            a(f's_lshl_b32 s{S_T+4}, s{S_T+2}, 5'); lx(a,V_PM,l,t,[(1,2,6),(5,1,4),(4,1,2),(0,1,30),(3,1,29)],[f's{S_T+3}',f's{S_T+4}',R_PM])
            a(f's_lshl_b32 s{S_T+4}, s{S_T+2}, 9'); lx(a,V_SXR,l,t,[(0,6,3)],[f's{S_T+4}',L_SX]); lx(a,V_SMR,l,t,[(4,2,7),(0,3,4)],[f's{S_T+4}',L_SM])
        a(f's_lshl_b32 s{S_T+1}, s{S_ID}, 2'); a(f's_add_u32 s{S_T+1}, s{S_T+1}, {R_HP}')
        a(f'v_add_u32 v{t}, s{S_W}, v{l}'); a(f'v_min_u32 v{t}, 1, v{t}'); a(f'v_lshlrev_b32 v{t}, 30, v{t}'); a(f'v_or_b32 v{V_HP}, s{S_T+1}, v{t}')
        sk=a.new('sk'); a(f's_cmp_lg_u32 s{S_W}, {PW}'); a(f's_cbranch_scc1 {sk}')
        a(f'v_min_u32 v{V_HP}, {P["nhm"]-1}, v{l}'); a(f'v_lshlrev_b32 v{V_HP}, 2, v{V_HP}'); a(f'v_add_u32 v{V_HP}, {R_HM}, v{V_HP}')
        a.label(sk)
        a(f's_mov_b32 s{S_BOUND}, 0x42700000')
        a(f's_add_u32 s{S_G2}, s{S_W}, s{S_ID}'); a(f's_mul_i32 s{S_T+1}, s{S_G2}, 52'); a(f's_lshr_b32 s{S_T+1}, s{S_T+1}, 8')
        a(f's_mul_i32 s{S_T+1}, s{S_T+1}, 5'); a(f's_sub_u32 s{S_G2}, s{S_G2}, s{S_T+1}')
        a(f's_lshl_b32 s{S_T+1}, s{S_G2}, 10'); a(f's_add_u32 s{S_T+1}, s{S_T+1}, {L_M}'); a(f'v_add_u32 v{V_LR}, s{S_T+1}, v{V_L16}')
        modadd(a,S_G2,S_G2,3,7,S_T+2)
        a(f's_mul_i32 s{S_T}, s{S_ID}, {WMAT}'); a(f's_mul_i32 s{S_T+1}, s{S_W}, {7*KK*1024}'); a(f's_add_u32 s{S_T}, s{S_T}, s{S_T+1}')
        if WA_OFF: a(f's_add_u32 s{S_T}, s{S_T}, {WA_OFF}')
        for i in range(7):
            modadd(a,S_T+1,S_G2,i,7,S_T+2)
            a(f's_lshl_b32 s{S_CH+i}, s{S_T+1}, 10')
            a(f's_lshl_b32 s{S_T+1}, s{S_T+1}, 11'); a(f's_add_u32 s{S_T+1}, s{S_T+1}, s{S_T}')
            for n in range(7):
                f,r=wreg(n*7+i,32,V_WV)
                a(f'buffer_load_dwordx4 {vr(r,4,f)}, v{V_L16}, {ws}, s{S_T+1} offen sc1')
                a(f'buffer_load_dwordx4 {vr(r+4,4,f)}, v{V_L16}, {ws}, s{S_T+1} offen offset:1024 sc1')
                if n<6: a(f's_add_u32 s{S_T+1}, s{S_T+1}, {KK*1024}')
    V_XB=V_SXR; assert NS==1
    xld=lambda k: f'buffer_load_dwordx4 {vr(V_XO+4*k,4)}, v{V_XB}, {ws}, {k4(k)} offen sc1'
    def arm():
        t=V_MK+8
        a(f'v_mov_b64 {vr(t,2)}, -1'); a(f'v_mov_b64 {vr(t+2,2)}, -1'); a(f's_max_u32 s{S_T}, s{S_W}, 1'); a(f's_lshl_b32 s{S_T}, s{S_T}, 11'); a(f'v_add_u32 v{t+4}, s{S_T}, v{V_L16}')
        for k in range(3): a(f'ds_write_b128 v{t+4}, {vr(t,4)} offset:{L_M-2048+1024*k}')
        a('s_waitcnt lgkmcnt(0)')
    def body(sc,tag):
        st = ' sc1' if sc else ''
        top=f'A_top_{tag}'; ool=[]
        if not P['abar']: arm()
        a(f's_mov_b32 s{S_S}, 0'); k4init(a); a(f's_lshl_b32 s{S_XO}, s{S_W}, 10'); a(f's_add_u32 s{S_XO}, s{S_XO}, {XA_OFF}'); a('s_waitcnt vmcnt(0)')
        a.label(top)
        slots(a)
        a(f'v_add_u32 v{V_MA}, s{S_MC}, v{V_L16}'); a(f'v_mov_b32 v{V_HV}, s{S_EXP}'); a(f's_mov_b32 s{S_FLAG}, 0'); a(f'v_add_u32 v{V_XB}, s{S_XO}, v{V_L16}')
        if P.get('xil'): a(f'v_lshrrev_b32 v{V_MK+6}, 7, v{V_L16}'); a(f'v_mul_u32_u24 v{V_MK+6}, 384, v{V_MK+6}'); a(f'v_add_u32 v{V_XB}, v{V_XB}, v{V_MK+6}'); a(f's_mul_i32 s{S_T}, s{S_W}, 896'); a(f'v_subrev_u32 v{V_XB}, s{S_T}, v{V_XB}')
        np_=a.new('Anp')
        a(f's_cmp_lg_u32 s{S_W}, {PW}'); a(f's_cbranch_scc1 {np_}')
        poll(a, V_HP, S_CUR, V_MK, P['pollD'], abort)
        a.label(np_)
        a('s_barrier')
        stamp(a,P,0)
        rs=a.new('Arestart'); a.label(rs)
        ldt=lambda i: f'buffer_load_dwordx4 {vr(V_M+4*i,4)}, v{V_MA}, {ring}, s{S_CH+i} offen sc1'
        m0=lambda d: f's_add_u32 m0, s{S_D+d}, {L_M}'
        dmt=lambda d: f'buffer_load_dwordx4 v{V_MA}, {ring}, s{S_D+d} offen sc1 lds'
        chk=lambda i: f'v_cmp_eq_u32 vcc, -1, v{V_M+4*i}'
        I=lambda s:(lambda: a(s))
        Z=lambda r: I(f'v_mov_b64 {vr(r,2)}, 0')
        def retry(i):
            r=a.new('Aretry'); b=a.new('Aback')
            def out():
                a.label(r); a(f's_add_u32 s{S_RETRY2}, s{S_RETRY2}, 1'); a(f's_mov_b32 s{S_TO}, {TIMEOUT}')
                l=a.new('l'); a.label(l)
                for k in range(i,4): a(ldt(k))
                for d in range(2): a(m0(d)); a(dmt(d))
                a('s_waitcnt vmcnt(0)'); a(chk(i))
                a(f's_cbranch_vccz {b}'); a(f's_sub_u32 s{S_TO}, s{S_TO}, 1'); a(f's_cbranch_scc0 {l}'); a(f's_branch {abort}')
            ool.append(out)
            return lambda: (a(f's_cbranch_vccnz {r}'), a.label(b))
        def restart():
            r=a.new('Ars')
            def out():
                a.label(r); a(f's_add_u32 s{S_RETRY}, s{S_RETRY}, 1'); a('s_waitcnt vmcnt(0)')
                a(f's_cmp_lt_u32 s{S_RETRY}, {TIMEOUT}'); a(f's_cbranch_scc1 {rs}'); a(f's_branch {abort}')
            ool.append(out)
            return lambda: a(f's_cbranch_vccnz {r}')
        def compute(quiet):
            vm=Cnt(a,'vmcnt',63); lg=Cnt(a,'lgkmcnt',15)
            ld=lambda i: (a(ldt(i)), vm.issue(f'c{i}'))
            dm=lambda d: (a(dmt(d)), vm.issue(f'd{d}'))
            mk=lambda k:(lambda:(a(f'ds_read_b128 {vr(V_MK+4*k,4)}, v{V_SMR if quiet else V_KA} offset:{(4*(k//2)+k%2)*256}'), lg.issue('mk')))
            rd=lambda i:(lambda:(a(f'ds_read_b128 {vr(V_M+4*i,4)}, v{V_LR} offset:{1024*(i-4)}'), lg.issue(f'r{i}')))
            xq=lambda k:(lambda:(a(xld(k)), vm.issue(f'x{k}')))
            F={}
            def at(g,*fs): F.setdefault(g,[]).extend(fs)
            def check_at(g,i,fin):
                at(g, lambda: vm.wait(f'c{i}'), I(chk(i))); at(g+2,fin)
            G=P['gp']
            if quiet:
                for r in range(14): Z(V_ACC+2*r)()
            else:
                zn=P['zsplit']; z=iter(range(28)); assert sum(zn)==28
                a(m0(0))
                for f,n in zip([lambda: ld(0),lambda: ld(1),lambda: ld(2),lambda: dm(0)],zn):
                    f()
                    for _ in range(n): a(f'v_mov_b32 v{V_ACC+next(z)}, 0')
                a(m0(1))
                check_at(0,0,restart()); at(G['d1'],lambda: dm(1)); at(G['c3'],lambda: ld(3))
                check_at(4,1,retry(1)); check_at(11,2,retry(2))
                for g,k in zip(G['x'],[4,5,0,1,2,3,6,7]): at(g,xq(k))
                if P['abar']: at(G['bar'],lambda: vm.wait('d1'),I('s_barrier'))
                else: at(G['bar'],lambda: vm.wait(G['bw']))
                for g,i in zip(G['r'],(4,5,6)): at(g,rd(i))
                at(20,lambda: vm.wait('c3'))
                at(26,lambda: lg.wait('r4')); at(27,lambda: lg.wait('r5')); at(28,lambda: lg.wait('r6'))
            for g,r in zip(G['z'],range(6)): at(g,Z(V_S+2*r))
            for g,k in zip(G['mk'],range(4)): at(g,mk(k))
            adds=lambda n:[f'v_add_f32 v{V_ACC+4*n}, v{V_ACC+4*n}, v{V_ACC+4*n+2}', f'v_add_f32 v{V_ACC+4*n+1}, v{V_ACC+4*n+1}, v{V_ACC+4*n+3}']
            cvt=lambda n: f'v_cvt_pk_bf16_f32 v{V_ACC+4*(n&~1)+2+(n&1)}, v{V_ACC+4*n}, v{V_ACC+4*n+1}'
            dw=lambda p:(lambda:(a(f'ds_write_b64 v{V_QW}, {vr(V_ACC+8*p+2,2)} offset:{512*p}'), lg.issue(f'qw{p}')))
            dr=lambda p:(lambda:(a(f'ds_read_b64_tr_b16 {vr(Q[p//2]+2*(p%2),2)}, v{V_QR} offset:{512*p}'), lg.issue(f'q{p}')))
            for n in range(6):
                L=29+3*n
                at(L+2,I(adds(n)[0]),I(adds(n)[1])); at(L+3,I(cvt(n)))
                if n%2: at(L+4,dw(n//2))
                if n in (1,3): at(L+7,dr(n//2))
            seq=[(n,i) for i in range(3) for n in range(7)]+[(n,3) for n in range(6)]+[(n,i) for n in range(6) for i in range(4,7)]+[(6,i) for i in range(3,7)]
            vm.wait('c0'); stamp(a,P,1)
            for g,(n,i) in enumerate(seq):
                a(f'{SMF} {vr(V_ACC+4*n,4)}, {vr(V_M+4*i,4)}, {W(n,i)}, v{V_IDX}')
                if g==48: stamp(a,P,2)
                if g in P.get('sg',()): stamp(a,P,6+list(P['sg']).index(g))
                for f in F.pop(g,[]): f()
            assert not F, F
            return vm,lg,adds,cvt,dr
        vm,lg,adds,cvt,dr=compute(False)
        aj=a.new('Aj'); a.label(aj)
        bop=lambda kt,ks: vr((V_XO+16*kt if kt<2 else V_MK)+8*ks,8)
        a2=lambda kt,ks: a(f'{SMF} {vr(V_S+4*kt,4)}, {vr(Q[ks],4)}, {bop(kt,ks)}, v{V_IDX}')
        vm.wait('x1'); lg.wait('q1'); a2(1,0); dr(2)()
        for x in adds(6): a(x)
        a(cvt(6)); a(f'ds_write_b32 v{V_QW6}, v{V_ACC+26} offset:1536'); lg.issue('qw3'); dr(3)()
        a2(0,0); a2(2,0)
        vm.wait('x7'); lg.wait('q3')
        for kt in (2,0,1): a2(kt,1)
        Tm=V_S+8
        nan=a.new('Anan'); nb=a.new('Ananb')
        T=V_ACC+20
        idp='quad_perm:[0,1,2,3] row_mask:0xf'
        a(f'v_add_f32_dpp v{T+4}, v{Tm}, v{Tm+2} {idp} bank_mask:0x3');
        a(f'v_add_f32 v{T}, v{V_S}, v{V_S+2}'); a(f'v_add_f32 v{T+2}, v{V_S+1}, v{V_S+3}')
        a(f'v_add_f32_dpp v{T+4}, v{Tm+1}, v{Tm+3} {idp} bank_mask:0xc')
        if P['wsplit']: a(f'ds_write_b32 v{V_SMW}, v{T+4}')
        a(f'v_add_f32 v{T+1}, v{V_S+4}, v{V_S+6}'); a(f'v_add_f32 v{T+3}, v{V_S+5}, v{V_S+7}')
        a(f'ds_write2_b64 v{V_SXW}, {vr(T,2)}, {vr(T+2,2)} offset0:0 offset1:16')
        if not P['wsplit']: a(f'ds_write_b32 v{V_SMW}, v{T+4}')
        a(f'v_cmp_u_f32 vcc, v{T+4}, v{T+4}')
        stamp(a,P,3)
        oth=a.new('Aoth'); jn=a.new('Ajoin')
        a(f's_cmp_ge_u32 s{S_W}, {NS}')
        a(f's_cbranch_vccnz {nan}'); a.label(nb)
        def onan():
            a.label(nan); ok=a.new('ok'); a(f's_cmp_eq_u32 s{S_FLAG}, 0'); a(f's_cbranch_scc1 {ok}'); a(f's_cmp_ge_u32 s{S_W}, {NS}'); a(f's_branch {nb}')
            a.label(ok); a(f's_mov_b32 s{S_FLAG}, 1')
            a(f's_add_u32 s{S_RETRY2}, s{S_RETRY2}, 0x10000'); a(f's_mov_b32 s{S_TO}, {TIMEOUT}'); a('s_waitcnt lgkmcnt(0)')
            l=a.new('l'); a.label(l)
            for i in range(7): a(ldt(i))
            a('s_waitcnt vmcnt(0)')
            a(f'v_max_u32 v{V_T}, v{V_M}, v{V_M+1}')
            for k in range(1,14): a(f'v_max3_u32 v{V_T}, v{V_T}, v{V_M+2*k}, v{V_M+2*k+1}')
            gd=a.new('gd')
            a(f'v_cmp_eq_u32 vcc, -1, v{V_T}'); a(f's_cbranch_vccz {gd}'); a(f's_sub_u32 s{S_TO}, s{S_TO}, 1'); a(f's_cbranch_scc0 {l}'); a(f's_branch {abort}')
            a.label(gd)
            a(f's_add_u32 s{S_T}, s{S_W}, 1'); a(f's_lshl_b32 s{S_T}, s{S_T}, 13'); a(f'v_add_u32 v{V_SMR}, s{S_T}, v{V_KA}'); a(f'v_add_u32 v{V_T+1}, s{S_T}, v{V_L16}')
            a(f'ds_write_b128 v{V_T+1}, {vr(V_M,4)} offset:{L_M+7168}')
            for i in range(7): a(f'v_add_u32 v{V_T}, s{S_CH+i}, v{V_T+1}'); a(f'ds_write_b128 v{V_T}, {vr(V_M+4*i,4)} offset:{L_M}')
            a('s_waitcnt lgkmcnt(0)')
            compute(True); a(f's_branch {aj}')
        ool.append(onan)
        a(f's_cbranch_scc1 {oth}')
        R=V_M; Rm=V_M+16; E=V_M+20; t=V_MK; u=t+6
        slow=a.new('Aslow'); back=a.new('Asback')
        pk=lambda d,x,y: f'v_pk_add_f32 {vr(d,2)}, {vr(x,2)}, {vr(y,2)}'
        dpps=['quad_perm:[1,0,3,2]','quad_perm:[2,3,0,1]','row_half_mirror','row_mirror'][:2+NS]
        dpp=lambda m,op='add': f'v_{op}_f32_dpp v{t}, v{t}, v{t} {m} row_mask:0xf bank_mask:0xf'
        mul=lambda x: f'v_pk_mul_f32 {vr(x,2)}, {vr(x,2)}, {vr(t,2)} op_sel_hi:[1,0] clamp'
        L=['s_waitcnt lgkmcnt(0)','s_barrier']
        nx=4//NS; Em=E+nx
        mvd=f'v_mov_b32_dpp v{Em+1}, v{Em} quad_perm:[1,0,3,2] row_mask:0xf bank_mask:0xf'
        if NS==1:
            L.append(f'ds_read_b128 {vr(Rm,4)}, v{V_L16} offset:{L_SM}')
            for w in range(4): L.append(f'ds_read_b128 {vr(R+4*w,4)}, v{V_L16} offset:{L_SX+1024*w}')
            L+=['s_waitcnt lgkmcnt(4)', pk(Rm,Rm,Rm+2), f'v_add_f32 v{Rm}, v{Rm}, v{Rm+1}', f'v_exp_f32 v{Em}, v{Rm}','s_waitcnt lgkmcnt(2)', pk(R,R,R+4), pk(R+2,R+2,R+6), 's_waitcnt lgkmcnt(1)', pk(R,R,R+8), pk(R+2,R+2,R+10),
                's_waitcnt lgkmcnt(0)', pk(R,R,R+12), pk(R+2,R+2,R+14)]
            L+=[f'v_exp_f32 v{E+k}, v{R+k}' for k in range(4)]
            sm=[f'v_add_f32 v{t}, v{Em}, v{E}', f'v_add_f32 v{t+1}, v{E+1}, v{E+2}', f'v_add_f32 v{t}, v{t}, v{E+3}', f'v_add_f32 v{t}, v{t}, v{t+1}']
            L+=sm+[f'v_max3_f32 v{u}, abs(v{R}), abs(v{R+1}), abs(v{R+2})', f'v_max3_f32 v{u}, v{u}, abs(v{R+3}), abs(v{Rm})', dpp(dpps[0]),
                f'v_cmp_nge_f32 vcc, s{S_BOUND}, v{u}', mvd, dpp(dpps[1]), dpp(dpps[2])]
            L+=[f'v_rcp_f32 v{t}, v{t}', f's_cbranch_vccnz {slow}', f'{back}:', mul(E), mul(E+2), mul(E+4),
                f'v_cvt_pk_bf16_f32 v{t+2}, v{E}, v{E+1}', f'v_cvt_pk_bf16_f32 v{t+3}, v{E+2}, v{E+3}', f'v_cvt_pk_bf16_f32 v{t+5}, v{E+4}, v{E+5}',
                f'buffer_store_dwordx2 {vr(t+2,2)}, v{V_PX}, {ring}, s{S_CUR} offen{st}', f'buffer_store_dword v{t+5}, v{V_PM}, {ring}, s{S_CUR} offen{st}']
        else:
            L.append(f'ds_read_b128 {vr(Rm,4)}, v{V_SMR}')
            for w in range(4): L.append(f'ds_read_b64 {vr(R+2*w,2)}, v{V_SXR} offset:{1024*w}')
            sm=[f'v_fma_f32 v{t}, v{Em}, 0.5, v{E}', f'v_add_f32 v{t}, v{t}, v{E+1}']
            L+=['s_waitcnt lgkmcnt(4)', pk(Rm,Rm,Rm+2), f'v_add_f32 v{Rm}, v{Rm}, v{Rm+1}', f'v_exp_f32 v{Em}, v{Rm}','s_waitcnt lgkmcnt(2)', pk(R,R,R+2), 's_waitcnt lgkmcnt(0)', pk(R+4,R+4,R+6), pk(R,R,R+4),
                f'v_exp_f32 v{E}, v{R}', f'v_exp_f32 v{E+1}, v{R+1}']+sm+[
                f'v_max3_f32 v{u}, abs(v{R}), abs(v{R+1}), abs(v{Rm})', f'v_cmp_nge_f32 vcc, s{S_BOUND}, v{u}', dpp(dpps[0]), mvd, dpp(dpps[1]), dpp(dpps[2]), dpp(dpps[3]),
                f'v_rcp_f32 v{t}, v{t}', f's_cbranch_vccnz {slow}', f'{back}:', mul(E), mul(E+2),
                f'v_cvt_pk_bf16_f32 v{t+2}, v{E}, v{E+1}', f'v_cvt_pk_bf16_f32 v{t+3}, v{E+2}, v{E+3}',
                f'buffer_store_dword v{t+2}, v{V_PX}, {ring}, s{S_CUR} offen{st}', f'buffer_store_dword v{t+3}, v{V_PM}, {ring}, s{S_CUR} offen{st}']
        L.insert(P['hintP'], f'buffer_store_dword v{V_HV}, v{V_HP}, {ring}, 0 offen{st}')
        for x in L:
            a(x)
            if f'v{V_HV}, v{V_HP}' in x: stamp(a,P,5)
        stamp(a,P,4)
        a(f's_branch {jn}')
        a.label(oth)
        a('s_waitcnt lgkmcnt(0)'); a('s_barrier'); stamp(a,P,4)
        if NS==1: a(f's_cmp_lg_u32 s{S_W}, 3'); a(f's_cbranch_scc1 {jn}')
        a(f'v_mov_b64 {vr(t,2)}, -1')
        a(f'buffer_store_dword{"x2" if NS==1 else ""} {vr(t,2 if NS==1 else 1)}, v{V_PX}, {ring}, s{S_OLD} offen{st}')
        a(f'buffer_store_dword v{t}, v{V_PM}, {ring}, s{S_OLD} offen{st}')
        a.label(jn)
        a('s_barrier')
        a(f's_add_u32 s{S_XO}, s{S_XO}, {P["xastride"]}')
        if not P['abar']: arm()
        dump_stamps(a,P,8,V_T+8)
        if P.get('time'):
            sk=a.new('sk'); a(f's_cmp_lg_u32 s{S_S}, 7'); a(f's_cbranch_scc1 {sk}'); a('s_memtime s[80:81]'); a('s_memrealtime s[76:77]'); a.label(sk)
        a(f's_add_u32 s{S_S}, s{S_S}, 1'); a(f's_cmp_lt_u32 s{S_S}, {NSEG-1}'); a(f's_cbranch_scc1 {top}')
        a('s_branch L_fin')
        a.label(slow)
        if NS==1: a(f'v_max3_f32 v{t}, v{R}, v{R+1}, v{R+2}'); a(f'v_max3_f32 v{t}, v{t}, v{R+3}, v{Rm}')
        else: a(f'v_max3_f32 v{t}, v{R}, v{R+1}, v{Rm}')
        for m in dpps: a(dpp(m,'max'))
        for k in range(nx): a(f'v_sub_f32 v{R+k}, v{R+k}, v{t}')
        a(f'v_sub_f32 v{Rm}, v{Rm}, v{t}')
        a(f'v_exp_f32 v{Em}, v{Rm}')
        for k in range(nx): a(f'v_exp_f32 v{E+k}, v{R+k}')
        for x in sm: a(x)
        a(mvd)
        for m in dpps: a(dpp(m))
        a(f'v_rcp_f32 v{t}, v{t}'); a('s_nop 0'); a(f's_branch {back}')
        for o in ool: o()
    return setup, body

SMH='v_smfmac_f32_16x16x32_bf16'
def gen_B(a, P):
    V_L16,V_IDX,V_LW,V_MS,V_HP,V_HS,V_LM,V_PA,V_PMA,V_XA,V_HV,V_CW,V_CR,V_O,V_CR2 = range(15)
    V_T=15
    V_VX=16; V_ACC=48; V_MB=80; V_WB=88; V_WV=112
    V_VM=88; V_P=96; V_D=80; V_R=68; V_PL=106; V_HQ=111
    NL=6; L_M=0; L_C=8192; L_W=16384
    S_FLAG=60; S_M2=61; S_MGO=62; S_X2=63
    abort='L_exit'
    ring=f's[{S_RING}:{S_RING+3}]'; ws=f's[{S_WS}:{S_WS+3}]'
    seq=[(i,t) for t in range(7) for i in range(8)]
    ldsidx=[9,18,27,36,45,54]
    resid=[k for k in range(56) if k not in ldsidx]
    CP=8*0+544
    def setup():
        l=V_VX; t=V_VX+1; u=V_VX+2
        a(f'v_mov_b32 v{l}, v0'); a(f'v_lshlrev_b32 v{V_L16}, 4, v{l}')
        mkidx(a,V_IDX,l,t)
        a(f's_mul_i32 s{S_T}, s{S_W}, {NL*2048}'); a(f's_add_u32 s{S_T}, s{S_T}, {L_W}'); a(f'v_add_u32 v{V_LW}, s{S_T}, v{V_L16}')
        a(f's_lshl_b32 s{S_T+2}, s{S_W}, 10'); a(f'v_add_u32 v{V_LM}, s{S_T+2}, v{V_L16}')
        a(f's_lshl_b32 s{S_T+1}, s{S_ID}, 1'); a(f's_add_u32 s{S_T+2}, s{S_T+1}, s{S_W}'); a(f's_lshl_b32 s{S_T+2}, s{S_T+2}, 8'); lx(a,V_MS,l,t,[(0,6,2)],f's{S_T+2}')
        lx(a,V_HP,l,t,[(0,4,2)],R_HP)
        a(f'v_min_u32 v{V_HQ}, 13, v{l}'); a(f'v_lshlrev_b32 v{V_HQ}, 2, v{V_HQ}'); a(f'v_add_u32 v{V_HQ}, {R_HM}, v{V_HQ}')
        a(f's_lshl_b32 s{S_T+2}, s{S_ID}, 2'); a(f's_add_u32 s{S_T+2}, s{S_T+2}, {R_HM}')
        a(f'v_min_u32 v{t}, 1, v{l}'); a(f'v_lshlrev_b32 v{t}, 30, v{t}'); a(f'v_or_b32 v{V_HS}, s{S_T+2}, v{t}')
        a(f's_lshl_b32 s{S_T+2}, s{S_W}, 10'); lx(a,V_PA,l,t,[(0,6,4)],[f's{S_T+2}',R_P])
        a(f's_lshl_b32 s{S_T+2}, s{S_W}, 9'); lx(a,V_PMA,l,t,[(0,6,2)],[f's{S_T+2}',R_PM])
        a(f's_mul_i32 s{S_T+2}, s{S_T+1}, {H*1024}'); a(f's_lshl_b32 s{S_T+3}, s{S_W}, 10'); a(f's_add_u32 s{S_T+2}, s{S_T+2}, s{S_T+3}'); a(f's_add_u32 s{S_T+2}, s{S_T+2}, {VX_OFF}')
        a(f'v_add_u32 v{V_XA}, s{S_T+2}, v{V_L16}')
        if P.get('vil'): a(f'v_lshrrev_b32 v{t}, 7, v{V_L16}'); a(f'v_mul_u32_u24 v{t}, 384, v{t}'); a(f'v_add_u32 v{V_XA}, v{V_XA}, v{t}'); a(f's_mul_i32 s{S_T+3}, s{S_W}, 896'); a(f'v_subrev_u32 v{V_XA}, s{S_T+3}, v{V_XA}')
        pass; k4init(a)
        a(f's_mul_i32 s{S_T+2}, s{S_W}, {CP}'); lx(a,V_CW,l,t,[(4,2,7),(4,2,3),(0,4,3)],[f's{S_T+2}',L_C])
        a(f's_mul_i32 s{S_T+2}, s{S_W}, 2560'); lx(a,V_CR,l,t,[(4,2,7),(4,2,3),(3,1,6),(0,2,4),(2,1,2)],[f's{S_T+2}',L_C]); a(f'v_add_u32 v{V_CR2}, {2*CP}, v{V_CR}')
        a(f's_mul_i32 s{S_T+2}, s{S_W}, {4*WMAT}'); a(f's_mul_i32 s{S_T+3}, s{S_T+1}, {KK*1024}')
        a(f's_add_u32 s{S_T+2}, s{S_T+2}, s{S_T+3}'); a(f's_add_u32 s{S_T+2}, s{S_T+2}, {WB_OFF}')
        for k,(i,tt) in enumerate(seq):
            a(f's_add_u32 s{S_T+3}, s{S_T+2}, {(i%4)*WMAT+(i//4)*KK*1024+tt*2048}')
            if k in ldsidx:
                j=ldsidx.index(k)
                a(f's_add_u32 m0, s{S_T}, {j*2048}')
                a(f'buffer_load_dwordx4 v{V_L16}, {ws}, s{S_T+3} offen sc1 lds')
                a(f'buffer_load_dwordx4 v{V_L16}, {ws}, s{S_T+3} offen offset:1024 sc1 lds')
            else:
                f,r=wreg(resid.index(k),32,V_WV)
                a(f'buffer_load_dwordx4 {vr(r,4,f)}, v{V_L16}, {ws}, s{S_T+3} offen sc1')
                a(f'buffer_load_dwordx4 {vr(r+4,4,f)}, v{V_L16}, {ws}, s{S_T+3} offen offset:1024 sc1')
    def bpart():
        lg=Cnt(a,'lgkmcnt',15)
        mrd=lambda t:(a(f'ds_read_b128 {vr(V_MB+4*(t%2),4)}, v{V_L16} offset:{L_M+1024*t}'), lg.issue(f'm{t}'))
        def wrd(j,hh):
            a(f'ds_read_b128 {vr(V_WB+4*hh,4)}, v{V_LW} offset:{2048*j+1024*hh}'); lg.issue(f'w{j}')
        F={}
        def put(g,f):
            while g in F: g+=1
            F[g]=f
        I=lambda s:(lambda: a(s))
        for t in range(1,6): put(8*t, (lambda t=t: mrd(t+1)))
        for j in range(NL):
            for hh in range(2): put(ldsidx[j]-7, (lambda j=j,hh=hh: wrd(j,hh)))
        k0=P['vxpre']+P['vxe']
        for k in range(k0,P.get('vxn',8)): put(P['vx0']+P['vxs']*(k-k0), I(vxl(k)))
        mrd(0); mrd(1)
        for k,(i,t) in enumerate(seq):
            if i==0: lg.wait(f'm{t}')
            if k in ldsidx:
                j=ldsidx.index(k); lg.wait(f'w{j}'); w=vr(V_WB,8)
            else:
                f,r=wreg(resid.index(k),32,V_WV); w=vr(r,8,f)
            a(f'{SMF} {vr(V_ACC+4*i,4)}, {vr(V_MB+4*(t%2),4)}, {w}, v{V_IDX}')
            if k in F: F.pop(k)()
        assert not F
        stamp(a,P,2)
    def pack(i):
        x=V_ACC+4*i
        a(f'v_pk_add_f32 {vr(x,2)}, {vr(x,2)}, {vr(x+2,2)}'); a(f'v_cvt_pk_bf16_f32 v{V_VM+i}, v{x}, v{x+1}')
    vxl=lambda k: f'buffer_load_dwordx4 {vr(V_VX+4*k,4)}, v{V_XA}, {ws}, {k4(k)} offen sc1'
    def body(sc,tag):
        st = ' sc1' if sc else ''
        top=f'B_top_{tag}'; ool=[]
        vm=Cnt(a,'vmcnt',63)
        for k in range(P.get('vxn',8),8): a(vxl(k))
        a(f's_mov_b32 s{S_S}, 0'); a('s_waitcnt vmcnt(0)')
        a(f's_cmp_gt_u32 s{S_W}, 1'); a(f's_cbranch_scc1 {top}'); a('s_barrier')
        a.label(top)
        slots(a)
        a(f's_cmp_eq_u32 s{S_W}, 3'); a(f's_cselect_b32 s{S_M2}, 0, 4096'); a(f's_add_u32 s{S_M2}, s{S_M2}, s{S_MC}')
        mld=lambda:(a(f'buffer_load_dwordx4 {vr(V_MB,4)}, v{V_LM}, {ring}, s{S_MC} offen sc1'), a(f'buffer_load_dwordx4 {vr(V_MB+4,4)}, v{V_LM}, {ring}, s{S_M2} offen sc1'))
        nq=a.new('nq'); late=a.new('Blate'); lb=a.new('Blb')
        def mchk():
            a(f'v_max3_u32 v{V_T}, v{V_MB}, v{V_MB+1}, v{V_MB+2}'); a(f'v_max3_u32 v{V_T}, v{V_T}, v{V_MB+3}, v{V_MB+4}')
            a(f'v_max3_u32 v{V_T}, v{V_T}, v{V_MB+5}, v{V_MB+6}'); a(f'v_max_u32 v{V_T}, v{V_T}, v{V_MB+7}'); a(f'v_cmp_eq_u32 vcc, -1, v{V_T}')
        mwr=lambda:(a(f'ds_write_b128 v{V_LM}, {vr(V_MB,4)}'), a(f'ds_write_b128 v{V_LM}, {vr(V_MB+4,4)} offset:4096'))
        def vxe():
            a('s_barrier')
            for k in range(P['vxe']):
                a(vxl(k))
                if k<P['vxe']-1: a('s_nop 3')
        zs=lambda r0,r1:[a(f'v_mov_b32 v{V_ACC+r}, 0') for r in range(r0,r1)]
        misc=lambda:(a(f's_mov_b32 s{S_FLAG}, 0'), a(f's_add_u32 s{S_CU2}, s{S_CUR}, 4096'), a(f's_add_u32 s{S_T+2}, s{S_EXP}, 1'), a(f'v_mov_b32 v{V_HV}, s{S_T+2}'))
        def second(first=True):
            rl=a.new('Bm')
            if first: mld()
            vxe()
            if P['bmode']==0: zs(0,32); misc()
            a(f's_mov_b32 s{S_TO}, {TIMEOUT}'); a(f's_waitcnt vmcnt({P["vxe"]})')
            a.label(rl); mchk(); mwr()
            rr=a.new('Bmr'); a(f's_cbranch_vccnz {rr}')
            def o1():
                a.label(rr); a(f's_add_u32 s{S_RETRY2}, s{S_RETRY2}, 1'); a('s_waitcnt lgkmcnt(0)'); mld(); a('s_waitcnt vmcnt(0)'); a(f's_sub_u32 s{S_TO}, s{S_TO}, 1'); a(f's_cbranch_scc0 {rl}'); a(f's_branch {abort}')
            return o1
        a(f's_cmp_lt_u32 s{S_W}, 2'); a(f's_cbranch_scc1 {nq}')
        if P['bmode']==0:
            a(f's_cmp_lg_u32 s{S_W}, 2'); a('s_barrier'); a(f's_cbranch_scc1 {nq}')
            poll(a,V_HQ,0,V_PL,P['pollB'],abort)
            a.label(nq); a('s_barrier'); stamp(a,P,0)
            ool.append(second())
        elif P['bmode']==2:
            a('s_barrier')
            a.label(nq); stamp(a,P,0)
            z3=P['bz3']
            for q in range(3): poll_ld(a,V_HQ,0,V_PL,q); zs(sum(z3[:q]),sum(z3[:q+1]))
            mld(); zs(sum(z3),32)
            a('s_waitcnt vmcnt(4)'); a(f'v_cmp_gt_u32 vcc, s{S_EXP}, v{V_PL}'); misc()
            a(f's_cbranch_vccnz {late}'); a.label(lb)
            ool.append(second(False))
            def o0():
                ok=a.new('ok')
                a.label(late); a(f's_add_u32 s{S_RETRY}, s{S_RETRY}, 1')
                for q in (1,2):
                    poll_ld(a,V_HQ,0,V_PL,q-1); a('s_waitcnt vmcnt(4)'); a(f'v_cmp_gt_u32 vcc, s{S_EXP}, v{V_PL+q}'); a(f's_cbranch_vccz {ok}')
                poll_ld(a,V_HQ,0,V_PL,2)
                poll(a,V_HQ,0,V_PL,3,abort,pre=False)
                a.label(ok); mld(); a(f's_branch {lb}')
            ool.append(o0)
        else:
            a('s_barrier'); zs(32-P['bz2'],32)
            a.label(nq); stamp(a,P,0)
            zs(0,P['bz']); mld(); poll_ld(a,V_HQ,0,V_PL,0); zs(P['bz'],32); misc()
            a('s_waitcnt vmcnt(1)'); mchk(); mwr()
            a(f's_cbranch_vccnz {late}')
            vxe()
            a.label(lb)
            def o0():
                ok=a.new('ok')
                a.label(late); a('s_waitcnt vmcnt(0) lgkmcnt(0)'); a(f'v_cmp_gt_u32 vcc, s{S_EXP}, v{V_PL}'); a(f's_add_u32 s{S_RETRY}, s{S_RETRY}, 1'); a(f's_cbranch_vccz {ok}')
                poll(a,V_HQ,0,V_PL,P['pollB'],abort,gap=10)
                a.label(ok); o1=second(); a(f's_branch {lb}'); o1()
            ool.append(o0)
        last=a.new('Blast'); oth=a.new('Both'); jn=a.new('Bjoin'); sk=a.new('sk'); np_=a.new('np')
        a('s_waitcnt lgkmcnt(0)'); a('s_barrier')
        stamp(a,P,1)
        if P.get('mg',1):
            a(f's_cmp_gt_u32 s{S_W}, 1'); a(f's_cbranch_scc1 {sk}')
            a(f's_cmp_eq_u32 s{S_S}, 0'); a(f's_cselect_b32 s{S_MGO}, 64, s{S_S}'); a(f's_lshl_b32 s{S_MGO}, s{S_MGO}, 13'); a(f's_add_u32 s{S_MGO}, s{S_MGO}, {MG_OFF}')
            a(f'buffer_store_dword v{V_O}, v{V_MS}, {ws}, s{S_MGO} offen sc1')
            a.label(sk)
        for k in range(P['vxe'],P['vxe']+P['vxpre']): a(vxl(k))
        bpart()
        zd=lambda:[a(f'v_mov_b64 {vr(V_D+2*r,2)}, 0') for r in range(4)]
        pk8=lambda:([pack(i) for i in range(8)], zd())
        stamp(a,P,3)
        pw=a.new('pw')
        a(f's_cmp_eq_u32 s{S_W}, 3'); a(f's_cbranch_scc1 {pw}')
        pk8(); dump_stamps(a,P,7,V_P); a(f's_branch {np_}')
        a.label(pw)
        poll(a, V_HP, S_CUR, V_PL, P['pollD'], abort)
        a.label(np_)
        a('s_barrier')
        stamp(a,P,4)
        hs=f'buffer_store_dword v{V_HV}, v{V_HS}, {ring}, 0 offen{st}'
        LP=[f'buffer_load_dwordx4 {vr(V_P,4)}, v{V_PA}, {ring}, s{S_CUR} offen sc1', f'buffer_load_dwordx4 {vr(V_P+4,4)}, v{V_PA}, {ring}, s{S_CU2} offen sc1',
            f'buffer_load_dword v{V_P+8}, v{V_PMA}, {ring}, s{S_CUR} offen sc1', f'buffer_load_dword v{V_P+9}, v{V_PMA}, {ring}, s{S_CUR} offen offset:256 sc1']
        def ldp(sp=False):
            for k,x in enumerate(LP):
                a(x)
                if sp and k<2: a(f's_nop {P["csp"]}')
        def cpart(hint):
            nan=a.new('Cnan'); nb=a.new('Cnanb'); rs=a.new('Crs')
            a.label(rs)
            a('s_waitcnt vmcnt(3)'); stamp(a,P,5)
            for tl in range(2): a(f'{SMF} {vr(V_D+4*tl,4)}, {vr(V_P,4)}, {vr(V_VX+16*tl,8)}, v{V_IDX}')
            x=0
            if hint and P['hintM']==0: a(hs); stamp(a,P,6); x=1
            a(f's_waitcnt vmcnt({2+x})')
            for tl in range(2): a(f'{SMF} {vr(V_D+4*tl,4)}, {vr(V_P+4,4)}, {vr(V_VX+16*tl+8,8)}, v{V_IDX}')
            a(f's_waitcnt vmcnt({x})')
            for tl in range(2): a(f'{SMH} {vr(V_D+4*tl,4)}, {vr(V_P+8,2)}, {vr(V_VM+4*tl,4)}, v{V_IDX}')
            if hint and P['hintM']==1: a(hs); stamp(a,P,6)
            a(f'v_pk_add_f32 {vr(V_D,2)}, {vr(V_D,2)}, {vr(V_D+2,2)}')
            if P['csplit']: a(f'ds_write_b64 v{V_CW}, {vr(V_D,2)}')
            a(f'v_pk_add_f32 {vr(V_D+4,2)}, {vr(V_D+4,2)}, {vr(V_D+6,2)}')
            if P['csplit']: a(f'ds_write_b64 v{V_CW}, {vr(V_D+4,2)} offset:2560')
            else: a(f'ds_write2st64_b64 v{V_CW}, {vr(V_D,2)}, {vr(V_D+4,2)} offset0:0 offset1:5')
            if hint and P['hintM']==2: a(hs); stamp(a,P,6)
            a(f'v_cmp_u_f32 vcc, v{V_D}, v{V_D+1}')
            a(f's_cbranch_vccnz {nan}'); a.label(nb)
            if hint and P['hintM']==3: a(hs); stamp(a,P,6)
            a('s_waitcnt lgkmcnt(0)')
            a('s_barrier')
            if hint and P['hintM']==4: a(hs); stamp(a,P,6)
            def o2():
                a.label(nan); a(f's_cmp_lg_u32 s{S_FLAG}, 0'); a(f's_cbranch_scc1 {nb}'); a(f's_mov_b32 s{S_FLAG}, 1')
                a(f's_add_u32 s{S_RETRY2}, s{S_RETRY2}, 0x10000'); a(f's_mov_b32 s{S_TO}, {TIMEOUT}')
                l=a.new('l'); a.label(l)
                ldp()
                a('s_waitcnt vmcnt(0) lgkmcnt(0)'); zd()
                a(f'v_max_u32 v{V_T}, v{V_P}, v{V_P+1}')
                for k in range(1,5): a(f'v_max3_u32 v{V_T}, v{V_T}, v{V_P+2*k}, v{V_P+2*k+1}')
                a(f'v_cmp_eq_u32 vcc, -1, v{V_T}'); a(f's_cbranch_vccz {rs}'); a(f's_sub_u32 s{S_TO}, s{S_TO}, 1'); a(f's_cbranch_scc0 {l}'); a(f's_branch {abort}')
            ool.append(o2)
        ldp(True)
        o3=a.new('Bo3')
        a(f's_cmp_gt_u32 s{S_W}, 1'); a(f's_cbranch_scc1 {oth}')
        cpart(False)
        for w in range(4): a(f'ds_read2_b32 {vr(V_R+2*w,2)}, v{V_CR if w<2 else V_CR2} offset0:{(w%2)*CP//4} offset1:{(w%2)*CP//4+2}')
        a('s_waitcnt lgkmcnt(2)'); a(f'v_pk_add_f32 {vr(V_R,2)}, {vr(V_R,2)}, {vr(V_R+2,2)}')
        a('s_waitcnt lgkmcnt(1)'); a(f'v_pk_add_f32 {vr(V_R,2)}, {vr(V_R,2)}, {vr(V_R+4,2)}')
        a('s_waitcnt lgkmcnt(0)'); a(f'v_pk_add_f32 {vr(V_R,2)}, {vr(V_R,2)}, {vr(V_R+6,2)}')
        a(f'v_cvt_pk_bf16_f32 v{V_O}, v{V_R}, v{V_R+1}')
        a(f'v_min_u32 v{V_O}, -2, v{V_O}')
        a(f'buffer_store_dword v{V_O}, v{V_MS}, {ring}, s{S_MN} offen{st}')
        stamp(a,P,6)
        a(f's_cmp_eq_u32 s{S_S}, {NSEG-2}'); a(f's_cbranch_scc1 {last}')
        a('s_barrier')
        a(f'v_mov_b32 v{V_T}, -1')
        a(f'buffer_store_dword v{V_T}, v{V_MS}, {ring}, s{S_MA} offen{st}')
        a(f's_branch {jn}')
        a.label(oth)
        a(f's_cmp_eq_u32 s{S_W}, 3'); a(f's_cbranch_scc1 {o3}')
        cpart(False); a(f's_branch {jn}')
        a.label(o3)
        pk8()
        cpart(True); dump_stamps(a,P,7,V_P)
        a.label(jn)
        a(f'v_add_u32 v{V_XA}, {P["vxstride"]}, v{V_XA}')
        if P.get('time'):
            sk=a.new('sk'); a(f's_cmp_lg_u32 s{S_S}, 7'); a(f's_cbranch_scc1 {sk}'); a('s_memtime s[80:81]'); a('s_memrealtime s[76:77]'); a.label(sk)
        a(f's_add_u32 s{S_S}, s{S_S}, 1'); a(f's_cmp_lt_u32 s{S_S}, {NSEG-1}'); a(f's_cbranch_scc1 {top}')
        a('s_branch L_fin')
        a.label(last)
        a(f's_mov_b32 s{S_MGO}, {MG_OFF+63*8192}')
        a(f'buffer_store_dword v{V_O}, v{V_MS}, {ws}, s{S_MGO} offen sc1')
        a('s_branch L_fin')
        for o in ool: o()
    return setup, body

def proto(P):
    a=Asm()
    a('chain_kernel:')
    a('''s_cmp_ge_u32 s2, 256
s_cbranch_scc1 L_exit
s_load_dwordx2 s[36:37], s[0:1], 0
s_load_dwordx4 s[40:43], s[0:1], 96
s_getreg_b32 s3, hwreg(HW_REG_XCC_ID)
s_and_b32 s3, s3, 15
s_cmp_lg_u32 s3, 0
s_cbranch_scc1 L_exit
v_lshrrev_b32 v1, 6, v0
v_and_b32 v0, 63, v0
s_nop 0
v_readfirstlane_b32 s17, v1
s_waitcnt lgkmcnt(0)''')
    a(f'''s_mov_b32 s{S_X}, s36
s_mov_b32 s{S_X+1}, s37
s_mov_b32 s{S_X+2}, {2048*896}
s_mov_b32 s{S_X+3}, 0x20000
s_mov_b32 s{S_WS}, s42
s_mov_b32 s{S_WS+1}, s43
s_mov_b32 s{S_WS+2}, {WS_SIZE}
s_mov_b32 s{S_WS+3}, 0x20000
s_add_u32 s{S_RING}, s42, {RING_OFF}
s_addc_u32 s{S_RING+1}, s43, 0
s_mov_b32 s{S_RING+2}, {RING_SIZE}
s_mov_b32 s{S_RING+3}, 0x20000
s_cmp_lg_u32 s17, 0
s_cbranch_scc1 L_notick
v_mov_b32 v1, 0
v_mov_b32 v2, 1
s_mov_b64 exec, 1
global_atomic_add v3, v1, v2, s[40:41] sc0
s_waitcnt vmcnt(0)
ds_write_b32 v1, v3
s_waitcnt lgkmcnt(0)
s_mov_b64 exec, -1
L_notick:
s_barrier
v_mov_b32 v1, 0
ds_read_b32 v3, v1
s_waitcnt lgkmcnt(0)
v_readfirstlane_b32 s{S_G}, v3
s_barrier
s_mov_b32 s{S_RETRY}, 0
s_mov_b32 s{S_RETRY2}, 0
s_cmp_ge_u32 s{S_G}, 30
s_cbranch_scc1 L_exit
s_cmp_ge_u32 s{S_G}, 16
s_cbranch_scc1 L_roleB
s_mov_b32 s{S_ID}, s{S_G}''')
    su,bo=gen_A(a,P); su(); bo(P.get('sc',0),'f')
    a.label('L_roleB'); a(f's_sub_u32 s{S_ID}, s{S_G}, 16')
    su,bo=gen_B(a,P); su(); bo(P.get('sc',0),'f')
    a.label('L_fin')
    a(f'''s_memtime s[82:83]
s_memrealtime s[78:79]
s_waitcnt lgkmcnt(0)
s_sub_u32 s82, s82, s80
s_sub_u32 s78, s78, s76
s_lshl_b32 s78, s78, 8
s_or_b32 s{S_S}, s{S_S}, s78
s_lshl_b32 s{S_T}, s{S_G}, 2
s_add_u32 s{S_T}, s{S_T}, s{S_W}
s_lshl_b32 s{S_T}, s{S_T}, 4
s_add_u32 s{S_T}, s{S_T}, {DBG_OFF}
v_mov_b32 v20, s82
v_mov_b32 v21, s{S_RETRY}
v_mov_b32 v22, s{S_RETRY2}
v_mov_b32 v23, s{S_S}
v_mov_b32 v24, 0
buffer_store_dwordx4 v[20:23], v24, s[{S_WS}:{S_WS+3}], s{S_T} offen''')
    a.label('L_exit'); a('s_endpgm')
    lines,added=hazards(a.lines, verbose=P.get('verbose'))
    a.lines=lines
    hdr='''; @launch grid=(256,1,1) block=(256,1,1) lds=102400
.amdgcn_target "amdgcn-amd-amdhsa--gfx950"
.text
.globl chain_kernel
.p2align 8
.type chain_kernel,@function
'''
    ftr='''.section .rodata,"a"
.p2align 6
.amdhsa_kernel chain_kernel
  .amdhsa_next_free_vgpr 512
  .amdhsa_next_free_sgpr 102
  .amdhsa_accum_offset 256
  .amdhsa_group_segment_fixed_size 0
  .amdhsa_kernarg_size 112
  .amdhsa_user_sgpr_count 2
  .amdhsa_user_sgpr_kernarg_segment_ptr 1
  .amdhsa_system_sgpr_workgroup_id_x 1
.end_amdhsa_kernel
'''
    return hdr+a.text()+ftr

DEF=dict(nhm=14,pollD=5,zsplit=[4,4,10,10],abar=0,gp=dict(d1=1,c3=5,x=[9,12,16,18,19,25,28,33],bar=20,bw='c3',r=[20,21,22],z=[7,8,14,15,23,24],mk=[26,27,29,30]),sm=1,wsplit=0,csplit=0,csp=3,warm=0,bmode=2,bz3=[5,7,16],bz=12,bz2=8,zpre=0,ml1=0,pollB=3,vxe=4,vxpre=0,vx0=0,vxs=4,mg=0,hintP=12,hintM=2,vxstride=VX_SEG,xastride=XA_SEG,time=1,stamps=0,vmg=0,rot=1)
if __name__=='__main__':
    P=dict(DEF); P['verbose']=1
    open('chain.s','w').write(proto(P))
```

```python
from asmlib import *
from layout import *
from chain import Cnt, lx, S_WS, S_W, S_T, S_TO, S_G, MF
from prep import srd
ws=f's[{S_WS}:{S_WS+3}]'
S_DBG=56
K=64
PX,PQKV,PWO,PM0,PWQ,PWK,PWV,PWOB,PG=K,K+2,K+4,K+8,K+10,K+12,K+14,K+16,K+20
S_W1=20; S_W2=24; S_XS=28; S_U=18; S_H=19; S_ISB=32; S_O1=33; S_O2=42; S_OUTO=43; S_SC=44; S_CNT=45; S_E=48; S_LB=47
S_FO=62; S_CN2=16
WTIME=300000
T=S_T
NZ=16
def zero_flags(a, sgw, vl16, vz):
    sk=a.new('zf')
    a(f'v_mov_b64 {vr(vz,2)}, 0'); a(f'v_mov_b64 {vr(vz+2,2)}, 0')
    a(f's_lshl_b32 s{T}, s{sgw}, 10'); a(f's_add_u32 s{T}, s{T}, {FR_OFF}'); a(f's_and_b32 s{T+1}, s{sgw}, 7'); a(f's_lshl_b32 s{T+1}, s{T+1}, 10'); a(f's_add_u32 s{T+1}, s{T+1}, {FR_OFF+65536}')
    a(f'buffer_store_dwordx4 {vr(vz,4)}, v{vl16}, {ws}, s{T} offen sc1')
    a(f's_cmp_lt_u32 s{sgw}, 56'); a(f's_cbranch_scc1 {sk}a')
    a(f'buffer_store_dwordx4 {vr(vz,4)}, v{vl16}, {ws}, s{T+1} offen sc1')
    a.label(sk+'a')
    a('s_waitcnt vmcnt(0)'); a('s_barrier')
    a(f's_cmp_lg_u32 s{S_W}, 0'); a(f's_cbranch_scc1 {sk}')
    a('s_mov_b32 s2, 1'); a(f's_atomic_add s2, s[{S_DBG}:{S_DBG+1}], 132 glc')
    a.label(sk)
def wait0(a, v):
    lp=a.new('w0l'); dn=a.new('w0d')
    a(f's_mov_b32 s{S_TO}, {WTIME}'); a(f'v_mov_b32 v{v}, 0')
    a.label(lp)
    a(f'global_load_dword v{v+1}, v{v}, s[{S_DBG}:{S_DBG+1}] offset:132 sc1'); a('s_waitcnt vmcnt(0)')
    a(f'v_cmp_gt_u32 vcc, {NZ}, v{v+1}'); a(f's_cbranch_vccz {dn}')
    a('s_sleep 4'); a(f's_sub_u32 s{S_TO}, s{S_TO}, 1'); a(f's_cbranch_scc0 {lp}'); a('s_branch L_exit')
    a.label(dn)
def dsignal(a, sline, v1, first, keep=0):
    s0=a.new('sg'); s1=a.new('sg')
    if first:
        a(f's_cmp_lg_u32 s{S_W}, 0'); a(f's_cbranch_scc1 {s0}'); wait0(a,v1); a.label(s0)
    a(f's_waitcnt vmcnt({keep})'); a('s_barrier')
    a(f's_cmp_lg_u32 s{S_W}, 0'); a(f's_cbranch_scc1 {s1}')
    a(f's_lshl_b32 s{S_FO}, s{sline}, 7'); a(f's_add_u32 s{S_FO}, s{S_FO}, {FR_OFF}'); a('s_waitcnt lgkmcnt(0)'); a(f's_mov_b32 s2, 1')
    a(f's_atomic_or s2, s[{S_DBG+2}:{S_DBG+3}], s{S_FO} glc')
    a.label(s1)
def fpoll(a, voff, soff, v, sleep):
    lp=a.new('fp'); dn=a.new('fpd')
    a(f's_mov_b32 s{S_TO}, {WTIME}')
    a.label(lp)
    a(f'buffer_load_dword v{v}, v{voff}, {ws}, s{soff} offen sc1'); a('s_waitcnt vmcnt(0)')
    a(f'v_cmp_eq_u32 vcc, 0, v{v}'); a(f's_cbranch_vccz {dn}')
    a(f's_sleep {sleep}'); a(f's_sub_u32 s{S_TO}, s{S_TO}, 1'); a(f's_cbranch_scc0 {lp}'); a('s_branch L_exit')
    a.label(dn)
def matoff(a, lane, v, four):
    a(f'v_and_b32 v{v}, 15, v{lane}'); a(f'v_min_u32 v{v}, 13, v{v}')
    if four: a(f'v_and_b32 v{v+1}, 48, v{lane}'); a(f'v_add_u32 v{v}, v{v}, v{v+1}')
    a(f'v_lshlrev_b32 v{v}, 7, v{v}')
def wait_mat(a, lane, v, smat, four=False, sleep=2):
    sk=a.new('wm')
    if not four: a(f's_cmp_lg_u32 s{S_W}, 0'); a(f's_cbranch_scc1 {sk}')
    matoff(a,lane,v,four); a(f's_lshl_b32 s{T}, s{smat}, 11'); a(f's_add_u32 s{T}, s{T}, {FR_OFF}')
    fpoll(a,v,T,v+1,sleep)
    a.label(sk)
    if not four: a('s_barrier')
def wait_all(a, v, sleep=4):
    sk=a.new('wa')
    a(f's_cmp_lg_u32 s{S_W}, 0'); a(f's_cbranch_scc1 {sk}')
    a(f's_lshr_b32 s{T}, s{S_G}, 5'); a(f's_lshl_b32 s{T}, s{T}, 7'); a(f's_add_u32 s{T}, s{T}, {FR_OFF+FR_ALL*128}'); a(f'v_mov_b32 v{v}, 0')
    fpoll(a,v,T,v+1,sleep)
    a.label(sk); a('s_barrier')
def aggregate(a, v):
    sk=a.new('ag')
    matoff(a,0,v,True)
    for k in range(2):
        a(f's_lshl_b32 s{T}, s{S_W}, 13'); a(f's_add_u32 s{T}, s{T}, {FR_OFF+32768*k}'); fpoll(a,v,T,v+1,2)
    a(f'v_and_b32 v{v}, 31, v0'); a(f'v_lshlrev_b32 v{v}, 7, v{v}'); a(f's_mov_b32 s{T}, {FR_OFF+FR_INIT*128}'); fpoll(a,v,T,v+1,2)
    a('s_barrier')
    a(f's_cmp_lg_u32 s{S_W}, 0'); a(f's_cbranch_scc1 {sk}')
    a(f's_mov_b32 s{T}, {FR_OFF+FR_ALL*128}'); a(f'v_mov_b32 v{v+1}, 1'); a('s_mov_b64 exec, 0xff')
    a(f'buffer_store_dword v{v+1}, v{v}, {ws}, s{T} offen sc1'); a('s_mov_b64 exec, -1')
    a.label(sk)

def early_touch(a, P, label, what):
    S=S_XS
    a('v_lshlrev_b32 v249, 7, v0'); a(f's_lshl_b32 s{T+4}, s2, 2'); a(f's_add_u32 s{T+4}, s{T+4}, s{S_W}')
    if P['tcode'] and label:
        sk=a.new('tc'); a(f's_cmp_lg_u32 s{S_W}, 3'); a(f's_cbranch_scc1 {sk}')
        a(f's_getpc_b64 s[{T}:{T+1}]'); a(f's_and_b32 s{T}, s{T}, 0xffffff00')
        a(f's_bfe_u32 s{T+2}, s2, 0x30003'); a(f's_lshl_b32 s{T+2}, s{T+2}, 13'); a(f'v_add_u32 v6, s{T+2}, v249'); a(f'v_min_u32 v6, L_exit-{label}-512, v6')
        a(f'global_load_dword v250, v6, s[{T}:{T+1}]')
        a.label(sk)
    if P['tlb'] and label:
        sk=a.new('tp'); a(f's_cmp_lg_u32 s{S_W}, 2'); a(f's_cbranch_scc1 {sk}')
        a(f'v_min_u32 v6, 33, v0'); a('v_lshlrev_b32 v6, 21, v6'); a(f'buffer_load_dword v250, v6, {ws}, 0 offen')
        a.label(sk)
    def two(pa,pb,v):
        a(f's_cmp_lt_u32 s{T+4}, 512'); a(f's_cselect_b32 s{S}, s{pa}, s{pb}'); a(f's_cselect_b32 s{S+1}, s{pa+1}, s{pb+1}'); a(f's_mov_b32 s{S+2}, {448*8192}'); a(f's_mov_b32 s{S+3}, 0x20000')
        a(f's_and_b32 s{T}, s{T+4}, 511'); a(f's_lshl_b32 s{T}, s{T}, 13'); a(f'buffer_load_dword v{v}, v249, s[{S}:{S+3}], s{T} offen')
    for ch in what:
        if ch=='B': two(PWV,PWOB,251)
        if ch=='A': two(PWQ,PWK,252)
        if ch=='x':
            a(f's_lshr_b32 s{T+1}, s{T+4}, 8'); a(f's_and_b32 s{T}, s{T+4}, 255'); a(f's_lshl_b32 s{T}, s{T}, 13')
            a(f's_cmp_eq_u32 s{T+1}, 0'); a(f's_cselect_b32 s{S}, s{PX}, s{PQKV}'); a(f's_cselect_b32 s{S+1}, s{PX+1}, s{PQKV+1}'); a(f's_mov_b32 s{S+2}, {448*2688}'); a(f's_cselect_b32 s{S+2}, {2048*896}, s{S+2}')
            a(f's_cmp_ge_u32 s{T+1}, 2'); a(f's_cselect_b32 s{S}, s{PWO}, s{S}'); a(f's_cselect_b32 s{S+1}, s{PWO+1}, s{S+1}'); a(f's_cselect_b32 s{S+2}, {448*896}, s{S+2}')
            a(f's_cmp_eq_u32 s{T+1}, 3'); a(f's_cselect_b32 s{S+2}, 0, s{S+2}'); a(f's_mov_b32 s{S+3}, 0x20000')
            a(f'buffer_load_dword v253, v249, s[{S}:{S+3}], s{T} offen')

def gen_tasks(a, P):
    w1=f's[{S_W1}:{S_W1+3}]'; w2=f's[{S_W2}:{S_W2+3}]'; xs=f's[{S_XS}:{S_XS+3}]'
    L=0; t=1; u=2; V_L16=3; V_D=4; V_DT=5; V_RA=6; V_RB=10; V_BO=14; V_XF=21; V_TA=22; V_TB=23; V_GA=24
    V_MF=28; V_MT=36; V_ACC=52; V_FR=108
    LW2=32768
    tl=lambda r: a(f's_memrealtime s[{r}:{r+1}]') if P.get('tl') else None
    a(f's_sub_u32 s{S_U}, s{S_G}, 32')
    def setup():
        a(f'v_lshlrev_b32 v{V_L16}, 4, v{L}')
        lx(a,u,L,t,[(5,1,0)]); a(f'v_xor_b32 v{u}, v{u}, v{L}'); a(f'v_and_b32 v{u}, 31, v{u}'); lx(a,V_D,L,t,[(5,1,13)]); a(f'v_lshl_add_u32 v{V_D}, v{u}, 4, v{V_D}')
        lx(a,u,L,t,[(4,2,0)]); a(f'v_xor_b32 v{u}, v{u}, v{L}'); a(f'v_and_b32 v{u}, 15, v{u}'); lx(a,V_DT,L,t,[(0,4,9)]); a(f'v_lshl_add_u32 v{V_DT}, v{u}, 4, v{V_DT}')
        a(f's_and_b32 s{T}, s{S_W}, 1'); a(f's_lshl_b32 s{T}, s{T}, 14')
        for q in range(4): a(f'v_xor_b32 v{V_RA+q}, {64*q}, v{V_DT}'); a(f'v_add_u32 v{V_RA+q}, s{T}, v{V_RA+q}')
        for q in range(7):
            a(f'v_add_u32 v{u}, {64*q}, v{L}'); a(f'v_mul_u32_u24 v{t}, 2341, v{u}'); a(f'v_lshrrev_b32 v{t}, 16, v{t}'); a(f'v_mul_u32_u24 v{V_BO+q}, 28, v{t}'); a(f'v_sub_u32 v{u}, v{u}, v{V_BO+q}')
            a(f'v_lshrrev_b32 v{V_BO+q}, 2, v{t}'); a(f'v_and_b32 v{V_BO+q}, 2, v{V_BO+q}'); a(f'v_xor_b32 v{u}, v{u}, v{V_BO+q}'); a(f'v_mul_u32_u24 v{t}, 896, v{t}'); a(f'v_lshl_add_u32 v{V_BO+q}, v{u}, 4, v{t}')
    def ids(rnd):
        a(f's_mul_i32 s{T}, s{S_U}, 4682'); a(f's_lshr_b32 s{T}, s{T}, 16'); a(f's_mul_i32 s{T+1}, s{T}, 14'); a(f's_sub_u32 s{T+1}, s{S_U}, s{T+1}')
        a(f's_cmp_ge_u32 s{T+1}, 7'); a(f's_cselect_b32 s{T+2}, 1, 0'); a(f's_cselect_b32 s{T+3}, 7, 0'); a(f's_sub_u32 s{T+1}, s{T+1}, s{T+3}')
        a(f's_mov_b32 s{S_ISB}, {1 if P["order"][rnd]=="B" else 0}'); a(f's_mov_b32 s{S_H}, s{T}')
    def touch(rnd):
        ids(rnd); isB=P['order'][rnd]=='B'; p1,p2=(PWV,PWOB) if isB else (PWQ,PWK)
        a(f's_add_u32 s{T+1}, s{T+1}, s{T+3}'); a(f's_lshl_b32 s{T+1}, s{T+1}, 1'); a(f's_and_b32 s{T+2}, s{S_W}, 1'); a(f's_add_u32 s{T+1}, s{T+1}, s{T+2}')
        a(f's_lshl_b32 s{T+2}, s{T+1}, 17'); a(f's_lshl_b32 s{T+3}, s{S_H}, 9'); a(f's_add_u32 s{T+2}, s{T+2}, s{T+3}')
        lx(a,248,L,t,[(2,4,13),(0,2,7)])
        if isB:
            a(f's_mul_i32 s{T+3}, s{S_H}, 28'); a(f's_add_u32 s{T+3}, s{T+3}, s{T+1}'); a(f's_lshl_b32 s{T+3}, s{T+3}, 13'); a(f'v_lshlrev_b32 v{t}, 7, v{L}')
        a(f's_cmp_lt_u32 s{S_W}, 2'); a(f's_cselect_b32 s{S_XS}, s{p1}, s{p2}'); a(f's_cselect_b32 s{S_XS+1}, s{p1+1}, s{p2+1}'); a(f's_mov_b32 s{S_XS+2}, {448*8192}'); a(f's_mov_b32 s{S_XS+3}, 0x20000')
        if isB: a(f's_cselect_b32 s{T+2}, s{T+2}, s{T+3}'); a('s_cselect_b64 vcc, -1, 0'); a(f'v_cndmask_b32 v248, v{t}, v248, vcc')
        a(f'buffer_load_dword v{254+rnd}, v248, {xs}, s{T+2} offen')
    def task(rnd, mid=None):
        ids(rnd)
        a(f's_lshl_b32 s{S_CNT}, s{S_ISB}, 4'); a(f's_add_u32 s{S_CNT}, s{S_CNT}, s{S_H}')
        a(f's_mul_i32 s{S_OUTO}, s{S_CNT}, {WMAT}'); a(f's_lshl_b32 s{S_CNT}, s{S_CNT}, 4'); a(f's_add_u32 s{S_CNT}, s{S_CNT}, s{T+1}'); a(f's_add_u32 s{S_CNT}, s{S_CNT}, s{T+3}')
        a(f's_lshr_b32 s{T+3}, s{S_W}, 1'); a(f's_lshl_b32 s{T+4}, s{T+2}, 1'); a(f's_add_u32 s{T+4}, s{T+4}, s{T+3}')
        a(f's_mul_i32 s{T+5}, s{T+4}, {7*KK*1024}'); a(f's_add_u32 s{S_OUTO}, s{S_OUTO}, s{T+5}')
        a(f's_and_b32 s{T+6}, s{S_W}, 1'); a(f's_lshl_b32 s{T+5}, s{T+1}, 1'); a(f's_add_u32 s{T+5}, s{T+5}, s{T+6}'); a(f's_lshl_b32 s{T+5}, s{T+5}, 10'); a(f's_add_u32 s{S_OUTO}, s{S_OUTO}, s{T+5}')
        a(f's_cmp_eq_u32 s{S_ISB}, 0')
        a(f's_cselect_b32 s{S_W1}, s{PWQ}, s{PWV}'); a(f's_cselect_b32 s{S_W1+1}, s{PWQ+1}, s{PWV+1}'); a(f's_mov_b32 s{S_W1+2}, {448*8192}'); a(f's_mov_b32 s{S_W1+3}, 0x20000')
        a(f's_cselect_b32 s{S_W2}, s{PWK}, s{PWOB}'); a(f's_cselect_b32 s{S_W2+1}, s{PWK+1}, s{PWOB+1}'); a(f's_mov_b32 s{S_W2+2}, {448*8192}'); a(f's_mov_b32 s{S_W2+3}, 0x20000')
        a(f's_cselect_b32 s{S_SC}, 0x3db8aa3b, 1.0')
        a(f's_lshl_b32 s{S_O1}, s{T+1}, 6'); a(f's_lshl_b32 s{T+5}, s{T+3}, 5'); a(f's_add_u32 s{S_O1}, s{S_O1}, s{T+5}'); a(f's_lshl_b32 s{T+5}, s{T+6}, 1'); a(f's_add_u32 s{S_O1}, s{S_O1}, s{T+5}')
        a(f's_lshl_b32 s{S_O1}, s{S_O1}, 13'); a(f's_lshl_b32 s{T+7}, s{S_H}, 9'); a(f's_add_u32 s{S_O1}, s{S_O1}, s{T+7}')
        a(f's_lshl_b32 s{S_LB}, s{S_W}, 13')
        for j in range(8):
            a(f'v_xor_b32 v{t}, {32*j}, v{V_D}'); a(f's_add_u32 m0, s{S_LB}, {1024*j}'); a(f's_add_u32 s{T+5}, s{S_O1}, {(16*(j>>2)+8*(j&1)+4*((j>>1)&1))*8192}')
            a(f'buffer_load_dwordx4 v{t}, {w1}, s{T+5} offen lds')
        if mid: mid()
        isb=a.new('isb'); j1=a.new('j')
        a(f's_cmp_lg_u32 s{S_ISB}, 0'); a(f's_cbranch_scc1 {isb}')
        a(f's_mul_i32 s{S_O2}, s{T+4}, 112'); a(f's_lshl_b32 s{S_O2}, s{S_O2}, 13'); a(f's_add_u32 s{S_O2}, s{S_O2}, s{T+7}')
        a(f's_mul_i32 s{S_LB}, s{T+3}, {7*8192}'); a(f's_add_u32 s{S_LB}, s{S_LB}, {LW2}')
        for q in range(4): a(f'v_xor_b32 v{V_RB+q}, {64*q}, v{V_DT}'); a(f'v_add_u32 v{V_RB+q}, s{S_LB}, v{V_RB+q}')
        a(f's_lshl_b32 s{T+5}, s{T+6}, 12'); a(f's_add_u32 s{S_LB}, s{S_LB}, s{T+5}'); a(f's_lshl_b32 s{T+5}, s{T+6}, 7'); a(f'v_xor_b32 v{u}, s{T+5}, v{V_D}')
        a(f's_lshl_b32 s{T+5}, s{T+6}, 16'); a(f's_add_u32 s{T+7}, s{S_O2}, s{T+5}'); a(f's_add_u32 s{S_O2}, s{T+7}, s{T+5}')
        for jj in range(4):
            a(f'v_xor_b32 v{t}, {32*jj}, v{u}')
            for n in range(7):
                row = 32*(n//2)+2*(n%2)+4*jj if n<6 else 96+2*jj
                a(f's_add_u32 m0, s{S_LB}, {8192*n+1024*jj}'); a(f's_add_u32 s{T+5}, s{S_O2 if n<6 else T+7}, {row*8192}')
                a(f'buffer_load_dwordx4 v{t}, {w2}, s{T+5} offen lds')
        a(f's_branch {j1}')
        a.label(isb)
        a(f's_lshl_b32 s{S_O2}, s{S_H}, 8'); a(f's_lshl_b32 s{T+5}, s{S_W}, 6'); a(f's_add_u32 s{S_O2}, s{S_O2}, s{T+5}'); a(f's_mul_i32 s{S_O2}, s{S_O2}, 896'); a(f's_mul_i32 s{T+5}, s{T+2}, 448'); a(f's_add_u32 s{S_O2}, s{S_O2}, s{T+5}')
        a(f's_mul_i32 s{S_LB}, s{S_W}, {28*1024}'); a(f's_add_u32 s{S_LB}, s{S_LB}, {LW2}')
        for k in range(28):
            a(f's_add_u32 m0, s{S_LB}, {1024*k}')
            if k and k%7==0: a(f's_add_u32 s{S_O2}, s{S_O2}, {16*896}')
            a(f'buffer_load_dwordx4 v{V_BO+k%7}, {w2}, s{S_O2} offen lds')
        lx(a,u,L,t,[(4,2,3),(2,2,0)]); a(f'v_mul_u32_u24 v{u}, 448, v{u}'); a(f's_mul_i32 s{T+5}, s{T+3}, 224'); lx(a,V_RB,L,t,[(0,2,3)],[f's{T+5}',LW2]); a(f'v_add_u32 v{V_RB}, v{V_RB}, v{u}')
        a(f's_cmp_eq_u32 s{T+3}, 0'); a(f's_cselect_b32 s{T+5}, 32, -32'); a(f'v_bfe_u32 v{t}, v{L}, 4, 1'); a(f'v_mul_i32_i24 v{t}, s{T+5}, v{t}')
        a(f'v_sub_u32 v{V_RB+1}, v{V_RB}, v{t}'); a(f'v_add_u32 v{V_RB}, v{V_RB}, v{t}')
        a(f'v_add_u32 v{V_RB+2}, {128*448}, v{V_RB}'); a(f'v_add_u32 v{V_RB+3}, {128*448}, v{V_RB+1}')
        a.label(j1)
        nm=0
        if rnd==P['miscr']: nm=misc_loads()
        if rnd==0 and P['lt']==2: touch(1); ids(0); nm+=1
        if rnd==0:
            s0=a.new('sg'); a(f's_cmp_lg_u32 s{S_W}, 0'); a(f's_cbranch_scc1 {s0}'); a(f'v_mov_b32 v{t}, 0'); a(f'global_load_dword v247, v{t}, s[{S_DBG}:{S_DBG+1}] offset:132 sc1'); a(f's_waitcnt vmcnt({nm+1})'); a.label(s0)
            a(f's_cmp_eq_u32 s{S_W}, 0'); a(f's_cbranch_scc1 {s0}b')
        a(f's_waitcnt vmcnt({nm})')
        if rnd==0: a.label(s0+'b')
        a('s_barrier')
        tl(88+6*rnd)
        def compute(isB):
            lg=Cnt(a,'lgkmcnt',15)
            items=[]
            for ks in range(8):
                F=V_FR+36*(ks%2)
                for T_ in range(2): items.append((f'a{ks}',[f'ds_read_b128 {vr(F+4*T_,4)}, v{V_RA+ks%4} offset:{T_*8192+(ks//4)*256}']))
                for n in range(7):
                    if isB: items.append((f'b{ks}{n}',[f'ds_read_b64_tr_b16 {vr(F+8+4*n+2*hh,2)}, v{V_RB+n%2+2*(ks//4)} offset:{(32*(ks%4)+4*hh)*448+n*32}' for hh in range(2)]))
                    else: items.append((f'b{ks}{n}',[f'ds_read_b128 {vr(F+8+4*n,4)}, v{V_RB+ks%4} offset:{n*8192+(ks//4)*256}']))
            def rd():
                if items:
                    tg,xs_=items.pop(0)
                    for x in xs_: a(x); lg.issue(tg)
            for _ in range(7): rd()
            for ks in range(8):
                F=V_FR+36*(ks%2)
                for n in range(7):
                    lg.wait(f'b{ks}{n}')
                    for T_ in range(2):
                        d=vr(V_ACC+8*n+4*T_,4); a(f'{MF} {d}, {vr(F+4*T_,4)}, {vr(F+8+4*n,4)}, {d if ks else 0}')
                        if T_==0 or n in (2,3): rd()
        compute(P['order'][rnd]=='B')
        tl(90+6*rnd)
        for n in range(7):
            x=V_ACC+8*n
            for r in range(8): a(f'v_mul_f32 v{x+r}, s{S_SC}, v{x+r}')
            for r in range(4): a(f'v_cvt_pk_bf16_f32 v{x+r}, v{x+2*r}, v{x+2*r+1}')
            a(f'buffer_store_dwordx4 {vr(x,4)}, v{V_L16}, {ws}, s{S_OUTO} offen sc1')
            if n<6: a(f's_add_u32 s{S_OUTO}, s{S_OUTO}, {KK*1024}')
        if rnd==P['miscr']: misc_stores()
        if rnd==1: dsignal(a,S_CNT,t,False); tl(98)
        else: a(f's_mov_b32 s{S_CN2}, s{S_CNT}'); a('s_barrier')
    S_F=60
    def misc_loads():
        srd(a,S_XS,PX,2048*896)
        a(f's_lshl_b32 s{S_F}, s{S_U}, 3'); a(f's_lshl_b32 s{T}, s{S_W}, 1'); a(f's_add_u32 s{S_F}, s{S_F}, s{T}')
        lx(a,u,L,t,[(2,2,3),(0,2,0)]); a(f'v_mul_u32_u24 v{u}, 896, v{u}'); lx(a,V_XF,L,t,[(5,1,5),(4,1,3)]); a(f'v_add_u32 v{V_XF}, v{V_XF}, v{u}')
        a(f's_mul_i32 s{T}, s{S_F}, 2341'); a(f's_lshr_b32 s{T}, s{T}, 16'); a(f's_mul_i32 s{T+1}, s{T}, 28'); a(f's_sub_u32 s{T+1}, s{S_F}, s{T+1}')
        a(f's_mul_i32 s{T+2}, s{T}, {32*896}'); a(f's_cmp_ge_u32 s{T+1}, 14'); a(f's_cselect_b32 s{T+3}, {4*896-14*64}, 0'); a(f's_add_u32 s{T+2}, s{T+2}, s{T+3}'); a(f's_lshl_b32 s{T+3}, s{T+1}, 6'); a(f's_add_u32 s{T+2}, s{T+2}, s{T+3}')
        for k in range(2):
            for hh in range(2): a(f'buffer_load_dwordx2 {vr(V_MF+4*k+2*hh,2)}, v{V_XF}, {xs}, s{T+2} offen offset:{64*k+16*hh}')
        wof=a.new('wof'); j2=a.new('j')
        a(f's_cmp_ge_u32 s{S_F}, 1344'); a(f's_cbranch_scc1 {wof}')
        srd(a,S_XS,PQKV,448*2688)
        a(f's_mul_i32 s{T+2}, s{T}, 21846'); a(f's_lshr_b32 s{T+2}, s{T+2}, 16'); a(f's_mul_i32 s{T+3}, s{T+2}, 3'); a(f's_sub_u32 s{T+3}, s{T}, s{T+3}')
        a(f's_mul_i32 s{T+3}, s{T+3}, 896'); a(f's_mul_i32 s{T+2}, s{T+2}, 56'); a(f's_add_u32 s{T+3}, s{T+3}, s{T+2}'); a(f's_mul_i32 s{T+2}, s{T+1}, {16*2688}'); a(f's_add_u32 s{T+3}, s{T+3}, s{T+2}')
        for e,r in enumerate([0,1,8,9,2,3,10,11]): a(f's_add_u32 s{S_E+e}, s{T+3}, {r*2688}')
        lx(a,u,L,t,[(5,1,0)]); a(f'v_mul_u32_u24 v{u}, {4*2688}, v{u}'); lx(a,V_TA,L,t,[(0,5,1)]); a(f'v_cmp_lt_u32 vcc, 27, v{t}'); a(f'v_add_u32 v{V_TA}, v{V_TA}, v{u}')
        a(f'v_mov_b32 v{t}, 0x40000000'); a(f'v_cndmask_b32 v{V_TA}, v{V_TA}, v{t}, vcc'); a(f'v_mov_b32 v{V_TB}, v{V_TA}')
        a(f's_mov_b32 s{S_F+1}, {16*2688}')
        a(f's_branch {j2}')
        a.label(wof)
        srd(a,S_XS,PWO,448*896)
        a(f's_sub_u32 s{T}, s{S_F}, 1344'); a(f's_and_b32 s{T+2}, s{T}, 15'); a(f's_lshr_b32 s{T}, s{T}, 4'); a(f's_lshl_b32 s{T}, s{T}, 5'); a(f's_mul_i32 s{T+2}, s{T+2}, {28*896}'); a(f's_add_u32 s{T+3}, s{T}, s{T+2}')
        for e in range(8): a(f's_add_u32 s{S_E+e}, s{T+3}, {(8*(e//4)+e%4)*896}')
        lx(a,u,L,t,[(5,1,4),(4,1,2)]); a(f'v_mul_u32_u24 v{u}, 896, v{u}'); lx(a,V_TA,L,t,[(0,4,1)]); a(f'v_add_u32 v{V_TA}, v{V_TA}, v{u}')
        a(f'v_cmp_lt_u32 vcc, 47, v{L}'); a(f'v_mov_b32 v{t}, 0x40000000'); a(f'v_cndmask_b32 v{V_TB}, v{V_TA}, v{t}, vcc')
        a(f's_mov_b32 s{S_F+1}, {28*896}')
        a.label(j2)
        for k in range(2):
            for e in range(8):
                a(f'buffer_load_ushort v{V_MT+8*k+e}, v{V_TA if e<4 else V_TB}, {xs}, s{S_E+e} offen')
                if k==0: a(f's_add_u32 s{S_E+e}, s{S_E+e}, s{S_F+1}')
        return 20
    def misc_stores():
        ng=a.new('ng'); a(f's_cmp_ge_u32 s{S_F}, 28'); a(f's_cbranch_scc1 {ng}')
        srd(a,S_XS,PG,896)
        a(f's_lshl_b32 s{T}, s{S_F}, 5'); lx(a,V_GA,L,t,[(5,1,3)]); a('s_mov_b32 exec_lo, 0x10000000'); a('s_mov_b32 exec_hi, 0x10000000')
        for k in range(2):
            for e,r in enumerate([0,1,8,9,2,3,10,11]): a(f'buffer_load_ushort v{V_MT+8*k+e}, v{V_GA}, {xs}, s{T} offen offset:{2*r+32*k}')
        a('s_mov_b64 exec, -1'); a('s_waitcnt vmcnt(0)')
        a.label(ng)
        a('s_waitcnt vmcnt(7)')
        a(f's_lshl_b32 s{T}, s{S_F}, 10'); a(f's_add_u32 s{T+1}, s{T}, {XF_OFF}'); a(f's_add_u32 s{T}, s{T}, {WQF_OFF}')
        for k in range(2):
            a(f'v_swap_b32 v{V_MF+4*k+1}, v{V_MF+4*k+2}')
            a(f'buffer_store_dwordx4 {vr(V_MF+4*k,4)}, v{V_L16}, {ws}, s{T+1} offen offset:{1024*k} sc1')
            x=V_MT+8*k
            for r in range(4): a(f'v_lshl_or_b32 v{x+r}, v{x+2*r+1}, 16, v{x+2*r}')
            a(f'buffer_store_dwordx4 {vr(x,4)}, v{V_L16}, {ws}, s{T} offen offset:{1024*k} sc1')
    if P['lt']: touch(0)
    if P['lt']==1: touch(1)
    setup()
    def mid():
        ok=a.new('ok')
        a('s_waitcnt vmcnt(8)')
        a(f's_cmp_lg_u32 s{S_W}, 0'); a(f's_cbranch_scc1 {ok}'); a(f'v_cmp_gt_u32 vcc, {NZ}, v247'); a(f's_cbranch_vccz {ok}'); wait0(a,t); a.label(ok)
        dsignal(a,S_CN2,t,False,8); tl(92)
    task(0); task(1,mid)

def gen_init(a, P):
    xs=f's[{S_XS}:{S_XS+3}]'
    L=0; t=1; u=2; V_L16=3; V_X=4; V_X2=5; V_N=8; V_Z=12; V_F=16; S_GW=18
    a(f'v_lshlrev_b32 v{V_L16}, 4, v{L}')
    a(f's_and_b32 s{S_GW}, s{S_G}, 15'); a(f's_lshl_b32 s{S_GW}, s{S_GW}, 2'); a(f's_add_u32 s{S_GW}, s{S_GW}, s{S_W}')
    oth=a.new('ini'); dn=a.new('inid')
    a(f's_cmp_ge_u32 s{S_G}, 16'); a(f's_cbranch_scc1 {oth}')
    srd(a,S_XS,PX,2048*896)
    lx(a,V_X,L,t,[(3,1,4),(0,2,2),(2,1,1)]); a(f'v_mul_u32_u24 v{V_X}, 896, v{V_X}'); lx(a,u,L,t,[(4,1,6),(5,1,4)]); a(f'v_add_u32 v{V_X}, v{V_X}, v{u}')
    lx(a,u,L,t,[(4,1,30)]); a(f'v_or_b32 v{V_X2}, v{V_X}, v{u}')
    a(f's_mul_i32 s{T}, s{S_GW}, {32*896}')
    for k in range(32):
        kt,ks,z=(k>>2)&1,(k>>1)&1,k&1
        a(f'buffer_load_dwordx4 {vr(V_F+4*k,4)}, v{V_X2 if ks and z else V_X}, {xs}, s{T} offen offset:{(k>>3)*224+kt*896+(8*ks+2*z)*16}')
    a(f's_mul_i32 s{T}, s{S_GW}, {XA_SEG}'); a(f's_add_u32 s{T}, s{T}, {XA_OFF}')
    a('s_waitcnt vmcnt(0)')
    for f in range(8):
        for w in range(4): a(f'buffer_store_dwordx4 {vr(V_F+4*(8*w+f),4)}, v{V_L16}, {ws}, s{T} offen offset:{1024*w} sc1')
        if f<7: a(f's_add_u32 s{T}, s{T}, 4096')
    a(f's_branch {dn}')
    a.label(oth)
    zero_flags(a,S_GW,V_L16,V_Z)
    if P.get('tl'): a('s_memrealtime s[92:93]')
    n0=a.new('n0'); n1=a.new('n1'); n2=a.new('n2'); n3=a.new('n3'); n4=a.new('n4')
    a(f'v_mov_b64 {vr(V_N,2)}, -1'); a(f'v_mov_b64 {vr(V_N+2,2)}, -1')
    a(f's_cmp_eq_u32 s{S_GW}, 0'); a(f's_cbranch_scc1 {n0}')
    a(f's_lshl_b32 s{T}, s{S_GW}, 13'); a(f's_add_u32 s{T}, s{T}, {MG_OFF}'); a(f's_add_u32 s{T+1}, s{T}, 4096')
    for k in range(7): a(f'buffer_store_dwordx4 {vr(V_N,4)}, v{V_L16}, {ws}, s{T+k//4} offen offset:{1024*(k%4)} sc1')
    a.label(n0)
    a(f's_cmp_ge_u32 s{S_GW}, 16'); a(f's_cbranch_scc1 {n1}')
    a(f's_lshl_b32 s{T}, s{S_GW}, 10'); a(f's_add_u32 s{T}, s{T}, {RING_OFF+R_M+8192}'); a(f'buffer_store_dwordx4 {vr(V_N,4)}, v{V_L16}, {ws}, s{T} offen sc1')
    a.label(n1)
    a(f's_cmp_ge_u32 s{S_GW}, {FL_SIZE//1024}'); a(f's_cbranch_scc1 {n2}')
    a(f'v_mov_b64 {vr(V_Z,2)}, 0'); a(f'v_mov_b64 {vr(V_Z+2,2)}, 0')
    a(f's_lshl_b32 s{T}, s{S_GW}, 10'); a(f's_add_u32 s{T}, s{T}, {FL_OFF}'); a(f'buffer_store_dwordx4 {vr(V_Z,4)}, v{V_L16}, {ws}, s{T} offen sc1')
    a.label(n2)
    a(f's_lshl_b32 s{T}, s{S_GW}, 11'); a(f's_add_u32 s{T}, s{T}, {RING_OFF}'); a(f'buffer_store_dwordx4 {vr(V_N,4)}, v{V_L16}, {ws}, s{T} offen sc1')
    a(f's_cmp_lg_u32 s{S_GW}, 3'); a(f's_cbranch_scc1 {n3}')
    for r in range(4):
        a(f'v_lshl_add_u32 v{t}, v{L}, 2, {r}'); a(f'v_subrev_u32 v{t}, {(R_HM-7168)//4}, v{t}'); a(f'v_cmp_gt_u32 vcc, 14, v{t}'); a(f'v_cndmask_b32 v{V_N+r}, 0, 1, vcc')
    a.label(n3)
    a(f'buffer_store_dwordx4 {vr(V_N,4)}, v{V_L16}, {ws}, s{T} offen offset:1024 sc1')
    a(f's_sub_u32 s{T+2}, s{S_GW}, 56'); a(f's_cmp_ge_u32 s{T+2}, 7'); a(f's_cbranch_scc1 {n4}')
    srd(a,S_W1,PM0,7168)
    lx(a,u,L,t,[(2,2,1),(0,1,0)]); a(f'v_mul_u32_u24 v{u}, 896, v{u}'); lx(a,V_X,L,t,[(4,2,5),(1,1,4)]); a(f'v_add_u32 v{V_X}, v{V_X}, v{u}')
    a(f's_lshl_b32 s{T}, s{T+2}, 7'); a(f'buffer_load_dwordx4 {vr(V_Z,4)}, v{V_X}, s[{S_W1}:{S_W1+3}], s{T} offen'); a('s_waitcnt vmcnt(0)')
    for r in range(4): a(f'v_min_u32 v{V_Z+r}, -2, v{V_Z+r}')
    a(f's_lshl_b32 s{T}, s{T+2}, 10'); a(f's_add_u32 s{T+1}, s{T}, {RING_OFF+R_M}'); a(f's_add_u32 s{T}, s{T}, {MG_OFF}')
    a(f'buffer_store_dwordx4 {vr(V_Z,4)}, v{V_L16}, {ws}, s{T+1} offen sc1'); a(f'buffer_store_dwordx4 {vr(V_Z,4)}, v{V_L16}, {ws}, s{T} offen sc1')
    a.label(n4)
    if P['tq']:
        a(f'v_lshlrev_b32 v{V_X}, 7, v{L}'); srd(a,S_XS,PQKV,448*2688); a(f's_lshl_b32 s{T}, s{S_GW}, 13')
        for k in range(3): a(f'buffer_load_dword v{V_F+k}, v{V_X}, {xs}, s{T} offen'); a(f's_add_u32 s{T}, s{T}, {64*8192}')
        srd(a,S_XS,PWO,448*896); a(f's_lshl_b32 s{T}, s{S_GW}, 13'); a(f'buffer_load_dword v{V_F+3}, v{V_X}, {xs}, s{T} offen')
    a.label(dn)
    a(f's_add_u32 s{S_CNT}, s{S_G}, {FR_INIT}'); dsignal(a,S_CNT,t,True)
```

```python
from asmlib import *
from layout import *
from chain import Cnt, lx, mkidx, wreg, S_RING, S_WS, S_ID, S_W, S_S, S_TO, S_T, SMF, MF, MFH
M32='v_mfma_f32_32x32x16_bf16'
S_OUT=8
S_J=19
WTIME=300000
ws=f's[{S_WS}:{S_WS+3}]'
abort='L_exit'
NV=4; NSW=4; NOG=9

def wpoll(a, voff, soff, tmp, thr, sleep=1):
    lp=a.new('wp'); dn=a.new('wpd')
    a(f's_mov_b32 s{S_TO}, {WTIME}')
    a.label(lp)
    a(f'buffer_load_dword v{tmp}, v{voff}, {ws}, {soff} offen sc1'); a('s_waitcnt vmcnt(0)')
    a(f'v_cmp_gt_u32 vcc, {thr}, v{tmp}'); a(f's_cbranch_vccz {dn}')
    if sleep: a(f's_sleep {sleep}')
    a(f's_sub_u32 s{S_TO}, s{S_TO}, 1'); a(f's_cbranch_scc0 {lp}'); a(f's_branch {abort}')
    a.label(dn)
def mwait(a, vt, vl):
    sk=a.new('mw'); a(f's_cmp_ge_u32 s{S_S}, {NSEG-1}'); a(f's_cbranch_scc1 {sk}')
    a(f's_lshl_b32 s{S_T}, s{S_S}, 8'); a(f's_add_u32 s{S_T}, s{S_T}, {FL_OFF+192}'); a(f'v_bfe_u32 v{vt+1}, v{vl}, 4, 1'); a(f'v_lshlrev_b32 v{vt+1}, 2, v{vt+1}')
    wpoll(a,vt+1,f's{S_T}',vt,1,sleep=2)
    a.label(sk)
def wave0(a, fn):
    sk=a.new('w0'); a(f's_cmp_lg_u32 s{S_W}, 0'); a(f's_cbranch_scc1 {sk}'); fn(); a.label(sk)
def setflag(a, vone, voob, soff):
    wave0(a, lambda: a(f'buffer_store_dword v{vone}, v{voob}, {ws}, s{soff} offen sc1'))
def flagregs(a, vone, voob, lane):
    a(f'v_mov_b32 v{vone}, 1'); a(f'v_min_u32 v{voob}, 1, v{lane}'); a(f'v_lshlrev_b32 v{voob}, 30, v{voob}')

V_WV=120
def tl(a,P,r):
    if P.get('tl'): a(f's_memrealtime s[{r}:{r+1}]')
def Wf(n,kk,cnt=4):
    f,r=wreg(n*7+kk//2,32,V_WV); return vr(r+4*(kk%2),cnt,f)
def load_weights(a, off, vl16):
    a(f's_mul_i32 s{S_T}, s{S_ID}, {WMAT}'); a(f's_mul_i32 s{S_T+1}, s{S_W}, {7*KK*1024}'); a(f's_add_u32 s{S_T}, s{S_T}, s{S_T+1}')
    if off: a(f's_add_u32 s{S_T}, s{S_T}, {off}')
    for q in range(98):
        n,kk=divmod(q,14)
        a(f'buffer_load_dwordx4 {Wf(n,kk)}, v{vl16}, {ws}, s{S_T} offen offset:{1024*(q%4)} sc1')
        if q%4==3: a(f's_add_u32 s{S_T}, s{S_T}, 4096')
S_XB=20; S_XS=21
def xdma(a, vl16, sseg):
    a(f's_mul_i32 s{S_T}, s{sseg}, {XF_SEG}'); a(f's_mul_i32 s{S_T+1}, s{S_W}, 7168'); a(f's_add_u32 s{S_T}, s{S_T}, s{S_T+1}'); a(f's_add_u32 s{S_T}, s{S_T}, {XF_OFF}')
    a(f's_add_u32 m0, s{S_T+1}, s{S_XB}')
    for k in range(7):
        if k==4: a(f's_add_u32 s{S_T}, s{S_T}, 4096'); a('s_add_u32 m0, m0, 4096')
        a(f'buffer_load_dwordx4 v{vl16}, {ws}, s{S_T} offen offset:{1024*(k%4)} sc1 lds')
def gemm32(a, vxr, xb, acc, wfirst, fill=None):
    lg=Cnt(a,'lgkmcnt',15)
    def rd(kk):
        for tt in range(2): a(f'ds_read_b128 {vr(xb+8*(kk%2)+4*tt,4)}, v{vxr} offset:{tt*14336+kk*1024}'); lg.issue(f'x{kk}')
    rd(0); rd(1)
    for kk in range(14):
        lg.wait(f'x{kk}')
        for n in range(7):
            for tt in range(2):
                d=vr(acc(tt,n),4); x=vr(xb+8*(kk%2)+4*tt,4)
                A,B=(Wf(n,kk),x) if wfirst else (x,Wf(n,kk))
                a(f'{MF} {d}, {A}, {B}, {d if kk else 0}')
            if n==0 and 1<=kk<13: rd(kk+1)
            if n==3 and fill and kk<len(fill): fill[kk]()

def gen_V(a, P):
    V_L16,V_IDX,V_ONE,V_OOB,V_XR,V_L4,V_PO,V_T = range(8)
    V_ACC=16; V_XB=72; V_M=72
    S_O=22; S_F=24; S_NX=25
    l=V_ACC; t=V_ACC+1
    a(f'v_mov_b32 v{l}, v0'); a(f'v_lshlrev_b32 v{V_L16}, 4, v{l}'); mkidx(a,V_IDX,l,t); flagregs(a,V_ONE,V_OOB,l)
    a(f'v_lshlrev_b32 v{V_L4}, 2, v{l}'); a(f'v_min_u32 v{V_PO}, 55, v{l}'); a(f'v_lshlrev_b32 v{V_PO}, 7, v{V_PO}')
    S_HS=27; a(f's_and_b32 s{S_HS}, s{S_ID}, 3'); a(f's_lshl_b32 s{S_HS}, s{S_HS}, 2'); a(f's_lshr_b32 s{S_T}, s{S_ID}, 2'); a(f's_add_u32 s{S_HS}, s{S_HS}, s{S_T}')
    a(f's_mov_b32 s{S_XB}, 0'); a(f's_mov_b32 s{S_S}, s{S_J}')
    from prep2 import wait_mat, wait_all
    a(f's_add_u32 s{S_O}, s{S_ID}, 16'); wait_mat(a,l,l+1,S_O)
    load_weights(a,WB_OFF,V_L16)
    wait_all(a,l+1)
    xdma(a,V_L16,S_S)
    if P.get('tl'): a('s_waitcnt vmcnt(0)'); tl(a,P,72)
    top=a.new('Vtop'); nf=a.new('nf'); nd=a.new('nd'); done=a.new('Vdone')
    a.label(top)
    a('s_waitcnt vmcnt(0)'); a('s_barrier')
    a(f's_cmp_eq_u32 s{S_S}, s{S_J}'); a(f's_cbranch_scc1 {nf}')
    setflag(a,V_ONE,V_OOB,S_F)
    a.label(nf)
    a(f's_cmp_ge_u32 s{S_S}, {NSEG}'); a(f's_cbranch_scc1 {done}')
    a(f'v_add_u32 v{V_XR}, s{S_XB}, v{V_L16}'); a(f's_xor_b32 s{S_XB}, s{S_XB}, 32768')
    a(f's_add_u32 s{S_NX}, s{S_S}, {NV}'); a(f's_cmp_ge_u32 s{S_NX}, {NSEG}'); a(f's_cbranch_scc1 {nd}')
    xdma(a,V_L16,S_NX)
    a.label(nd)
    acc=lambda tt,n: V_ACC+8*n+4*tt
    gemm32(a,V_XR,V_XB,acc,False)
    a(f's_mul_i32 s{S_O}, s{S_S}, {VX_SEG}'); a(f's_mul_i32 s{S_T}, s{S_W}, {7*H*1024}'); a(f's_add_u32 s{S_O}, s{S_O}, s{S_T}'); a(f's_lshl_b32 s{S_T}, s{S_HS}, 10')
    a(f's_add_u32 s{S_O}, s{S_O}, s{S_T}'); a(f's_add_u32 s{S_O}, s{S_O}, {VX_OFF}')
    for n in range(7):
        x=V_ACC+8*n
        for r in range(4): a(f'v_cvt_pk_bf16_f32 v{x+r}, v{x+2*r}, v{x+2*r+1}')
        a(f'buffer_store_dwordx4 {vr(x,4)}, v{V_L16}, {ws}, s{S_O} offen sc1')
        if n<6: a(f's_add_u32 s{S_O}, s{S_O}, {H*1024}')
    a(f's_lshl_b32 s{S_F}, s{S_S}, 8'); a(f's_lshl_b32 s{S_T}, s{S_ID}, 2'); a(f's_add_u32 s{S_F}, s{S_F}, s{S_T}'); a(f's_add_u32 s{S_F}, s{S_F}, {FL_OFF}')
    a(f's_mov_b32 s{S_S}, s{S_NX}'); a(f's_branch {top}')
    a.label(done); tl(a,P,74)
    a(f's_mov_b32 s{S_S}, s{S_J}')
    t2=a.new('Vm'); lp=a.new('Vmp'); bad=a.new('Vmb'); ok=a.new('Vmo')
    a.label(t2)
    mwait(a,V_M,V_L16)
    a(f's_lshl_b32 s{S_O}, s{S_S}, 13'); a(f's_add_u32 s{S_O}, s{S_O}, {MG_OFF}'); a(f's_add_u32 s{S_NX}, s{S_O}, 4096'); a(f's_mov_b32 s{S_TO}, {WTIME}')
    for r in range(14): a(f'v_mov_b64 {vr(V_ACC+2*r,2)}, 0')
    a.label(lp)
    a(f'buffer_load_dword v{V_T}, v{V_PO}, {ws}, s{S_O} offen sc1'); a('s_waitcnt vmcnt(0)')
    a(f'v_cmp_eq_u32 vcc, -1, v{V_T}'); a(f's_cbranch_vccnz {bad}')
    for i in range(7): a(f'buffer_load_dwordx4 {vr(V_M+4*i,4)}, v{V_L16}, {ws}, s{S_O if i<4 else S_NX} offen offset:{1024*(i%4)} sc1')
    a('s_waitcnt vmcnt(0)')
    a(f'v_max_u32 v{V_T}, v{V_M}, v{V_M+1}')
    for k in range(1,14): a(f'v_max3_u32 v{V_T}, v{V_T}, v{V_M+2*k}, v{V_M+2*k+1}')
    a(f'v_cmp_eq_u32 vcc, -1, v{V_T}'); a(f's_cbranch_vccz {ok}')
    a.label(bad)
    a('s_sleep 1'); a(f's_sub_u32 s{S_TO}, s{S_TO}, 1'); a(f's_cbranch_scc0 {lp}'); a(f's_branch {abort}')
    a.label(ok)
    a(f's_mul_i32 s{S_O}, s{S_S}, {VM_SEG}'); a(f's_mul_i32 s{S_T}, s{S_W}, {7*H*256}'); a(f's_add_u32 s{S_O}, s{S_O}, s{S_T}'); a(f's_lshl_b32 s{S_T}, s{S_HS}, 8')
    a(f's_add_u32 s{S_O}, s{S_O}, s{S_T}'); a(f's_add_u32 s{S_O}, s{S_O}, {VM_OFF}')
    def fin(n):
        x=V_ACC+4*n
        return [f'v_add_f32 v{x}, v{x}, v{x+2}', f'v_add_f32 v{x+1}, v{x+1}, v{x+3}', f'v_cvt_pk_bf16_f32 v{x}, v{x}, v{x+1}',
                f'buffer_store_dword v{x}, v{V_L4}, {ws}, s{S_O} offen sc1\ns_add_u32 s{S_O}, s{S_O}, {H*256}']
    for n in range(7):
        f=fin(n-1) if n else []
        for i in range(7):
            a(f'{SMF} {vr(V_ACC+4*n,4)}, {vr(V_M+4*i,4)}, {Wf(n,2*i,8)}, v{V_IDX}')
            if i>=2 and f: a(f.pop(0))
    for x in fin(6): a(x)
    a(f's_lshl_b32 s{S_F}, s{S_S}, 8'); a(f's_lshl_b32 s{S_T}, s{S_ID}, 2'); a(f's_add_u32 s{S_F}, s{S_F}, s{S_T}'); a(f's_add_u32 s{S_F}, s{S_F}, {FL_OFF+128}')
    a('s_waitcnt vmcnt(0)'); a('s_barrier')
    setflag(a,V_ONE,V_OOB,S_F)
    a(f's_add_u32 s{S_S}, s{S_S}, {NV}'); a(f's_cmp_lt_u32 s{S_S}, {NSEG}'); a(f's_cbranch_scc1 {t2}')
    a('s_branch L_fin')

def gen_S(a, P):
    V_L16,V_ONE,V_OOB,V_XR,V_KX,V_KXH,V_KM,V_KMH,V_SW,V_SWM,V_SR,V_SRM,V_PX,V_PM,V_NEG,V_T = range(16)
    V_ACC=16; V_XB=72; V_K=88; V_MK=72
    S_O=22; S_F=24; S_NX=25; S_KA=26; S_MK=48
    L_S=65536; RS=176; WSZ=32*RS
    l=V_ACC; t=V_ACC+1; u=V_ACC+2
    a(f'v_mov_b32 v{l}, v0'); a(f'v_lshlrev_b32 v{V_L16}, 4, v{l}'); flagregs(a,V_ONE,V_OOB,l)
    lx(a,V_KX,l,t,[(5,1,12),(4,1,9),(0,4,4)]); lx(a,V_KXH,l,t,[(5,1,9),(4,1,3),(0,4,4)],256)
    a(f's_mul_i32 s{S_T}, s{S_W}, {7*256}')
    lx(a,V_KM,l,t,[(5,1,8),(4,1,5),(1,2,6),(0,1,4)],f's{S_T}'); lx(a,V_KMH,l,t,[(5,1,5),(4,1,3),(1,2,6),(0,1,4)],[f's{S_T}',1536])
    a(f's_mul_i32 s{S_T}, s{S_W}, {WSZ}'); a(f's_add_u32 s{S_T}, s{S_T}, {L_S}')
    lx(a,u,l,t,[(0,4,0)]); a(f'v_mul_u32_u24 v{u}, {RS}, v{u}'); a(f'v_add_u32 v{u}, s{S_T}, v{u}')
    lx(a,V_SW,l,t,[(5,1,6),(4,1,3)]); a(f'v_add_u32 v{V_SW}, v{V_SW}, v{u}'); lx(a,V_SWM,l,t,[(4,1,4)],128); a(f'v_add_u32 v{V_SWM}, v{V_SWM}, v{u}')
    a(f's_mul_i32 s{S_T}, s{S_W}, {8*RS}'); a(f's_add_u32 s{S_T}, s{S_T}, {L_S}')
    lx(a,u,l,t,[(3,3,0)]); a(f'v_mul_u32_u24 v{u}, {RS}, v{u}'); a(f'v_add_u32 v{u}, s{S_T}, v{u}')
    lx(a,V_SR,l,t,[(0,3,4)]); a(f'v_add_u32 v{V_SR}, v{V_SR}, v{u}'); lx(a,V_SRM,l,t,[(0,3,2)],128); a(f'v_add_u32 v{V_SRM}, v{V_SRM}, v{u}')
    a(f's_lshr_b32 s{S_T}, s{S_W}, 1'); a(f's_and_b32 s{S_T+1}, s{S_W}, 1')
    a(f's_lshl_b32 s{S_T+2}, s{S_T}, 4'); a(f's_add_u32 s{S_T+2}, s{S_T+2}, s{S_ID}')
    a(f's_lshl_b32 s{S_T+3}, s{S_T+2}, 10'); a(f's_lshl_b32 s{S_T+4}, s{S_T+1}, 7'); a(f's_add_u32 s{S_T+3}, s{S_T+3}, s{S_T+4}')
    lx(a,V_PX,l,t,[(1,2,8),(3,3,4),(0,1,3)],[f's{S_T+3}',PX_OFF])
    a(f's_lshl_b32 s{S_T+3}, s{S_T+2}, 8'); a(f's_lshl_b32 s{S_T+4}, s{S_T+1}, 5'); a(f's_add_u32 s{S_T+3}, s{S_T+3}, s{S_T+4}')
    lx(a,V_PM,l,t,[(1,2,6),(3,3,2),(0,1,30)],[f's{S_T+3}',PM_OFF])
    a(f's_lshl_b32 s{S_T+3}, s{S_T+1}, 4'); a(f's_lshl_b32 s{S_T+4}, s{S_T}, 2'); a(f's_add_u32 s{S_T+3}, s{S_T+3}, s{S_T+4}')
    lx(a,u,l,t,[(5,1,3),(3,2,0)],f's{S_T+3}'); lx(a,V_T,l,t,[(0,3,2)])
    for r in range(4):
        a(f'v_cmp_le_u32 s[{S_MK+2*r}:{S_MK+2*r+1}], v{V_T}, v{u}'); a(f'v_add_u32 v{V_T}, 1, v{V_T}')
    a(f'v_mov_b32 v{V_NEG}, 0xceabfb8f')
    a(f's_mov_b32 s{S_XB}, 0'); a(f's_mov_b32 s{S_S}, s{S_J}')
    if P.get('sdelay',1):
        lx(a,u,l,t,[(0,4,2)]); a(f's_mov_b32 s{S_O}, {FL_OFF}'); wpoll(a,u,f's{S_O}',V_T,1,sleep=8)
    xdma(a,V_L16,S_S)
    load_weights(a,WA_OFF,V_L16)
    top=a.new('Stop'); nd=a.new('nd'); lp=a.new('Smp'); ok=a.new('Smo')
    a('s_waitcnt vmcnt(0)'); a('s_barrier'); tl(a,P,72)
    a.label(top)
    a(f'v_add_u32 v{V_XR}, s{S_XB}, v{V_L16}'); a(f's_xor_b32 s{S_XB}, s{S_XB}, 32768')
    a(f's_add_u32 s{S_NX}, s{S_S}, {NSW}'); a(f's_cmp_ge_u32 s{S_NX}, {NSEG}'); a(f's_cbranch_scc1 {nd}')
    xdma(a,V_L16,S_NX)
    a.label(nd)
    a(f's_mul_i32 s{S_KA}, s{S_S}, {XA_SEG}'); a(f's_lshl_b32 s{S_T}, s{S_W}, 10'); a(f's_add_u32 s{S_KA}, s{S_KA}, s{S_T}'); a(f's_add_u32 s{S_KA}, s{S_KA}, {XA_OFF}')
    S_KB=60
    for q in range(4): a(f's_add_u32 s{S_KB+q}, s{S_KA}, {8192*q}')
    fill=[]
    for kt in range(2):
        for q in range(3): fill.append(lambda kt=kt,q=q: a(f'buffer_load_dwordx4 {vr(V_K+14*kt+4*q,4)}, v{V_KX}, {ws}, s{S_KB+2*kt+q//2} offen offset:{(q%2)*256} sc1'))
        fill.append(lambda kt=kt: a(f'buffer_load_dwordx2 {vr(V_K+14*kt+12,2)}, v{V_KXH}, {ws}, s{S_KB+2*kt+1} offen sc1'))
    acc=lambda tt,n: V_ACC+28*tt+4*n
    V_FL=116
    a(f's_lshl_b32 s{S_KA+2}, s{S_S}, 8'); a(f's_add_u32 s{S_KA+2}, s{S_KA+2}, {FL_OFF+192}'); a(f'v_bfe_u32 v{V_FL+1}, v{V_L16}, 4, 1'); a(f'v_lshlrev_b32 v{V_FL+1}, 2, v{V_FL+1}')
    fill.append(lambda: a(f'buffer_load_dword v{V_FL}, v{V_FL+1}, {ws}, s{S_KA+2} offen sc1'))
    gemm32(a,V_XR,V_XB,acc,True,fill)
    def mload():
        for q in range(3): a(f'buffer_load_dwordx4 {vr(V_MK+4*q,4)}, v{V_KM}, {ws}, s{S_O} offen offset:{512*q} sc1')
        a(f'buffer_load_dwordx2 {vr(V_MK+12,2)}, v{V_KMH}, {ws}, s{S_O} offen sc1')
    a(f's_lshl_b32 s{S_O}, s{S_S}, 13'); a(f's_add_u32 s{S_O}, s{S_O}, {MG_OFF}')
    e1=a.new('e'); e2=a.new('e')
    a('s_waitcnt vmcnt(0)'); a(f'v_cmp_gt_u32 s[{S_KA+4}:{S_KA+5}], 1, v{V_FL}'); a(f's_cmp_lg_u64 s[{S_KA+4}:{S_KA+5}], 0'); a(f's_cbranch_scc1 {e1}'); mload(); a.label(e1)
    for q in range(4):
        for tt in range(2):
            x=acc(tt,2*q); y=x+4
            if q<3:
                a(f'v_cvt_pk_bf16_f32 v{x}, v{x}, v{x+1}'); a(f'v_cvt_pk_bf16_f32 v{x+1}, v{y}, v{y+1}'); a(f'v_cvt_pk_bf16_f32 v{x+2}, v{x+2}, v{x+3}'); a(f'v_cvt_pk_bf16_f32 v{x+3}, v{y+2}, v{y+3}')
            else: a(f'v_cvt_pk_bf16_f32 v{x}, v{x}, v{x+1}'); a(f'v_cvt_pk_bf16_f32 v{x+1}, v{x+2}, v{x+3}')
    S=lambda kt,tt: acc(tt,2*kt+1)
    def s2(kts):
        for q in range(4):
            for kt in kts:
                for tt in range(2):
                    d=vr(S(kt,tt),4); k=(V_K+14*kt if kt<2 else V_MK)+4*q
                    if q<3: a(f'{MF} {d}, {vr(k,4)}, {vr(acc(tt,2*q),4)}, {d if q else 0}')
                    else: a(f'{MFH} {d}, {vr(k,2)}, {vr(acc(tt,6),2)}, {d}')
    s2([0,1])
    for tt in range(2):
        if tt: a(f'v_add_u32 v{V_T}, {16*RS}, v{V_SW}')
        for r in range(4): a(f'ds_write2_b32 v{V_T if tt else V_SW}, v{S(0,tt)+r}, v{S(1,tt)+r} offset0:{4*r} offset1:{4*r+1}')
    a(f's_cmp_eq_u64 s[{S_KA+4}:{S_KA+5}], 0'); a(f's_cbranch_scc1 {e2}'); mwait(a,V_MK,V_L16); mload(); a.label(e2); a(f's_mov_b32 s{S_TO}, {WTIME}')
    a.label(lp)
    a('s_waitcnt vmcnt(0)')
    a(f'v_max_u32 v{V_T}, v{V_MK}, v{V_MK+1}')
    for k in range(1,7): a(f'v_max3_u32 v{V_T}, v{V_T}, v{V_MK+2*k}, v{V_MK+2*k+1}')
    a(f'v_cmp_eq_u32 vcc, -1, v{V_T}'); a(f's_cbranch_vccz {ok}')
    a('s_sleep 1'); mload()
    a(f's_sub_u32 s{S_TO}, s{S_TO}, 1'); a(f's_cbranch_scc0 {lp}'); a(f's_branch {abort}')
    a.label(ok); tl(a,P,74)
    s2([2])
    for tt in range(2): a(f'ds_write_b128 v{V_SWM}, {vr(S(2,tt),4)} offset:{tt*16*RS}')
    a('s_waitcnt lgkmcnt(0)'); a('s_barrier')
    R=V_ACC; Rm=V_ACC+16; E=V_ACC+20; t=V_ACC+28
    for w in range(4): a(f'ds_read_b128 {vr(R+4*w,4)}, v{V_SR} offset:{w*WSZ}')
    for w in range(4): a(f'ds_read_b32 v{Rm+w}, v{V_SRM} offset:{w*WSZ}')
    a(f's_lshl_b32 s{S_O}, s{S_S}, 15'); a(f's_lshl_b32 s{S_T+1}, s{S_S}, 13')
    a(f's_lshl_b32 s{S_F}, s{S_S}, 8'); a(f's_lshl_b32 s{S_T}, s{S_ID}, 2'); a(f's_add_u32 s{S_F}, s{S_F}, s{S_T}'); a(f's_add_u32 s{S_F}, s{S_F}, {FL_OFF+64}')
    a('s_waitcnt lgkmcnt(0)')
    pk=lambda d,x,y: a(f'v_pk_add_f32 {vr(d,2)}, {vr(x,2)}, {vr(y,2)}')
    pk(R,R,R+4); pk(R+2,R+2,R+6); pk(R+8,R+8,R+12); pk(R+10,R+10,R+14); pk(Rm,Rm,Rm+2); pk(R,R,R+8); pk(R+2,R+2,R+10); a(f'v_add_f32 v{R+4}, v{Rm}, v{Rm+1}')
    for r in range(4): a(f'v_cndmask_b32 v{R+r}, v{V_NEG}, v{R+r}, s[{S_MK+2*r}:{S_MK+2*r+1}]')
    dpps=['quad_perm:[1,0,3,2]','quad_perm:[2,3,0,1]','row_half_mirror']
    a(f'v_max3_f32 v{t}, v{R}, v{R+1}, v{R+2}'); a(f'v_max3_f32 v{t}, v{t}, v{R+3}, v{R+4}')
    for m in dpps: a(f'v_max_f32_dpp v{t}, v{t}, v{t} {m} row_mask:0xf bank_mask:0xf')
    for k in range(5): a(f'v_sub_f32 v{R+k}, v{R+k}, v{t}')
    for k in (4,0,1,2,3): a(f'v_exp_f32 v{E+k}, v{R+k}')
    a(f'v_mov_b32_dpp v{E+5}, v{E+4} quad_perm:[1,0,3,2] row_mask:0xf bank_mask:0xf')
    pk(t,E,E+2); a(f'v_add_f32 v{t}, v{t}, v{E+4}'); a(f'v_add_f32 v{t}, v{t}, v{t+1}')
    for m in dpps: a(f'v_add_f32_dpp v{t}, v{t}, v{t} {m} row_mask:0xf bank_mask:0xf')
    a(f'v_rcp_f32 v{t}, v{t}')
    for k in range(3): a(f'v_pk_mul_f32 {vr(E+2*k,2)}, {vr(E+2*k,2)}, {vr(t,2)} op_sel_hi:[1,0]')
    for k in range(3): a(f'v_cvt_pk_bf16_f32 v{t+2+k}, v{E+2*k}, v{E+2*k+1}')
    a(f'buffer_store_dwordx2 {vr(t+2,2)}, v{V_PX}, {ws}, s{S_O} offen sc1')
    a(f'buffer_store_dword v{t+4}, v{V_PM}, {ws}, s{S_T+1} offen sc1')
    a('s_waitcnt vmcnt(0)'); a('s_barrier')
    setflag(a,V_ONE,V_OOB,S_F)
    a(f's_mov_b32 s{S_S}, s{S_NX}'); a(f's_cmp_lt_u32 s{S_S}, {NSEG}'); a(f's_cbranch_scc1 {top}')
    a('s_branch L_fin')

def gen_PF(a, P):
    V_PO,V_TH,V_T,V_L,V_HS,V_HV,V_FI=1,2,3,4,5,6,7; V_D=8; V_MO=15; V_MD=20; S_PM=30; S_PG=31; V_L1=36; V_L2=37
    S_O=60; S_R=66
    S_I=28
    t=V_T; NTI=(5+7*P['pfl']+5)//6; assert P['pfl']<=4
    def setup():
        a(f'v_lshlrev_b32 v{V_L}, 7, v0')
        lx(a,V_PO,0,t,[(0,4,2)])
        a(f's_mul_i32 s{S_I}, s{S_ID}, 3'); a(f's_add_u32 s{S_I}, s{S_I}, s{S_W}'); a(f's_sub_u32 s{S_I}, s{S_I}, 1')
        a(f'v_add_u32 v{t}, s{S_ID}, v0'); a(f'v_min_u32 v{t}, 1, v{t}'); a(f'v_lshlrev_b32 v{t}, 30, v{t}'); a(f'v_or_b32 v{V_HS}, {R_HM+14*4}, v{t}')
        a(f's_mul_i32 s{S_T}, s{S_ID}, 3072'); a(f'v_lshlrev_b32 v{V_MO}, 4, v0'); a(f'v_add_u32 v{V_MO}, s{S_T}, v{V_MO}')
        a(f's_mov_b32 s{S_PM}, {R_M+8192}'); a(f's_mov_b32 s{S_PG}, {MG_OFF+8192}')
        lx(a,V_L2,0,t,[(5,1,15),(0,5,7)])
        for k in range(NTI):
            a(f's_add_u32 s{S_T}, s{S_I}, {6*k-5 if k else (6*k-5)&0xffffffff}')
            a(f's_mul_i32 s{S_T+1}, s{S_T}, 37'); a(f's_lshr_b32 s{S_T+1}, s{S_T+1}, 8'); a(f's_mul_i32 s{S_T+2}, s{S_T+1}, 7'); a(f's_sub_u32 s{S_T+2}, s{S_T}, s{S_T+2}')
            a(f's_lshl_b32 s{S_T+2}, s{S_T+2}, 16'); a(f's_lshl_b32 s{S_T+1}, s{S_T+1}, 12'); a(f's_sub_u32 s{S_T+2}, s{S_T+2}, s{S_T+1}'); a(f's_add_u32 s{S_O+k}, s{S_T+2}, {VX_OFF+7*4096}')
            a(f's_cmp_ge_u32 s{S_T}, {7*P["pfl"]}'); a(f's_cselect_b32 s{S_O+k}, 0x40000000, s{S_O+k}'); a(f's_mov_b32 s{S_R+k}, {VX_SEG}')
        a(f's_cmp_lt_u32 s{S_I}, 5'); a('s_cselect_b64 vcc, -1, 0'); a(f'v_cndmask_b32 v{V_L1}, v{V_L2}, v{V_L}, vcc')
        a(f's_lshl_b32 s{S_T}, s{S_I}, 13'); a(f's_add_u32 s{S_T}, s{S_T}, {XA_OFF}')
        a(f's_cmp_lt_u32 s{S_I}, 4'); a(f's_cselect_b32 s{S_O}, s{S_T}, s{S_O}'); a(f's_cselect_b32 s{S_R}, {XA_SEG}, s{S_R}')
        a(f's_cmp_eq_u32 s{S_I}, 4'); a(f's_cselect_b32 s{S_O}, {RING_OFF+R_M+2*8192}, s{S_O}'); a(f's_cselect_b32 s{S_R}, 8192, s{S_R}')
        a(f's_lshl_b32 s{S_T}, s{S_ID}, 2'); a(f's_add_u32 s{S_T}, s{S_T}, s{S_W}'); a(f's_lshl_b32 s{S_T+1}, s{S_T}, 14'); a(f's_add_u32 s{S_T+1}, s{S_T+1}, {RING_OFF}')
        a(f'buffer_load_dword v{V_D}, v{V_L}, {ws}, s{S_T+1} offen sc1'); a(f's_add_u32 s{S_T+1}, s{S_T+1}, 8192'); a(f'buffer_load_dword v{V_D}, v{V_L}, {ws}, s{S_T+1} offen sc1')
        a(f's_and_b32 s{S_T}, s{S_T}, 1'); a(f's_lshl_b32 s{S_T}, s{S_T}, 13'); a(f's_add_u32 s{S_T}, s{S_T}, {RING_OFF+R_M}'); a(f'buffer_load_dword v{V_D}, v{V_L}, {ws}, s{S_T} offen sc1')
    def body(sc,tag):
        st=' sc1' if sc else ''
        AH=P['pfah']; LD=P['pfld']; S_FO=32; S_FF=33
        pub=a.new('PFpub')
        a(f'v_mov_b32 v{V_TH}, 0'); a(f'ds_write_b32 v{V_TH}, v{V_TH}'); a('s_waitcnt lgkmcnt(0)'); a('s_barrier')
        a(f's_cmp_eq_u32 s{S_W}, 0'); a(f's_cbranch_scc1 {pub}')
        a(f's_mov_b32 s{S_S}, 0')
        top=a.new('PFtop'); lp=a.new('PFg'); go=a.new('PFgo')
        a.label(top)
        a(f's_sub_i32 s{S_T}, s{S_S}, {LD-1}'); a(f's_max_i32 s{S_T}, s{S_T}, 1'); a(f's_mov_b32 s{S_TO}, {8*WTIME}')
        a.label(lp)
        a(f'ds_read_b32 v{V_T}, v{V_TH}'); a('s_waitcnt lgkmcnt(0)'); a(f'v_cmp_gt_u32 vcc, s{S_T}, v{V_T}'); a(f's_cbranch_vccz {go}')
        a('s_sleep 1'); a(f's_sub_u32 s{S_TO}, s{S_TO}, 1'); a(f's_cbranch_scc0 {lp}'); a(f's_branch {abort}')
        a.label(go)
        for k in range(NTI):
            a(f's_waitcnt vmcnt({P["pfq"]})')
            a(f'buffer_load_dword v{V_D}, v{V_L2 if k else V_L1}, {ws}, s{S_O+k} offen sc1'); a(f's_add_u32 s{S_O+k}, s{S_O+k}, s{S_R+k}')
        a(f's_add_u32 s{S_S}, s{S_S}, 1'); a(f's_cmp_lt_u32 s{S_S}, {NSEG-1}'); a(f's_cbranch_scc1 {top}')
        a('s_branch L_fin')
        a.label(pub)
        a(f's_mov_b32 s{S_FF}, {FL_OFF}')
        for k in range(AH+1): wpoll(a,V_PO,f's{S_FF}',V_T,1,sleep=2); a(f's_add_u32 s{S_FF}, s{S_FF}, 256')
        def note():
            a(f's_add_u32 s{S_T}, s{S_S}, 1'); a(f'v_mov_b32 v{V_T}, s{S_T}'); a(f'ds_write_b32 v{V_TH}, v{V_T}')
            a(f's_add_u32 s{S_T}, s{S_S}, {AH}'); a(f'v_mov_b32 v{V_HV}, s{S_T}')
            a(f'buffer_store_dword v{V_HV}, v{V_HS}, s[{S_RING}:{S_RING+3}], 0 offen{st}')
        def mflag():
            a('s_waitcnt lgkmcnt(0)'); a('s_mov_b32 s2, 1'); a(f's_atomic_or s2, s[58:59], s{S_FO} glc'); a(f's_add_u32 s{S_FO}, s{S_FO}, 256')
        a(f's_mov_b32 s{S_S}, 0'); note()
        a(f's_lshl_b32 s{S_FO}, s{S_ID}, 2'); a(f's_add_u32 s{S_FO}, s{S_FO}, {FL_OFF+192}')
        a(f's_mov_b32 s{S_S}, 1')
        nx=a.new('pubn'); lp=a.new('pub'); ok=a.new('pubok'); first=a.new('pubf')
        def lds():
            for k in range(4): a(f'buffer_load_dwordx4 {vr(V_MD+4*k,4)}, v{V_MO}, s[{S_RING}:{S_RING+3}], s{S_PM} offen offset:{1024*k} sc1')
            a(f'buffer_load_dword v{V_FI}, v{V_PO}, {ws}, s{S_FF} offen sc1')
        a.label(nx); a(f's_mov_b32 s{S_TO}, {WTIME}')
        lds(); a('s_waitcnt vmcnt(5)'); mflag()
        a.label(lp)
        a('s_waitcnt vmcnt(0)')
        a(f'v_subrev_u32 v{V_T}, 1, v{V_FI}')
        for k in range(8): a(f'v_max3_u32 v{V_T}, v{V_T}, v{V_MD+2*k}, v{V_MD+2*k+1}')
        a(f'v_cmp_eq_u32 vcc, -1, v{V_T}'); a(f's_cbranch_vccz {ok}')
        a('s_sleep 2'); lds(); a(f's_sub_u32 s{S_TO}, s{S_TO}, 1'); a(f's_cbranch_scc0 {lp}'); a(f's_branch {abort}')
        a.label(ok)
        note()
        for k in range(4): a(f'buffer_store_dwordx4 {vr(V_MD+4*k,4)}, v{V_MO}, {ws}, s{S_PG} offen offset:{1024*k} sc1')
        a(f's_add_u32 s{S_PM}, s{S_PM}, 8192'); a(f's_add_u32 s{S_PG}, s{S_PG}, 8192'); a(f's_add_u32 s{S_FF}, s{S_FF}, 256'); a(f's_min_u32 s{S_FF}, s{S_FF}, {FL_OFF+63*256}')
        a(f's_add_u32 s{S_S}, s{S_S}, 1'); a(f's_cmp_lt_u32 s{S_S}, {NSEG-1}'); a(f's_cbranch_scc1 {nx}')
        a('s_waitcnt vmcnt(0)'); mflag()
        a('s_branch L_fin')
    return setup, body

def gen_G(a, P):
    S_I=26; S_X0=20; S_X1=21; S_WO=27; S_F=24; S_O=22; S_THR=30; S_FLR=31; S_KB=32; S_KO=33
    V_L16,V_ONE,V_OOB,V_XO,V_T,V_T2,V_OO,V_PO,V_L = range(9)
    l=V_L; t=V_T
    a(f'v_mov_b32 v{l}, v0'); a(f'v_lshlrev_b32 v{V_L16}, 4, v{l}'); flagregs(a,V_ONE,V_OOB,l)
    lx(a,V_T2,l,t,[(4,1,0)]); a(f'v_mul_u32_u24 v{V_T2}, 14336, v{V_T2}'); lx(a,V_XO,l,t,[(5,1,8),(0,4,4)]); a(f'v_add_u32 v{V_XO}, v{V_XO}, v{V_T2}')
    lx(a,V_OO,l,t,[(4,1,14),(5,1,8),(0,4,4)])
    a(f's_lshl_b32 s{S_S}, s{S_J}, 3'); a(f's_lshl_b32 s{S_T}, s{S_W}, 1'); a(f's_add_u32 s{S_S}, s{S_S}, s{S_T}')
    a(f's_mul_i32 s{S_X0}, s{S_S}, {XF_SEG}'); a(f's_add_u32 s{S_X0}, s{S_X0}, {XF_OFF}'); a(f's_add_u32 s{S_X1}, s{S_X0}, {XF_SEG}')
    a(f's_mul_i32 s{S_WO}, s{S_ID}, {84*1024}'); a(f's_add_u32 s{S_WO}, s{S_WO}, {WQF_OFF}'); a(f's_add_u32 s{S_WO+1}, s{S_WO}, {28*1024}'); a(f's_add_u32 s{S_WO+2}, s{S_WO}, {56*1024}')
    ACC=16; BUF=112; DEP=5
    acc=lambda b,sel: ACC+48*b+16*sel
    vm=Cnt(a,'vmcnt',63)
    def ld(ks):
        r=BUF+20*(ks%DEP)
        if ks and ks%8==0: a(f's_add_u32 s{S_X0}, s{S_X0}, 4096'); a(f's_add_u32 s{S_X1}, s{S_X1}, 4096')
        if ks and ks%4==0:
            for q in range(3): a(f's_add_u32 s{S_WO+q}, s{S_WO+q}, 4096')
        L=[f'buffer_load_dwordx4 {vr(r+4*b,4)}, v{V_XO}, {ws}, s{S_X0+b} offen offset:{512*(ks%8)} sc1' for b in range(2)]
        L+=[f'buffer_load_dwordx4 {vr(r+8+4*q,4)}, v{V_L16}, {ws}, s{S_WO+q} offen offset:{1024*(ks%4)} sc1' for q in range(3)]
        return L
    for ks in range(DEP-1):
        for x in ld(ks): a(x); vm.issue(f'k{ks}')
    a(f'v_and_b32 v{t}, 31, v{l}'); a(f'v_cmp_eq_u32 vcc, 28, v{t}'); a(f'v_cndmask_b32 v{t}, 0, 1.0, vcc')
    for b in range(2):
        for r in range(16): a(f'v_mov_b32 v{acc(b,2)+r}, v{t}')
    for ks in range(28):
        vm.wait(f'k{ks}'); r=BUF+20*(ks%DEP)
        L=ld(ks+DEP-1) if ks+DEP-1<28 else []
        for b in range(2):
            for sel in range(3):
                d=vr(acc(b,sel),16); x=vr(r+4*b,4); w=vr(r+8+4*sel,4)
                A,B=(w,x) if sel<2 else (x,w)
                a(f'{M32} {d}, {A}, {B}, {d if (ks or sel==2) else 0}')
                if L and (b or sel): a(L.pop(0)); vm.issue(f'k{ks+DEP-1}')
    Q=112
    a(f's_lshl_b32 s{S_O}, s{S_ID}, 6'); a(f's_add_u32 s{S_O}, s{S_O}, s{S_S}'); a(f's_lshl_b32 s{S_O}, s{S_O}, 12'); a(f's_add_u32 s{S_O}, s{S_O}, {KF_OFF}')
    for b in range(2):
        for sel in (1,2):
            x=acc(b,sel)
            for r in range(8): a(f'v_cvt_pk_bf16_f32 v{x+r}, v{x+2*r}, v{x+2*r+1}')
            for f in range(2): a(f'buffer_store_dwordx4 {vr(x+4*f,4)}, v{V_L16}, {ws}, s{S_O} offen offset:{(2*(sel-1)+f)*1024} sc1')
        if b==0: a(f's_add_u32 s{S_O}, s{S_O}, 4096')
    ng=a.new('ng'); a(f's_cmp_lg_u32 s{S_ID}, 0'); a(f's_cbranch_scc1 {ng}')
    a(f's_lshl_b32 s{S_T}, s{S_S}, 7'); a(f's_add_u32 s{S_T}, s{S_T}, {G_OFF}')
    lx(a,V_T2,l,t,[(0,5,2),(5,1,30)]); a(f'v_xor_b32 v{V_T2}, 0x40000000, v{V_T2}')
    for b in range(2):
        y=BUF+20+b
        a(f'v_mul_f32 v{y}, 0xbfb8aa3b, v{acc(b,0)+12}'); a(f'v_exp_f32 v{y}, v{y}'); a(f'v_add_f32 v{y}, 1.0, v{y}'); a(f'v_rcp_f32 v{y}, v{y}'); a('s_nop 0')
        a(f'buffer_store_dword v{y}, v{V_T2}, {ws}, s{S_T} offen offset:{128*b} sc1')
    a.label(ng)
    a(f's_mov_b32 s{S_T}, 0x3e8b97f6')
    for b in range(2):
        x=acc(b,0)
        for r in range(16): a(f'v_mul_f32 v{x+r}, s{S_T}, v{x+r}')
        for r in range(8): a(f'v_cvt_pk_bf16_f32 v{Q+8*b+r}, v{x+2*r}, v{x+2*r+1}')
    a(f's_lshl_b32 s{S_O}, s{S_ID}, 8'); a(f's_add_u32 s{S_O}, s{S_O}, {FK_OFF}'); a(f's_lshl_b32 s{S_F}, s{S_J}, 2'); a(f's_add_u32 s{S_F}, s{S_F}, s{S_O}')
    a('s_waitcnt vmcnt(0)'); a('s_barrier')
    lx(a,V_PO,l,t,[(0,3,2)])
    wave0(a, lambda:(a(f'buffer_store_dword v{V_ONE}, v{V_OOB}, {ws}, s{S_F} offen sc1'), wpoll(a,V_PO,f's{S_O}',V_T,1,sleep=2)))
    a('s_barrier')
    tl(a,P,72)
    S=[16,32]; C=[48,64]; O=[80,96]; Pp=[128,136]; KV=144; NR=4
    kv=lambda i,f: vr(KV+16*(i%NR)+4*f,4)
    a(f's_lshl_b32 s{S_KO}, s{S_ID}, 18'); a(f's_add_u32 s{S_KO}, s{S_KO}, {KF_OFF}')
    kld=lambda i,f: f'buffer_load_dwordx4 {kv(i,f)}, v{V_L16}, {ws}, s{S_KO} offen offset:{1024*f} sc1'
    nxt=f's_add_u32 s{S_KO}, s{S_KO}, 4096'
    for i in range(2):
        for f in range(4): a(kld(i,f))
        a(nxt)
    for r in range(32): a(f'v_mov_b64 {vr(48+2*r,2)}, 0')
    for r in range(4): a(f'v_mov_b64 {vr(Pp[1]+2*r,2)}, 0')
    for r in range(4): a(f'v_mov_b64 {vr(KV+16*(NR-1)+8+2*r,2)}, 0')
    a(f's_mov_b32 s{S_THR}, 0xff800000'); a(f's_mov_b32 s{S_FLR}, 0xff800000'); a(f's_mov_b32 s{S_KB}, 0')
    qk=lambda b,i:[f'{M32} {vr(S[b],16)}, {kv(i,0)}, {vr(Q+8*b,4)}, {vr(C[b],16)}', f'{M32} {vr(S[b],16)}, {kv(i,1)}, {vr(Q+8*b+4,4)}, {vr(S[b],16)}']
    pv=lambda b,i:[f'{M32} {vr(O[b],16)}, {kv(i,2+f)}, {vr(Pp[b]+4*f,4)}, {vr(O[b],16)}' for f in range(2)]
    a('s_waitcnt vmcnt(4)')
    for x in qk(0,0): a(x)
    a('s_nop 15')
    top=a.new('Atop'); a.label(top); ool=[]
    def phase(b, mf, extra):
        s=S[b]; rsc=a.new('rsc'); bk=a.new('rsb')
        a(mf[0])
        a(f'v_max3_f32 v{t}, v{s}, v{s+1}, v{s+2}'); a(f'v_max3_f32 v{V_T2}, v{s+3}, v{s+4}, v{s+5}')
        a(f'v_max3_f32 v{t}, v{t}, v{s+6}, v{s+7}'); a(f'v_max3_f32 v{V_T2}, v{V_T2}, v{s+8}, v{s+9}')
        a(f'v_max3_f32 v{t}, v{t}, v{s+10}, v{s+11}'); a(f'v_max3_f32 v{V_T2}, v{V_T2}, v{s+12}, v{s+13}')
        a(mf[1])
        a(f'v_max3_f32 v{t}, v{t}, v{s+14}, v{s+15}'); a(f'v_max_f32 v{t}, v{t}, v{V_T2}')
        a(f'v_cmp_lt_f32 vcc, s{S_THR}, v{t}')
        for x in extra: a(x)
        a(f's_cbranch_vccnz {rsc}'); a.label(bk)
        for r in range(16):
            a(f'v_exp_f32 v{s+r}, v{s+r}')
            if r==1: a(mf[2])
            if r==5: a(mf[3])
            if r>=9 : a(f'v_cvt_pk_bf16_f32 v{Pp[b]+r-9}, v{s+2*(r-9)}, v{s+2*(r-9)+1}')
        a(f'v_cvt_pk_bf16_f32 v{Pp[b]+7}, v{s+14}, v{s+15}')
        def out():
            a.label(rsc)
            a(f'v_mov_b32 v{V_T2}, v{t}'); a(f'v_permlane32_swap_b32 v{t}, v{V_T2}'); a(f'v_max3_f32 v{t}, v{t}, v{V_T2}, s{S_FLR}')
            a(f'v_max_f32 v{V_T2}, 0, v{t}'); a(f'v_exp_f32 v{V_T2}, -v{V_T2}')
            for r in range(16): a(f'v_sub_f32 v{s+r}, v{s+r}, v{t}')
            for r in range(16): a(f'v_sub_f32 v{C[b]+r}, v{C[b]+r}, v{t}')
            for r in range(16): a(f'v_mul_f32 v{O[b]+r}, v{O[b]+r}, v{V_T2}')
            a(f's_branch {bk}')
        ool.append(out)
    for i in range(NR):
        phase(0, qk(1,i)+pv(1,i-1), [kld(i+2,0),kld(i+2,1)])
        a('s_waitcnt vmcnt(4)')
        phase(1, qk(0,i+1)+pv(0,i), [kld(i+2,2),kld(i+2,3),nxt])
        if i==0: a(f's_mov_b32 s{S_THR}, 0x41000000'); a(f's_mov_b32 s{S_FLR}, 0')
    a(f's_add_u32 s{S_KB}, s{S_KB}, {NR}'); a(f's_cmp_lt_u32 s{S_KB}, 64'); a(f's_cbranch_scc1 {top}')
    for x in pv(1,NR-1): a(x)
    a(f's_lshl_b32 s{S_O}, s{S_S}, 15'); a(f's_lshl_b32 s{S_T}, s{S_ID}, 10'); a(f's_add_u32 s{S_O}, s{S_O}, s{S_T}'); a(f's_add_u32 s{S_O}, s{S_O}, {OF_OFF}')
    for b in range(2):
        o=O[b]
        a(f'v_mov_b32 v{t}, v{o+12}'); a(f'v_mov_b32 v{V_T2}, v{o+12}'); a(f'v_permlane32_swap_b32 v{t}, v{V_T2}'); a(f'v_rcp_f32 v{V_T2}, v{V_T2}')
        for r in range(16): a(f'v_mul_f32 v{o+r}, v{o+r}, v{V_T2}')
        for r in range(8): a(f'v_cvt_pk_bf16_f32 v{o+r}, v{o+2*r}, v{o+2*r+1}')
        for f in range(2): a(f'buffer_store_dwordx4 {vr(o+4*f,4)}, v{V_OO}, {ws}, s{S_O} offen offset:{512*f} sc1')
        if b==0: a(f's_add_u32 s{S_O}, s{S_O}, 32768')
    a(f's_lshl_b32 s{S_F}, s{S_J}, 8'); a(f's_lshl_b32 s{S_T}, s{S_ID}, 2'); a(f's_add_u32 s{S_F}, s{S_F}, s{S_T}'); a(f's_add_u32 s{S_F}, s{S_F}, {FO_OFF}')
    a('s_waitcnt vmcnt(0)'); a('s_barrier')
    setflag(a,V_ONE,V_OOB,S_F)
    ot=a.new('Otask'); a(f's_branch {ot}')
    for o in ool: o()
    a.label(ot); tl(a,P,74)
    no=a.new('no'); a(f's_bitcmp1_b32 s{S_I}, 0'); a(f's_cbranch_scc0 {no}')
    a(f's_lshr_b32 s{S_J}, s{S_J}, 1'); a(f'v_mov_b32 v0, v{l}'); a('s_branch L_roleS')
    a.label(no)
    a(f's_lshr_b32 s{S_I}, s{S_I}, 1'); a(f's_cmp_ge_u32 s{S_I}, {7*NOG}'); a('s_cbranch_scc1 L_fin')
    S_CG=20; S_A=21; S_B=27
    V_L4=9; V_G=10; V_CW=12; V_CR=13; V_ST=14; V_PB=15; V_C4=V_XO
    FX=16; FP=80; FM=112; FPM=128; AA=136; AB=168; G1=200
    WO=lambda n,hl: ar(16*n+4*hl,4)
    a(f's_mul_i32 s{S_S}, s{S_I}, 147'); a(f's_lshr_b32 s{S_S}, s{S_S}, 10'); a(f's_mul_i32 s{S_T}, s{S_S}, 7'); a(f's_sub_u32 s{S_CG}, s{S_I}, s{S_T}')
    a(f's_lshl_b32 s{S_T}, s{S_CG}, 16'); a(f's_lshl_b32 s{S_T+1}, s{S_W}, 12'); a(f's_add_u32 s{S_T}, s{S_T}, s{S_T+1}'); a(f's_add_u32 s{S_T}, s{S_T}, {WOF_OFF}')
    for n in range(4):
        for hl in range(4): a(f'buffer_load_dwordx4 {WO(n,hl)}, v{V_L16}, {ws}, s{S_T} offen offset:{1024*hl} sc1')
        a(f's_add_u32 s{S_T}, s{S_T}, 16384')
    a(f'v_lshlrev_b32 v{V_L4}, 2, v{l}'); lx(a,V_C4,l,t,[(0,4,2)]); lx(a,V_PB,l,t,[(0,5,2)],64)
    a(f's_lshl_b32 s{S_T}, s{S_W}, 13'); a(f'v_add_u32 v{V_CW}, s{S_T}, v{V_L16}'); a(f's_lshl_b32 s{S_T}, s{S_W}, 11'); a(f'v_add_u32 v{V_CR}, s{S_T}, v{V_L16}')
    lx(a,V_T2,l,t,[(2,2,3),(0,2,0)]); a(f'v_mul_u32_u24 v{V_T2}, 896, v{V_T2}')
    a(f's_lshl_b32 s{S_T}, s{S_CG}, 7'); a(f's_lshl_b32 s{S_T+1}, s{S_W}, 5'); a(f's_add_u32 s{S_T}, s{S_T}, s{S_T+1}'); lx(a,V_ST,l,t,[(4,2,3)],f's{S_T}'); a(f'v_add_u32 v{V_ST}, v{V_ST}, v{V_T2}')
    top=a.new('Otop'); a.label(top)
    a(f's_lshl_b32 s{S_F}, s{S_S}, 8'); a(f's_add_u32 s{S_F}, s{S_F}, {FL_OFF}')
    a(f's_lshr_b32 s{S_O}, s{S_S}, 3'); a(f's_lshl_b32 s{S_O}, s{S_O}, 8'); a(f's_add_u32 s{S_O}, s{S_O}, {FO_OFF}')
    wave0(a, lambda:(wpoll(a,V_C4,f's{S_O}',V_T,1,sleep=4), wpoll(a,V_C4,f's{S_F}',V_T,1,sleep=4)))
    a('s_barrier')
    a(f's_lshl_b32 s{S_A}, s{S_S}, 15'); a(f's_lshl_b32 s{S_T+1}, s{S_W}, 12'); a(f's_add_u32 s{S_A}, s{S_A}, s{S_T+1}')
    def frags(dst, off):
        a(f's_add_u32 s{S_T}, s{S_A}, {off}')
        for tt in range(2):
            for hl in range(4): a(f'buffer_load_dwordx4 {vr(dst+16*tt+4*hl,4)}, v{V_L16}, {ws}, s{S_T} offen offset:{1024*hl} sc1')
            if tt==0: a(f's_add_u32 s{S_T}, s{S_T}, 16384')
    a(f's_lshl_b32 s{S_T}, s{S_S}, 7'); a(f's_add_u32 s{S_T}, s{S_T}, {G_OFF}')
    for tt in range(2): a(f'buffer_load_dword v{V_G+tt}, v{V_C4}, {ws}, s{S_T} offen offset:{64*tt} sc1')
    frags(FP,OF_OFF)
    a(f's_mul_i32 s{S_T}, s{S_S}, {VX_SEG}'); a(f's_lshl_b32 s{S_T+2}, s{S_CG}, 16'); a(f's_add_u32 s{S_B}, s{S_T}, s{S_T+2}'); a(f's_lshl_b32 s{S_T+2}, s{S_W}, 10'); a(f's_add_u32 s{S_B}, s{S_B}, s{S_T+2}'); a(f's_add_u32 s{S_T}, s{S_B}, {VX_OFF}')
    for n in range(4):
        for hl in range(4): a(f'buffer_load_dwordx4 {vr(FX+16*n+4*hl,4)}, v{V_L16}, {ws}, s{S_T} offen sc1'); a(f's_add_u32 s{S_T}, s{S_T}, 4096')
    a('s_waitcnt vmcnt(16)')
    for hl in range(4):
        for n in range(4):
            for tt in range(2):
                d=vr(AA+8*n+4*tt,4); a(f'{MF} {d}, {WO(n,hl)}, {vr(FP+16*tt+4*hl,4)}, {d if hl else 0}')
    for tt in range(2): a(f'v_sub_f32 v{G1+tt}, 1.0, v{V_G+tt}')
    for n in range(4):
        for tt in range(2):
            for r in range(4): a(f'v_mul_f32 v{AA+8*n+4*tt+r}, v{AA+8*n+4*tt+r}, v{V_G+tt}')
    wave0(a, lambda: wpoll(a,V_PB,f's{S_F}',V_T,1,sleep=1))
    a('s_barrier'); tl(a,P,70)
    frags(FP,PX_OFF)
    a(f's_lshr_b32 s{S_T}, s{S_A}, 2'); a(f's_add_u32 s{S_T}, s{S_T}, {PM_OFF}')
    for tt in range(2):
        for hl in range(4): a(f'buffer_load_dword v{FPM+4*tt+hl}, v{V_L4}, {ws}, s{S_T} offen offset:{256*hl} sc1')
        if tt==0: a(f's_add_u32 s{S_T}, s{S_T}, 4096')
    a(f's_lshr_b32 s{S_T}, s{S_B}, 2'); a(f's_add_u32 s{S_T}, s{S_T}, {VM_OFF}')
    for n in range(4):
        for hl in range(4): a(f'buffer_load_dword v{FM+4*n+hl}, v{V_L4}, {ws}, s{S_T} offen offset:{1024*hl} sc1')
        if n<3: a(f's_add_u32 s{S_T}, s{S_T}, 4096')
    for tt in range(2):
        for hl in range(4):
            a(f's_waitcnt vmcnt({24+7-4*tt-hl})')
            for n in range(4):
                d=vr(AB+8*n+4*tt,4); a(f'{MF} {d}, {vr(FX+16*n+4*hl,4)}, {vr(FP+16*tt+4*hl,4)}, {d if hl else 0}')
    for n in range(4):
        a(f's_waitcnt vmcnt({12-4*n})')
        for tt in range(2):
            d=vr(AB+8*n+4*tt,4); a(f'{MF} {d}, {vr(FM+4*n,4)}, {vr(FPM+4*tt,4)}, {d}')
    for n in range(4):
        for tt in range(2):
            x=8*n+4*tt
            for r in range(4): a(f'v_fmac_f32 v{AA+x+r}, v{AB+x+r}, v{G1+tt}')
            a(f'ds_write_b128 v{V_CW}, {vr(AA+x,4)} offset:{256*x}')
    a(f's_mul_i32 s{S_O}, s{S_S}, {32*896}')
    a('s_waitcnt lgkmcnt(0)'); a('s_barrier')
    for tt in range(2):
        for w in range(4): a(f'ds_read_b128 {vr(AB+16*tt+4*w,4)}, v{V_CR} offset:{8192*w+1024*tt}')
    for tt in range(2):
        x=AB+16*tt
        a(f's_waitcnt lgkmcnt({4-4*tt})')
        for (d,p,q) in ((0,0,4),(2,2,6),(8,8,12),(10,10,14),(0,0,8),(2,2,10)): a(f'v_pk_add_f32 {vr(x+d,2)}, {vr(x+p,2)}, {vr(x+q,2)}')
        a(f'v_cvt_pk_bf16_f32 v{x}, v{x}, v{x+1}'); a(f'v_cvt_pk_bf16_f32 v{x+1}, v{x+2}, v{x+3}')
        a(f'buffer_store_dwordx2 {vr(x,2)}, v{V_ST}, s[{S_OUT}:{S_OUT+3}], s{S_O} offen offset:{4*896*tt}')
    a(f's_add_u32 s{S_S}, s{S_S}, {NOG}'); a(f's_cmp_lt_u32 s{S_S}, {NSEG}'); a(f's_cbranch_scc1 {top}')
    a('s_branch L_fin')
```

```python
import sys
from asmlib import *
from layout import *
import chain, workers, prep
from chain import *
from workers import *
from prep import srd, kd, PREP_LDS
NAME='gated_mix__softmax_full_mha__memory_aug_recurrent_mem_tr__prompt'
MAIN=NAME+'_kernel'
MAIN_LDS=147456+1024
TICK_LDS=147456
S_DBG=56
def census(a, v, fast, allin):
    lp=a.new('cs'); T=S_T
    a(f's_mov_b32 s{S_TO}, {WTIME}'); a(f'v_mbcnt_lo_u32_b32 v{v}, -1, 0'); a(f'v_cmp_gt_u32 vcc, 8, v{v}'); a(f'v_lshlrev_b32 v{v}, 5, v{v}'); a(f'v_cndmask_b32 v{v}, 4, v{v}, vcc')
    a.label(lp)
    a(f'global_load_dword v{v+1}, v{v}, s[{S_DBG}:{S_DBG+1}] sc1'); a('s_waitcnt vmcnt(0)')
    a(f'v_min_u32 v{v+2}, 32, v{v+1}'); a(f'v_readlane_b32 s{T+1}, v{v+1}, 8')
    for r in range(8):
        a(f'v_readlane_b32 s{T}, v{v+2}, {r}')
        if r==0 and fast: a(f's_cmp_eq_u32 s{T}, 32'); a(f's_cbranch_scc1 {fast}')
        a(f's_add_u32 s{T+1}, s{T+1}, s{T}')
    a(f's_cmp_ge_u32 s{T+1}, 256'); a(f's_cbranch_scc1 {allin}')
    a(f's_sub_u32 s{S_TO}, s{S_TO}, 1'); a(f's_cbranch_scc0 {lp}'); a('s_branch L_exit')
from prep2 import gen_tasks, gen_init, zero_flags, early_touch, wait_mat, wait_all, aggregate, K
def gen_main(a,P):
    nV=16*NV; nS=16*NSW
    a(MAIN+':')
    a(f"""s_cmp_ge_u32 s2, 256
s_cbranch_scc1 L_exit
s_load_dwordx4 s[{S_DBG}:{S_DBG+3}], s[0:1], 96
s_load_dwordx16 s[{K}:{K+15}], s[0:1], 0
s_load_dwordx8 s[{K+16}:{K+23}], s[0:1], 64
s_getreg_b32 s3, hwreg(HW_REG_XCC_ID)
s_and_b32 s3, s3, 15
v_lshrrev_b32 v1, 6, v0
v_and_b32 v0, 63, v0
s_nop 0
v_readfirstlane_b32 s{S_W}, v1""")
    if P.get('tl'): a('s_memrealtime s[100:101]')
    a('s_waitcnt lgkmcnt(0)')
    srd(a,S_OUT,K+22,2048*896); srd(a,S_WS,S_DBG+2,WS_SIZE); srd(a,S_RING,S_DBG+2,RING_SIZE,RING_OFF)
    T=S_T
    a(f"""s_xor_b32 s{T+6}, s3, {P['cx']}
s_and_b32 s{T+6}, s{T+6}, 7
s_mov_b32 s{T+7}, 1
s_cmp_lg_u32 s{S_W}, 0
s_cbranch_scc1 L_t0
s_lshl_b32 s{T+5}, s{T+6}, 5
s_cmp_ge_u32 s3, 8
s_cselect_b32 s{T+5}, 8, s{T+5}
{'s_bitcmp1_b32 s2, 3' if P.get('fo') else ''}
{f's_cselect_b32 s{T+5}, 8, s{T+5}' if P.get('fo') else ''}
s_atomic_add s{T+7}, s[{S_DBG}:{S_DBG+1}], s{T+5} glc
L_t0:""")
    early_touch(a,P,MAIN,P['touch'])
    a(f"""s_cmp_lg_u32 s{S_W}, 0
s_cbranch_scc1 L_notick
s_waitcnt lgkmcnt(0)
s_lshl_b32 s{T+1}, s{T+6}, 5
s_add_u32 s{T+1}, s{T+1}, s{T+7}
s_cmp_eq_u32 s{T+5}, 8
s_cselect_b32 s{T+7}, 32, s{T+7}
s_cmp_lt_u32 s{T+7}, 32
s_cbranch_scc1 L_gottick
s_mov_b32 s{T+7}, 1
s_atomic_add s{T+7}, s[{S_DBG}:{S_DBG+1}], 4 glc
s_waitcnt lgkmcnt(0)""")
    census(a,12,None,'L_all')
    a('L_all:')
    a(f's_mov_b32 s{T+1}, 0')
    for r in range(8):
        nx=a.new('sl')
        a(f'v_readlane_b32 s{T}, v14, {r}'); a(f's_sub_u32 s{T+2}, 32, s{T}'); a(f's_cmp_lt_u32 s{T+7}, s{T+2}'); a(f's_cbranch_scc0 {nx}')
        a(f's_add_u32 s{T+1}, s{T}, s{T+7}'); a(f's_add_u32 s{T+1}, s{T+1}, {32*r}')
        a.label(nx); a(f's_sub_u32 s{T+7}, s{T+7}, s{T+2}')
    a(f"""L_gottick:
v_mov_b32 v3, s{T+1}
v_mov_b32 v1, {TICK_LDS}
ds_write_b32 v1, v3
s_waitcnt lgkmcnt(0)
L_notick:
s_barrier
v_mov_b32 v1, {TICK_LDS}
ds_read_b32 v3, v1
s_waitcnt lgkmcnt(0)
v_readfirstlane_b32 s{S_G}, v3
s_and_b32 s{S_G}, s{S_G}, 255
{'s_memrealtime s[0:1]' if P.get('tl') else ''}
s_cmp_ge_u32 s{S_G}, 32
s_cbranch_scc1 L_worker""")
    gen_init(a,P)
    if P.get('tl'): a('s_memrealtime s[88:89]')
    a(f"""s_mov_b32 s{S_RETRY}, 0
s_mov_b32 s{S_RETRY2}, 0
s_and_b32 s{S_ID}, s{S_G}, 15
s_cmp_ge_u32 s{S_G}, 30
s_cbranch_scc1 L_rolePF
s_cmp_ge_u32 s{S_G}, 16
s_cbranch_scc1 L_roleB""")
    tl=lambda r: a(f's_memrealtime s[{r}:{r+1}]') if P.get('tl') else None
    def mode(slow, vt):
        fast=a.new('fast'); census(a,vt,fast,slow); a.label(fast); tl(72)
        if P.get('tl'): a('s_memtime s[80:81]')
    wait_mat(a,0,16,S_ID); tl(90)
    su,bo=gen_A(a,P); su(); wait_all(a,16); mode('L_Aslow',16); bo(P.get('sc',0),'f'); a.label('L_Aslow'); bo(1,'s')
    a.label('L_roleB')
    a(f's_lshl_b32 s{T+1}, s{S_W}, 2'); a(f's_add_u32 s{T+1}, s{T+1}, 16'); wait_mat(a,0,16,T+1,True); tl(90)
    su,bo=gen_B(a,P); su()
    if P.get('tl'): a('s_waitcnt vmcnt(0)'); tl(74)
    wait_all(a,16)
    a('v_lshrrev_b32 v16, 2, v0'); a('v_and_b32 v16, 63, v16'); a(f's_mov_b32 s{S_T}, {FL_OFF}'); wpoll(a,16,f's{S_T}',17,1)
    mode('L_Bslow',16); bo(P.get('sc',0),'f'); a.label('L_Bslow'); bo(1,'s')
    a.label('L_rolePF'); a(f's_and_b32 s{S_ID}, s{S_G}, 1')
    a(f's_cmp_lg_u32 s{S_ID}, 0'); a('s_cbranch_scc1 L_noagg'); aggregate(a,16); a.label('L_noagg'); wait_all(a,16)
    su,bo=gen_PF(a,P); su(); mode('L_Pslow',16); bo(P.get('sc',0),'f'); a.label('L_Pslow'); bo(1,'s')
    a.label('L_worker')
    gen_tasks(a,P)
    tab=0; nvs=0; ng=0
    for r in range(2,8):
        if r in P['vsx']: tab|=(8|nvs)<<(4*r); nvs+=1
        else: tab|=ng<<(4*r); ng+=1
    assert nvs==2 and ng==4
    a(f"""s_mov_b32 s{S_RETRY}, 0
s_mov_b32 s{S_RETRY2}, 0
s_cmp_lt_u32 s{S_G}, 64
s_cbranch_scc1 L_fin
s_lshr_b32 s{T}, s{S_G}, 5
s_lshl_b32 s{T}, s{T}, 2
s_lshr_b32 s{T}, {tab}, s{T}
s_and_b32 s{T+1}, s{T}, 3
s_lshl_b32 s26, s{T+1}, 5
s_and_b32 s{T+2}, s{S_G}, 31
s_add_u32 s26, s26, s{T+2}
s_bitcmp1_b32 s{T}, 3
s_cbranch_scc0 L_roleG
s_lshr_b32 s{S_ID}, s26, 2
s_and_b32 s{S_J}, s26, 3""")
    gen_V(a,P)
    a.label('L_roleS'); gen_S(a,P)
    a.label('L_roleG'); a(f's_lshr_b32 s{S_ID}, s26, 3'); a(f's_and_b32 s{S_J}, s26, 7')
    wait_all(a,16); gen_G(a,P)
    a.label('L_fin')
    flush_stamps(a,P)
    if P.get('tl'):
        a('s_memrealtime s[78:79]'); a('s_memtime s[82:83]'); a('s_waitcnt lgkmcnt(0)'); a('s_sub_u32 s62, s82, s80')
        a(f's_lshl_b32 s{S_T}, s{S_G}, 2'); a(f's_add_u32 s{S_T}, s{S_T}, s{S_W}'); a(f's_lshl_b32 s{S_T}, s{S_T}, 6'); a(f's_add_u32 s{S_T}, s{S_T}, {DBG_OFF}')
        for k,r in enumerate([100,72,74,78,S_RETRY,S_RETRY2,3,70,88,90,92,94,96,98,0,62]): a(f'v_mov_b32 v{20+k}, s{r}')
        a('v_mov_b32 v40, 0')
        if P.get('dbgtl'):
            gx=[r for r in range(2,8) if r not in P['vsx']]; gid=32*gx[0]; vid=32*P['vsx'][0]
            for wid,items in ((0,[(3,20),(4,29),(5,21),(6,23)]),(16,[(7,21)]),(gid,[(9,23),(10,28),(11,30),(12,33),(14,21),(15,22)]),(vid,[(13,21)])):
                sk=a.new('dt'); a(f's_cmp_lg_u32 s{S_G}, {wid}'); a(f's_cbranch_scc1 {sk}')
                for dw,v in items: a(f'global_store_dword v40, v{v}, s[{S_DBG}:{S_DBG+1}] offset:{4*dw}')
                a.label(sk)
        for k in range(4): a(f'buffer_store_dwordx4 v[{20+4*k}:{23+4*k}], v40, s[{S_WS}:{S_WS+3}], s{S_T} offen offset:{16*k}')
    a.label('L_exit'); a('s_endpgm')

DEF=dict(chain.DEF); DEF.update(time=0,nhm=15,cx=3,pfah=3,pfld=2,pfl=0,pfq=1,sdelay=0,tl=0,order='BA',touch='',lt=2,tq=1,tcode=1,tlb=0,miscr=1,vsx=(2,4))
def full(P):
    b=Asm(); gen_main(b,P); b.lines,_=hazards(b.lines,verbose=P.get('verbose'))
    hdr=open('cdna_kernels/'+NAME+'.s.ref').read().split('; Override launch')[0] if P.get('hdr') else ''
    return hdr+f"""; @launch grid=(256,1,1) block=(256,1,1) lds={MAIN_LDS}
.amdgcn_target "amdgcn-amd-amdhsa--gfx950"
.text
.globl {MAIN}
.p2align 8
.type {MAIN},@function
"""+b.text()+'.section .rodata,"a"\n'+kd(MAIN,512,256)
if __name__=='__main__':
    P=dict(DEF); P.update(eval('dict(%s)'%(sys.argv[2] if len(sys.argv)>2 else ''))); P['hdr']=1
    open(sys.argv[1] if len(sys.argv)>1 else 'full.s','w').write(full(P))
```

```python
from asmlib import *
from layout import *

class Cnt:
    def __init__(self, a, name, mx): self.a=a; self.name=name; self.q=[]; self.mx=mx
    def issue(self, tag): self.q.append(tag)
    def wait(self, tag):
        idx = max(i for i,t in enumerate(self.q) if t==tag) if tag in self.q else None
        if idx is None: return
        n = len(self.q)-1-idx
        assert n <= self.mx, (self.name, n)
        self.a(f's_waitcnt {self.name}({n})')
        self.q = self.q[idx+1:]
    def all(self):
        self.a(f's_waitcnt {self.name}(0)'); self.q=[]
    def reset(self): self.q=[]

SMF='v_smfmac_f32_16x16x64_bf16'
MF='v_mfma_f32_16x16x32_bf16'
MFH='v_mfma_f32_16x16x16_bf16'
S_RING=4; S_X=8; S_WS=12
S_ID=16; S_W=17; S_S=18; S_CUR=19; S_NXT=20; S_OLD=21; S_EXP=22; S_TO=23; S_CH=24
S_T=34
S_RETRY=42; S_RETRY2=43; S_BOUND=44; S_XO=45; S_G=46;S_G2=47
S_ST=84
TIMEOUT=200000

def poll_ld(a, voff, soff, tmp, i):
    a(f'buffer_load_dword v{tmp+i}, v{voff}, s[{S_RING}:{S_RING+3}], 0 offen sc1')
def poll(a, voff, soff, tmp, D, abort, gap=4, pre=True, sexp=None):
    lp=a.new('poll'); dn=a.new('polld')
    a(f's_mov_b32 s{S_TO}, {TIMEOUT}')
    for i in range(D):
        if not pre: break
        poll_ld(a,voff,soff,tmp,i)
        if i<D-1: a(f's_nop {gap}')
    a.label(lp)
    for i in range(D):
        a(f's_waitcnt vmcnt({D-1})')
        a(f'v_cmp_gt_u32 vcc, s{sexp or S_EXP}, v{tmp+i}')
        poll_ld(a,voff,soff,tmp,i)
        if i==D-1: a(f's_sub_u32 s{S_TO}, s{S_TO}, 1')
        a(f's_cbranch_vccz {dn}')
    a(f's_cbranch_scc0 {lp}')
    a(f's_branch {abort}')
    a.label(dn)

S_MC=48; S_MN=49; S_MA=50; S_K4=63; S_CU2=53
def k4(k): return f's{S_K4+k}' if k else '0'
def k4init(a):
    for k in range(1,8): a(f's_mov_b32 s{S_K4+k}, {4096*k}')
def slots(a):
    a(f's_lshl_b32 s{S_MC}, s{S_S}, 13'); a(f's_add_u32 s{S_MC}, s{S_MC}, {R_M}'); a(f's_add_u32 s{S_MN}, s{S_MC}, 8192'); a(f's_add_u32 s{S_MA}, s{S_MC}, {3*8192}')
    a(f's_and_b32 s{S_T}, s{S_S}, 3'); a(f's_lshl_b32 s{S_CUR}, s{S_T}, 15')
    a(f's_add_u32 s{S_EXP}, s{S_S}, 1')
    a(f's_add_u32 s{S_T}, s{S_S}, 3'); a(f's_and_b32 s{S_T}, s{S_T}, 3'); a(f's_lshl_b32 s{S_OLD}, s{S_T}, 15')

def stamp(a, P, i):
    if P.get('stamps'): a(f's_memtime s[{S_ST+2*i}:{S_ST+2*i+1}]')

def dump_stamps(a, P, n, vt):
    if not P.get('stamps'): return
    a(f's_memtime s[72:73]'); a(f's_memrealtime s[74:75]')
    a(f's_lshl_b32 s78, s{S_W}, 6'); a(f's_add_u32 s78, s78, s{S_S}'); a(f's_lshl_b32 s78, s78, 6'); a(f's_add_u32 s78, s78, 98304')
    a(f'v_lshrrev_b32 v{vt+1}, 2, v0'); a(f'v_add_u32 v{vt+1}, s78, v{vt+1}')
    a('s_waitcnt lgkmcnt(0)')
    a(f'v_writelane_b32 v{vt}, s72, 8'); a(f'v_writelane_b32 v{vt}, s74, 9')
    for i in range(n): a(f'v_writelane_b32 v{vt}, s{S_ST+2*i}, {i}')
    a('s_mov_b64 exec, 0x3ff')
    a(f'ds_write_b32 v{vt+1}, v{vt}')
    a('s_mov_b64 exec, -1')
def flush_stamps(a, P):
    if not P.get('stamps'): return
    sk=a.new('fs'); a(f's_cmp_ge_u32 s{S_G}, 30'); a(f's_cbranch_scc1 {sk}')
    a(f's_lshl_b32 s78, s{S_W}, 12'); a(f's_add_u32 s79, s78, 98304'); a('v_add_u32 v20, s79, v0')
    a(f's_lshl_b32 s79, s{S_G}, 14'); a('s_add_u32 s78, s78, s79'); a(f's_add_u32 s78, s78, {DBG_OFF+65536}')
    a('s_waitcnt vmcnt(0) lgkmcnt(0)')
    for k in range(4): a(f'ds_read_b128 v[{24+4*k}:{27+4*k}], v20 offset:{1024*k}')
    a('s_waitcnt lgkmcnt(0)')
    for k in range(4): a(f'buffer_store_dwordx4 v[{24+4*k}:{27+4*k}], v0, s[{S_WS}:{S_WS+3}], s78 offen offset:{1024*k}')
    a.label(sk)

def wreg(f, nag, vbase):
    return ('a', 8*f) if f<nag else ('v', vbase+8*(f-nag))


def lx(a, dst, lane, tmp, terms, add=None):
    first=True
    for lo,n,sh in terms:
        a(f'v_bfe_u32 v{tmp}, v{lane}, {lo}, {n}')
        if first: a(f'v_lshlrev_b32 v{dst}, {sh}, v{tmp}')
        else: a(f'v_lshl_add_u32 v{dst}, v{tmp}, {sh}, v{dst}')
        first=False
    if add is not None:
        for x in (add if isinstance(add,list) else [add]):
            if x!=0: a(f'v_add_u32 v{dst}, {x}, v{dst}')
def mkidx(a, dst, lane, tmp):
    a(f'v_bfe_u32 v{tmp}, v{lane}, 1, 1'); a(f'v_mov_b32 v{dst}, 0xaaaa'); a(f'v_mul_u32_u24 v{dst}, v{dst}, v{tmp}'); a(f'v_add_u32 v{dst}, 0x4444, v{dst}')
def modadd(a, dst, src, i, m, t):
    a(f's_add_u32 s{dst}, s{src}, {i}'); a(f's_cmp_ge_u32 s{dst}, {m}'); a(f's_cselect_b32 s{t}, {m}, 0'); a(f's_sub_u32 s{dst}, s{dst}, s{t}')

def gen_A(a, P):
    V_L16,V_IDX,V_QW,V_QW6,V_QR,V_KA,V_SXW,V_SMW,V_PX,V_PM,V_HP,V_MA,V_HV,V_SXR,V_SMR = range(15)
    V_M=16; V_ACC=44; V_XO=72; V_MK=104; V_WV=120
    V_T=V_MK; V_LR=15; S_D=51; L_M=16384
    V_S=V_M; Q=[V_ACC+4, V_ACC+12]
    L_Q=0; L_SX=8192; L_SM=12288; L_X=16384
    S_FLAG=S_CH+8; S_XN=S_CH+9
    abort='L_exit'; NS=P['sm']
    PW=2
    W=lambda n,i: vr(wreg(n*7+i,32,V_WV)[1],8,wreg(n*7+i,32,V_WV)[0])
    ring=f's[{S_RING}:{S_RING+3}]'; ws=f's[{S_WS}:{S_WS+3}]'
    def setup():
        l=V_M; t=V_M+1; u=V_M+2
        a(f'v_mov_b32 v{l}, v0')
        a(f'v_lshlrev_b32 v{V_L16}, 4, v{l}')
        mkidx(a,V_IDX,l,t)
        a(f's_lshl_b32 s{S_T}, s{S_W}, 11')
        lx(a,u,l,t,[(2,2,0),(4,2,0)]); a(f'v_and_b32 v{u}, 3, v{u}'); lx(a,V_QW,l,t,[(0,4,5)],f's{S_T}'); a(f'v_lshl_add_u32 v{V_QW}, v{u}, 3, v{V_QW}')
        lx(a,u,l,t,[(3,1,0),(4,2,0)]); a(f'v_and_b32 v{u}, 3, v{u}'); lx(a,V_QW6,l,t,[(3,1,7),(2,1,6),(0,1,5),(1,1,2)],f's{S_T}'); a(f'v_lshl_add_u32 v{V_QW6}, v{u}, 3, v{V_QW6}')
        lx(a,u,l,t,[(0,2,0),(4,2,0)]); a(f'v_and_b32 v{u}, 3, v{u}'); lx(a,V_QR,l,t,[(2,4,5)],f's{S_T}'); a(f'v_lshl_add_u32 v{V_QR}, v{u}, 3, v{V_QR}')
        lx(a,u,l,t,[(0,6,2)],[f's{S_T}',1536+256]); a(f'v_mov_b32 v{t}, 0'); a(f'ds_write_b32 v{u}, v{t}')
        a(f's_mul_i32 s{S_T+1}, s{S_W}, {7*256}'); lx(a,V_KA,l,t,[(4,1,9),(5,1,5),(1,2,6),(0,1,4)],[f's{S_T+1}',L_M])
        lx(a,u,l,t,[(0,6,2)],L_M+7168); a(f'v_mov_b32 v{t}, 0'); a(f'ds_write_b32 v{u}, v{t}')
        a(f's_lshl_b32 s{S_T+1}, s{S_W}, 10'); lx(a,V_SXW,l,t,[(4,2,8),(0,4,3)],[f's{S_T+1}',L_SX])
        a(f's_lshl_b32 s{S_T+1}, s{S_W}, 2'); lx(a,V_SMW,l,t,[(0,6,4)],[f's{S_T+1}',L_SM])
        a(f's_lshr_b32 s{S_T+1}, s{S_ID}, 2'); a(f's_lshl_b32 s{S_T+1}, s{S_T+1}, 10'); a(f's_and_b32 s{S_T+2}, s{S_ID}, 1'); a(f's_lshl_b32 s{S_T+2}, s{S_T+2}, 9'); a(f's_add_u32 s{S_T+1}, s{S_T+1}, s{S_T+2}')
        a(f's_and_b32 s{S_T+2}, s{S_ID}, 2'); a(f's_lshl_b32 s{S_T+2}, s{S_T+2}, 11'); a(f's_add_u32 s{S_T+1}, s{S_T+1}, s{S_T+2}')
        a(f's_lshr_b32 s{S_T+3}, s{S_ID}, 1'); a(f's_lshl_b32 s{S_T+3}, s{S_T+3}, 8'); a(f's_and_b32 s{S_T+2}, s{S_ID}, 1'); a(f's_lshl_b32 s{S_T+2}, s{S_T+2}, 3')
        a(f's_add_u32 s{S_T+3}, s{S_T+3}, s{S_T+2}')
        if NS==1:
            lx(a,V_PX,l,t,[(2,1,8),(4,2,6),(1,1,5),(3,1,4),(0,1,3)],[f's{S_T+1}',R_P])
            lx(a,V_PM,l,t,[(1,2,6),(4,2,4),(3,1,2),(0,1,30)],[f's{S_T+3}',R_PM])
        else:
            a(f's_and_b32 s{S_T+2}, s{S_W}, 1')
            a(f's_lshl_b32 s{S_T+4}, s{S_T+2}, 7'); lx(a,V_PX,l,t,[(3,1,8),(5,1,6),(2,1,5),(4,1,4),(0,2,2)],[f's{S_T+1}',f's{S_T+4}',R_P])
            a(f's_lshl_b32 s{S_T+4}, s{S_T+2}, 5'); lx(a,V_PM,l,t,[(1,2,6),(5,1,4),(4,1,2),(0,1,30),(3,1,29)],[f's{S_T+3}',f's{S_T+4}',R_PM])
            a(f's_lshl_b32 s{S_T+4}, s{S_T+2}, 9'); lx(a,V_SXR,l,t,[(0,6,3)],[f's{S_T+4}',L_SX]); lx(a,V_SMR,l,t,[(4,2,7),(0,3,4)],[f's{S_T+4}',L_SM])
        a(f's_lshl_b32 s{S_T+1}, s{S_ID}, 2'); a(f's_add_u32 s{S_T+1}, s{S_T+1}, {R_HP}')
        a(f'v_min_u32 v{t}, 1, v{l}'); a(f'v_lshlrev_b32 v{t}, 30, v{t}'); a(f'v_or_b32 v{V_HP}, s{S_T+1}, v{t}')
        sk=a.new('sk'); a(f's_cmp_lg_u32 s{S_W}, {PW}'); a(f's_cbranch_scc1 {sk}')
        a(f'v_min_u32 v{V_HP}, {P["nhm"]-1}, v{l}'); a(f'v_lshlrev_b32 v{V_HP}, 2, v{V_HP}'); a(f'v_add_u32 v{V_HP}, {R_HM}, v{V_HP}')
        a.label(sk)
        a(f's_mov_b32 s{S_BOUND}, 0x42700000')
        a(f's_mul_i32 s{S_T+1}, s{S_ID}, 52'); a(f's_lshr_b32 s{S_T+1}, s{S_T+1}, 8')
        a(f's_mul_i32 s{S_T+1}, s{S_T+1}, 5'); a(f's_sub_u32 s{S_G2}, s{S_ID}, s{S_T+1}')
        a(f's_lshl_b32 s{S_T+1}, s{S_G2}, 10'); a(f's_add_u32 s{S_T+1}, s{S_T+1}, {L_M}'); a(f'v_add_u32 v{V_LR}, s{S_T+1}, v{V_L16}')
        a(f's_add_u32 s{S_T+1}, s{S_G2}, s{S_W}'); modadd(a,S_T+1,S_T+1,0,7,S_T+2); a(f's_lshl_b32 s{S_D}, s{S_T+1}, 10')
        a(f's_min_u32 s{S_T+1}, s{S_W}, 2'); a(f's_add_u32 s{S_T+1}, s{S_T+1}, s{S_G2}'); modadd(a,S_T+1,S_T+1,4,7,S_T+2); a(f's_lshl_b32 s{S_D+1}, s{S_T+1}, 10')
        a(f's_mul_i32 s{S_T}, s{S_ID}, {WMAT}'); a(f's_mul_i32 s{S_T+1}, s{S_W}, {7*KK*1024}'); a(f's_add_u32 s{S_T}, s{S_T}, s{S_T+1}')
        if WA_OFF: a(f's_add_u32 s{S_T}, s{S_T}, {WA_OFF}')
        for i in range(7):
            if i<4:
                a(f's_add_u32 s{S_T+1}, s{S_W}, {i}'); a(f's_and_b32 s{S_T+1}, s{S_T+1}, 3'); a(f's_add_u32 s{S_T+1}, s{S_T+1}, s{S_G2}'); modadd(a,S_T+1,S_T+1,3,7,S_T+2)
            else: a(f's_add_u32 s{S_T+1}, s{S_G2}, {i-4}')
            a(f's_lshl_b32 s{S_CH+i}, s{S_T+1}, 10')
            a(f's_lshl_b32 s{S_T+1}, s{S_T+1}, 11'); a(f's_add_u32 s{S_T+1}, s{S_T+1}, s{S_T}')
            for n in range(7):
                f,r=wreg(n*7+i,32,V_WV)
                a(f'buffer_load_dwordx4 {vr(r,4,f)}, v{V_L16}, {ws}, s{S_T+1} offen sc1')
                a(f'buffer_load_dwordx4 {vr(r+4,4,f)}, v{V_L16}, {ws}, s{S_T+1} offen offset:1024 sc1')
                if n<6: a(f's_add_u32 s{S_T+1}, s{S_T+1}, {KK*1024}')
    V_XB=V_SXR; assert NS==1
    xld=lambda k: f'buffer_load_dwordx4 {vr(V_XO+4*k,4)}, v{V_XB}, {ws}, {k4(k)} offen sc1'
    def arm():
        t=V_MK+8
        a(f'v_mov_b64 {vr(t,2)}, -1'); a(f'v_mov_b64 {vr(t+2,2)}, -1'); a(f's_max_u32 s{S_T}, s{S_W}, 1'); a(f's_lshl_b32 s{S_T}, s{S_T}, 11'); a(f'v_add_u32 v{t+4}, s{S_T}, v{V_L16}')
        for k in range(3): a(f'ds_write_b128 v{t+4}, {vr(t,4)} offset:{L_M-2048+1024*k}')
        a('s_waitcnt lgkmcnt(0)')
    def arms():
        t=V_MK+8
        a(f'v_mov_b64 {vr(t,2)}, -1'); a(f'v_mov_b64 {vr(t+2,2)}, -1')
        for k in range(5): a(f'ds_write_b128 v{V_L16}, {vr(t,4)} offset:{L_SX+1024*k}')
        a('s_waitcnt lgkmcnt(0)')
    def body(sc,tag):
        st = ' sc1' if sc else ''
        top=f'A_top_{tag}'; ool=[]
        if not P['abar']: arm()
        arms()
        a(f's_mov_b32 s{S_S}, 0'); k4init(a); a(f's_lshl_b32 s{S_XO}, s{S_W}, 10'); a(f's_add_u32 s{S_XO}, s{S_XO}, {XA_OFF}'); a('s_waitcnt vmcnt(0)')
        a.label(top)
        slots(a)
        a(f'v_add_u32 v{V_MA}, s{S_MC}, v{V_L16}'); a(f'v_mov_b32 v{V_HV}, s{S_EXP}'); a(f's_mov_b32 s{S_FLAG}, 0'); a(f'v_add_u32 v{V_XB}, s{S_XO}, v{V_L16}')
        if P.get('xil'): a(f'v_lshrrev_b32 v{V_MK+6}, 7, v{V_L16}'); a(f'v_mul_u32_u24 v{V_MK+6}, 384, v{V_MK+6}'); a(f'v_add_u32 v{V_XB}, v{V_XB}, v{V_MK+6}'); a(f's_mul_i32 s{S_T}, s{S_W}, 896'); a(f'v_subrev_u32 v{V_XB}, s{S_T}, v{V_XB}')
        np_=a.new('Anp')
        a(f's_cmp_lg_u32 s{S_W}, {PW}'); a(f's_cbranch_scc1 {np_}')
        poll(a, V_HP, S_CUR, V_MK, P['pollD'], abort)
        a.label(np_)
        a('s_barrier')
        stamp(a,P,0)
        rs=a.new('Arestart'); a.label(rs)
        ldt=lambda i: f'buffer_load_dwordx4 {vr(V_M+4*i,4)}, v{V_MA}, {ring}, s{S_CH+i} offen sc1'
        m0=lambda d: f's_add_u32 m0, s{S_D+d}, {L_M}'
        dmt=lambda d: f'buffer_load_dwordx4 v{V_MA}, {ring}, s{S_D+d} offen sc1 lds'
        chk=lambda i: f'v_cmp_eq_u32 vcc, -1, v{V_M+4*i}'
        I=lambda s:(lambda: a(s))
        Z=lambda r: I(f'v_mov_b64 {vr(r,2)}, 0')
        def retry(i):
            r=a.new('Aretry'); b=a.new('Aback')
            def out():
                a.label(r); a(f's_add_u32 s{S_RETRY2}, s{S_RETRY2}, 1'); a(f's_mov_b32 s{S_TO}, {TIMEOUT}')
                l=a.new('l'); a.label(l)
                for k in range(i,4): a(ldt(k))
                for d in range(2): a(m0(d)); a(dmt(d))
                a('s_waitcnt vmcnt(0)'); a(chk(i))
                a(f's_cbranch_vccz {b}'); a(f's_sub_u32 s{S_TO}, s{S_TO}, 1'); a(f's_cbranch_scc0 {l}'); a(f's_branch {abort}')
            ool.append(out)
            return lambda: (a(f's_cbranch_vccnz {r}'), a.label(b))
        def restart():
            r=a.new('Ars')
            def out():
                a.label(r); a(f's_add_u32 s{S_RETRY}, s{S_RETRY}, 1'); a('s_waitcnt vmcnt(0)')
                a(f's_cmp_lt_u32 s{S_RETRY}, {TIMEOUT}'); a(f's_cbranch_scc1 {rs}'); a(f's_branch {abort}')
            ool.append(out)
            return lambda: a(f's_cbranch_vccnz {r}')
        def compute(quiet):
            vm=Cnt(a,'vmcnt',63); lg=Cnt(a,'lgkmcnt',15)
            ld=lambda i: (a(ldt(i)), vm.issue(f'c{i}'))
            dm=lambda d: (a(dmt(d)), vm.issue(f'd{d}'))
            mk=lambda k:(lambda:(a(f'ds_read_b128 {vr(V_MK+4*k,4)}, v{V_SMR if quiet else V_KA} offset:{(4*(k//2)+k%2)*256}'), lg.issue('mk')))
            rd=lambda i:(lambda:(a(f'ds_read_b128 {vr(V_M+4*i,4)}, v{V_LR} offset:{1024*(i-4)}'), lg.issue(f'r{i}')))
            xq=lambda k:(lambda:(a(xld(k)), vm.issue(f'x{k}')))
            F={}
            def at(g,*fs): F.setdefault(g,[]).extend(fs)
            def check_at(g,i,fin):
                at(g, lambda: vm.wait(f'c{i}'), I(chk(i))); at(g+2,fin)
            G=P['gp']
            if quiet:
                for r in range(14): Z(V_ACC+2*r)()
            else:
                zn=P['zsplit']; z=iter(range(28)); assert sum(zn)==28
                a(m0(0))
                for f,n in zip([lambda: ld(0),lambda: ld(1),lambda: ld(2),lambda: (dm(0),a(m0(1)))],zn):
                    f()
                    for _ in range(n): a(f'v_mov_b32 v{V_ACC+next(z)}, 0')
                check_at(0,0,restart())
                at(G['c3'],lambda: ld(3)); at(G['d1'],lambda: dm(1)); at(G['mk'][0],lambda: vm.wait(G['mw']))
                check_at(4,1,retry(1)); check_at(11,2,retry(2))
                for g,k in zip(G['x'],[4,5,0,1,2,3,6,7]): at(g,xq(k))
                if P['abar']: at(G['bar'],lambda: vm.wait('d1'),I('s_barrier'))
                else: at(G['bar'],lambda: vm.wait(G['bw']))
                for g,i in zip(G['r'],(4,5,6)): at(g,rd(i))
                at(20,lambda: vm.wait('c3'))
                at(26,lambda: lg.wait('r4')); at(27,lambda: lg.wait('r5')); at(28,lambda: lg.wait('r6'))
            for g,r in zip(G['z'],range(6)): at(g,Z(V_S+2*r))
            for g,k in zip(G['mk'],range(4)): at(g,mk(k))
            adds=lambda n:[f'v_add_f32 v{V_ACC+4*n}, v{V_ACC+4*n}, v{V_ACC+4*n+2}', f'v_add_f32 v{V_ACC+4*n+1}, v{V_ACC+4*n+1}, v{V_ACC+4*n+3}']
            cvt=lambda n: f'v_cvt_pk_bf16_f32 v{V_ACC+4*(n&~1)+2+(n&1)}, v{V_ACC+4*n}, v{V_ACC+4*n+1}'
            dw=lambda p:(lambda:(a(f'ds_write_b64 v{V_QW}, {vr(V_ACC+8*p+2,2)} offset:{512*p}'), lg.issue(f'qw{p}')))
            dr=lambda p:(lambda:(a(f'ds_read_b64_tr_b16 {vr(Q[p//2]+2*(p%2),2)}, v{V_QR} offset:{512*p}'), lg.issue(f'q{p}')))
            for n in range(6):
                L=29+3*n
                at(L+2,I(adds(n)[0]),I(adds(n)[1])); at(L+3,I(cvt(n)))
                if n%2: at(L+4,dw(n//2))
                if n in (1,3): at(L+7,dr(n//2))
            seq=[(n,i) for i in range(3) for n in range(7)]+[(n,3) for n in range(6)]+[(n,i) for n in range(6) for i in range(4,7)]+[(6,i) for i in range(3,7)]
            vm.wait('c0'); stamp(a,P,1)
            for g,(n,i) in enumerate(seq):
                a(f'{SMF} {vr(V_ACC+4*n,4)}, {vr(V_M+4*i,4)}, {W(n,i)}, v{V_IDX}')
                if g==48: stamp(a,P,2)
                if g in P.get('sg',()): stamp(a,P,6+list(P['sg']).index(g))
                for f in F.pop(g,[]): f()
            assert not F, F
            return vm,lg,adds,cvt,dr
        vm,lg,adds,cvt,dr=compute(False)
        aj=a.new('Aj'); a.label(aj)
        bop=lambda kt,ks: vr((V_XO+16*kt if kt<2 else V_MK)+8*ks,8)
        a2=lambda kt,ks: a(f'{SMF} {vr(V_S+4*kt,4)}, {vr(Q[ks],4)}, {bop(kt,ks)}, v{V_IDX}')
        vm.wait('x1'); lg.wait('q1'); a2(1,0); dr(2)()
        for x in adds(6): a(x)
        a(cvt(6)); a(f'ds_write_b32 v{V_QW6}, v{V_ACC+26} offset:1536'); lg.issue('qw3'); dr(3)()
        a2(0,0); a2(2,0)
        oth=a.new('Aoth'); jn=a.new('Ajoin'); jn2=a.new('Ajoin'); nan=a.new('Anan')
        a(f's_cmp_lg_u32 s{S_W}, 0'); a(f's_cbranch_scc1 {oth}')
        Tm=V_S+8; T=V_ACC+20; NW=P['nwA']
        nbs=[a.new('Ananb'),a.new('Ananb')]
        def tail(k):
            a('s_waitcnt vmcnt(0) lgkmcnt(0)')
            for kt in (2,0,1): a2(kt,1)
            idp='quad_perm:[0,1,2,3] row_mask:0xf'
            a(f'v_add_f32_dpp v{T+4}, v{Tm}, v{Tm+2} {idp} bank_mask:0x3')
            a(f'v_add_f32 v{T}, v{V_S}, v{V_S+2}'); a(f'v_add_f32 v{T+2}, v{V_S+1}, v{V_S+3}')
            a(f'v_add_f32_dpp v{T+4}, v{Tm+1}, v{Tm+3} {idp} bank_mask:0xc')
            if P['wsplit']: a(f'ds_write_b32 v{V_SMW}, v{T+4}')
            a(f'v_cmp_u_f32 vcc, v{T+4}, v{T+4}')
            a(f'v_add_f32 v{T+1}, v{V_S+4}, v{V_S+6}'); a(f'v_add_f32 v{T+3}, v{V_S+5}, v{V_S+7}')
            a(f'ds_write2_b64 v{V_SXW}, {vr(T,2)}, {vr(T+2,2)} offset0:0 offset1:16')
            if not P['wsplit']: a(f'ds_write_b32 v{V_SMW}, v{T+4}')
            stamp(a,P,3)
            a(f's_cbranch_vccnz {nan}'); a.label(nbs[k])
            if not NW: a('s_waitcnt lgkmcnt(0)')
            a('s_barrier')
        def onan():
            a.label(nan); ok=a.new('ok'); a(f's_cmp_eq_u32 s{S_FLAG}, 0'); a(f's_cbranch_scc1 {ok}'); a(f's_cmp_eq_u32 s{S_W}, 0'); a(f's_cbranch_scc1 {nbs[0]}'); a(f's_branch {nbs[1]}')
            a.label(ok); a(f's_mov_b32 s{S_FLAG}, 1')
            a(f's_add_u32 s{S_RETRY2}, s{S_RETRY2}, 0x10000'); a(f's_mov_b32 s{S_TO}, {TIMEOUT}'); a('s_waitcnt lgkmcnt(0)')
            l=a.new('l'); a.label(l)
            for i in range(7): a(ldt(i))
            a('s_waitcnt vmcnt(0)')
            a(f'v_max_u32 v{V_T}, v{V_M}, v{V_M+1}')
            for k in range(1,14): a(f'v_max3_u32 v{V_T}, v{V_T}, v{V_M+2*k}, v{V_M+2*k+1}')
            gd=a.new('gd')
            a(f'v_cmp_eq_u32 vcc, -1, v{V_T}'); a(f's_cbranch_vccz {gd}'); a(f's_sub_u32 s{S_TO}, s{S_TO}, 1'); a(f's_cbranch_scc0 {l}'); a(f's_branch {abort}')
            a.label(gd)
            a(f's_add_u32 s{S_T}, s{S_W}, 1'); a(f's_lshl_b32 s{S_T}, s{S_T}, 13'); a(f'v_add_u32 v{V_SMR}, s{S_T}, v{V_KA}'); a(f'v_add_u32 v{V_T+1}, s{S_T}, v{V_L16}')
            a(f'ds_write_b128 v{V_T+1}, {vr(V_M,4)} offset:{L_M+7168}')
            for i in range(7): a(f'v_add_u32 v{V_T}, s{S_CH+i}, v{V_T+1}'); a(f'ds_write_b128 v{V_T}, {vr(V_M+4*i,4)} offset:{L_M}')
            a('s_waitcnt lgkmcnt(0)')
            compute(True); a(f's_branch {aj}')
        ool.append(onan)
        tail(0)
        R=V_M; Rm=V_M+16; E=V_M+20; t=V_MK; u=t+6; Em=E+4
        slow=a.new('Aslow')
        pk=lambda d,x,y: f'v_pk_add_f32 {vr(d,2)}, {vr(x,2)}, {vr(y,2)}'
        dpps=['quad_perm:[1,0,3,2]','quad_perm:[2,3,0,1]','row_half_mirror']
        dpp=lambda m,op='add': f'v_{op}_f32_dpp v{t}, v{t}, v{t} {m} row_mask:0xf bank_mask:0xf'
        mul=lambda x: f'v_pk_mul_f32 {vr(x,2)}, {vr(x,2)}, {vr(t,2)} op_sel_hi:[1,0] clamp'
        mvd=f'v_mov_b32_dpp v{Em+1}, v{Em} quad_perm:[1,0,3,2] row_mask:0xf bank_mask:0xf'
        rdm=f'ds_read_b128 {vr(Rm,4)}, v{V_L16} offset:{L_SM}'
        rdx=[f'ds_read_b128 {vr(R+4*w,4)}, v{V_L16} offset:{L_SX+1024*w}' for w in range(4)]
        summ=[pk(Rm,Rm,Rm+2), f'v_add_f32 v{Rm}, v{Rm}, v{Rm+1}']; exm=f'v_exp_f32 v{Em}, v{Rm}'
        exx=[f'v_exp_f32 v{E+k}, v{R+k}' for k in range(4)]
        if P['rdm']==0:
            L=[rdm]+rdx+['s_waitcnt lgkmcnt(4)']+summ+[exm,'s_waitcnt lgkmcnt(2)', pk(R,R,R+4), pk(R+2,R+2,R+6), 's_waitcnt lgkmcnt(1)', pk(R,R,R+8), pk(R+2,R+2,R+10),
                's_waitcnt lgkmcnt(0)', pk(R,R,R+12), pk(R+2,R+2,R+14)]+exx
            sm=[f'v_add_f32 v{t}, v{Em}, v{E}', f'v_add_f32 v{t+1}, v{E+1}, v{E+2}', f'v_add_f32 v{t}, v{t}, v{E+3}', f'v_add_f32 v{t}, v{t}, v{t+1}']
        else:
            L=rdx+[rdm,'s_waitcnt lgkmcnt(3)', pk(R,R,R+4), pk(R+2,R+2,R+6), 's_waitcnt lgkmcnt(2)', pk(R,R,R+8), pk(R+2,R+2,R+10), 's_waitcnt lgkmcnt(1)', pk(R,R,R+12), pk(R+2,R+2,R+14),
                's_waitcnt lgkmcnt(0)']+summ+exx+[exm]
            sm=[pk(t,E,E+2), f'v_add_f32 v{t}, v{t}, v{t+1}', f'v_add_f32 v{t}, v{t}, v{Em}']
        fin=[mul(E), mul(E+2), f'v_cvt_pk_bf16_f32 v{t+2}, v{E}, v{E+1}', f'v_cvt_pk_bf16_f32 v{t+3}, v{E+2}, v{E+3}', mul(E+4), f'v_cvt_pk_bf16_f32 v{t+5}, v{E+4}, v{E+5}',
             f'buffer_store_dwordx2 {vr(t+2,2)}, v{V_PX}, {ring}, s{S_CUR} offen{st}', f'buffer_store_dword v{t+5}, v{V_PM}, {ring}, s{S_CUR} offen{st}']
        if P['xfirst']: fin[4:7]=[fin[6],fin[4],fin[5]]
        L+=sm+[f'v_maximum3_f32 v{u}, abs(v{R}), abs(v{R+1}), abs(v{R+2})', f'v_maximum3_f32 v{u}, v{u}, abs(v{R+3}), abs(v{Rm})', dpp(dpps[0]),
            f'v_cmp_nge_f32 vcc, s{S_BOUND}, v{u}', mvd, dpp(dpps[1]), dpp(dpps[2]), f'v_rcp_f32 v{t}, v{t}', f's_cbranch_vccnz {slow}']+fin
        hst=f'buffer_store_dword v{V_HV}, v{V_HP}, {ring}, 0 offen{st}'
        if not P['hw3']: L.insert(P['hintP']-2, hst)
        for x in L:
            a(x)
            if f'v{V_HV}, v{V_HP}' in x: stamp(a,P,5)
        stamp(a,P,4)
        a('s_barrier')
        sj=a.new('Asj'); a.label(sj)
        if NW: arms()
        a(f's_branch {jn2}')
        a.label(oth)
        tail(1); stamp(a,P,4)
        a(f's_cmp_lg_u32 s{S_W}, 3'); a(f's_cbranch_scc1 {jn}')
        Lw=['s_waitcnt lgkmcnt(0)', f'v_mov_b64 {vr(t,2)}, -1', f'buffer_store_dwordx2 {vr(t,2)}, v{V_PX}, {ring}, s{S_OLD} offen{st}', f'buffer_store_dword v{t}, v{V_PM}, {ring}, s{S_OLD} offen{st}']
        if P['hw3']:
            Lw+=[f'ds_read_b32 v{t+2}, v{V_SMW}','s_waitcnt lgkmcnt(0)'][:max(0,2*(P['hw3']-5))]
            Lw.insert(min(P['hw3']-1,4) if P['hw3']<=5 else 6, hst)
        for x in Lw:
            a(x)
            if x==hst: stamp(a,P,5)
        a.label(jn)
        a('s_waitcnt lgkmcnt(0)'); a('s_barrier')
        if not P['abar']: arm()
        a.label(jn2)
        a(f's_add_u32 s{S_XO}, s{S_XO}, {P["xastride"]}')
        dump_stamps(a,P,8,V_T+8)
        a(f's_add_u32 s{S_S}, s{S_S}, 1'); a(f's_cmp_lt_u32 s{S_S}, {NSEG-1}'); a(f's_cbranch_scc1 {top}')
        a('s_branch L_fin')
        a.label(slow)
        a(f's_add_u32 s{S_RETRY2}, s{S_RETRY2}, 1')
        a('s_barrier')
        for x in rdx+[rdm,'s_waitcnt lgkmcnt(0)', pk(R,R,R+4), pk(R+2,R+2,R+6), pk(R,R,R+8), pk(R+2,R+2,R+10), pk(R,R,R+12), pk(R+2,R+2,R+14)]+summ: a(x)
        a(f'v_max3_f32 v{t}, v{R}, v{R+1}, v{R+2}'); a(f'v_max3_f32 v{t}, v{t}, v{R+3}, v{Rm}')
        for m in dpps: a(dpp(m,'max'))
        for k in range(4): a(f'v_sub_f32 v{R+k}, v{R+k}, v{t}')
        a(f'v_sub_f32 v{Rm}, v{Rm}, v{t}')
        for x in [exm]+exx+['s_nop 0']+sm+[mvd]: a(x)
        for m in dpps: a(dpp(m))
        a(f'v_rcp_f32 v{t}, v{t}')
        for x in fin: a(x)
        a(f's_branch {sj}')
        for o in ool: o()
    return setup, body

SMH='v_smfmac_f32_16x16x32_bf16'
def gen_B(a, P):
    V_L16,V_IDX,V_LW,V_MS,V_HP,V_HS,V_LM,V_PA,V_PMA,V_XA,V_HV,V_CW,V_CR,V_O,V_CR2 = range(15)
    V_T=15
    V_VX=16; V_ACC=48; V_MB=80; V_WB=88; V_WV=112
    V_VM=88; V_P=96; V_D=80; V_R=68; V_PL=106; V_HQ=111
    NL=6; L_M=0; L_C=8192; L_W=16384
    S_FLAG=60; S_M2=61; S_MGO=62; S_X2=63
    abort='L_exit'
    ring=f's[{S_RING}:{S_RING+3}]'; ws=f's[{S_WS}:{S_WS+3}]'
    seq=[(i,t) for t in range(7) for i in range(8)]
    ldsidx=[9,18,27,36,45,54]
    resid=[k for k in range(56) if k not in ldsidx]
    CP=8*0+544
    def setup():
        l=V_VX; t=V_VX+1; u=V_VX+2
        a(f'v_mov_b32 v{l}, v0'); a(f'v_lshlrev_b32 v{V_L16}, 4, v{l}')
        mkidx(a,V_IDX,l,t)
        a(f's_mul_i32 s{S_T}, s{S_W}, {NL*2048}'); a(f's_add_u32 s{S_T}, s{S_T}, {L_W}'); a(f'v_add_u32 v{V_LW}, s{S_T}, v{V_L16}')
        a(f's_and_b32 s{S_T+2}, s{S_W}, 1'); a(f's_mul_i32 s{S_MGO}, s{S_T+2}, 3072'); a(f'v_add_u32 v{V_LM}, s{S_MGO}, v{V_L16}')
        a(f's_lshl_b32 s{S_T+1}, s{S_ID}, 1'); a(f's_add_u32 s{S_T+2}, s{S_T+1}, s{S_W}'); a(f's_lshl_b32 s{S_T+2}, s{S_T+2}, 8'); lx(a,V_MS,l,t,[(0,6,2)],f's{S_T+2}')
        lx(a,V_HP,l,t,[(0,4,2)],R_HP)
        a(f'v_min_u32 v{V_HQ}, 13, v{l}'); a(f'v_lshlrev_b32 v{V_HQ}, 2, v{V_HQ}'); a(f'v_add_u32 v{V_HQ}, {R_HM}, v{V_HQ}')
        a(f's_lshl_b32 s{S_T+2}, s{S_ID}, 2'); a(f's_add_u32 s{S_T+2}, s{S_T+2}, {R_HM}')
        a(f'v_min_u32 v{t}, 1, v{l}'); a(f'v_lshlrev_b32 v{t}, 30, v{t}'); a(f'v_or_b32 v{V_HS}, s{S_T+2}, v{t}')
        a(f's_lshl_b32 s{S_T+2}, s{S_W}, 10'); lx(a,V_PA,l,t,[(0,6,4)],[f's{S_T+2}',R_P])
        a(f's_lshl_b32 s{S_T+2}, s{S_W}, 9'); lx(a,V_PMA,l,t,[(0,6,2)],[f's{S_T+2}',R_PM])
        a(f's_mul_i32 s{S_T+2}, s{S_T+1}, {H*1024}'); a(f's_lshl_b32 s{S_T+3}, s{S_W}, 10'); a(f's_add_u32 s{S_T+2}, s{S_T+2}, s{S_T+3}'); a(f's_add_u32 s{S_T+2}, s{S_T+2}, {VX_OFF}')
        a(f'v_add_u32 v{V_XA}, s{S_T+2}, v{V_L16}')
        if P.get('vil'): a(f'v_lshrrev_b32 v{t}, 7, v{V_L16}'); a(f'v_mul_u32_u24 v{t}, 384, v{t}'); a(f'v_add_u32 v{V_XA}, v{V_XA}, v{t}'); a(f's_mul_i32 s{S_T+3}, s{S_W}, 896'); a(f'v_subrev_u32 v{V_XA}, s{S_T+3}, v{V_XA}')
        pass; k4init(a)
        a(f's_mul_i32 s{S_T+2}, s{S_W}, {CP}'); lx(a,V_CW,l,t,[(4,2,7),(4,2,3),(0,4,3)],[f's{S_T+2}',L_C])
        a(f's_mul_i32 s{S_T+2}, s{S_W}, 2560'); lx(a,V_CR,l,t,[(4,2,7),(4,2,3),(3,1,6),(0,2,4),(2,1,2)],[f's{S_T+2}',L_C]); a(f'v_add_u32 v{V_CR2}, {2*CP}, v{V_CR}')
        a(f's_mul_i32 s{S_T+2}, s{S_W}, {4*WMAT}'); a(f's_mul_i32 s{S_T+3}, s{S_T+1}, {KK*1024}')
        a(f's_add_u32 s{S_T+2}, s{S_T+2}, s{S_T+3}'); a(f's_add_u32 s{S_T+2}, s{S_T+2}, {WB_OFF}')
        for k,(i,tt) in enumerate(seq):
            a(f's_add_u32 s{S_T+3}, s{S_T+2}, {(i%4)*WMAT+(i//4)*KK*1024+tt*2048}')
            if k in ldsidx:
                j=ldsidx.index(k)
                a(f's_add_u32 m0, s{S_T}, {j*2048}')
                a(f'buffer_load_dwordx4 v{V_L16}, {ws}, s{S_T+3} offen sc1 lds')
                a(f'buffer_load_dwordx4 v{V_L16}, {ws}, s{S_T+3} offen offset:1024 sc1 lds')
            else:
                f,r=wreg(resid.index(k),32,V_WV)
                a(f'buffer_load_dwordx4 {vr(r,4,f)}, v{V_L16}, {ws}, s{S_T+3} offen sc1')
                a(f'buffer_load_dwordx4 {vr(r+4,4,f)}, v{V_L16}, {ws}, s{S_T+3} offen offset:1024 sc1')
    def bpart(bn,bnb):
        lg=Cnt(a,'lgkmcnt',15)
        mrd=lambda t:(a(f'ds_read_b128 {vr(V_MB+4*(t%2),4)}, v{V_L16} offset:{L_M+1024*t}'), lg.issue(f'm{t}'))
        def wrd(j,hh):
            a(f'ds_read_b128 {vr(V_WB+4*hh,4)}, v{V_LW} offset:{2048*j+1024*hh}'); lg.issue(f'w{j}')
        F={}
        def put(g,f):
            while g in F: g+=1
            F[g]=f
        I=lambda s:(lambda: a(s))
        for t in range(1,6): put(8*t, (lambda t=t: mrd(t+1)))
        for j in range(NL):
            for hh in range(2): put(ldsidx[j]-7, (lambda j=j,hh=hh: wrd(j,hh)))
        k0=P['vxpre']+P['vxe']
        for k in range(k0,P.get('vxn',8)): put(P['vxg'][k-k0] if P.get('vxg') else P['vx0']+P['vxs']*(k-k0), I(vxl(k)))
        if P['nwC']:
            put(20,I(f'v_mov_b64 {vr(V_P,2)}, -1')); put(22,lambda:(a(f'ds_write2st64_b64 v{V_CW}, {vr(V_P,2)}, {vr(V_P,2)} offset0:0 offset1:5'), lg.issue('arm')))
        put(51,I(f'v_maximum3_f32 v{V_T}, v{V_ACC}, v{V_ACC+1}, v{V_ACC+2}')); put(52,I(f'v_cmp_u_f32 vcc, v{V_T}, v{V_ACC+3}')); put(55,lambda:(a(f's_cbranch_vccnz {bn}'), a.label(bnb)))
        mrd(0); mrd(1)
        for k,(i,t) in enumerate(seq):
            if i==0: lg.wait(f'm{t}')
            if k in ldsidx:
                j=ldsidx.index(k); lg.wait(f'w{j}'); w=vr(V_WB,8)
            else:
                f,r=wreg(resid.index(k),32,V_WV); w=vr(r,8,f)
            a(f'{SMF} {vr(V_ACC+4*i,4)}, {vr(V_MB+4*(t%2),4)}, {w}, v{V_IDX}')
            if k in F: F.pop(k)()
        assert not F
        stamp(a,P,2)
    def pack(i):
        x=V_ACC+4*i
        a(f'v_pk_add_f32 {vr(x,2)}, {vr(x,2)}, {vr(x+2,2)}'); a(f'v_cvt_pk_bf16_f32 v{V_VM+i}, v{x}, v{x+1}')
    vxl=lambda k: f'buffer_load_dwordx4 {vr(V_VX+4*k,4)}, v{V_XA}, {ws}, {k4(k)} offen sc1'
    def body(sc,tag):
        st = ' sc1' if sc else ''
        top=f'B_top_{tag}'; ool=[]
        vm=Cnt(a,'vmcnt',63)
        for k in range(P.get('vxn',8),8): a(vxl(k))
        a(f's_mov_b32 s{S_S}, 0'); a('s_waitcnt vmcnt(0)'); a(f's_add_u32 m0, s{S_MGO}, {L_M}')
        a(f's_cmp_gt_u32 s{S_W}, 1'); a(f's_cbranch_scc1 {top}'); a('s_barrier')
        a.label(top)
        nq=a.new('nq'); late=a.new('Blate'); lb=a.new('Blb')
        mld=lambda:[a(f'buffer_load_dwordx4 v{V_LM}, {ring}, s{S_MC} offen offset:{1024*k} sc1 lds') for k in range(4)]
        zs=lambda r0,r1:[a(f'v_mov_b32 v{V_ACC+r}, 0') for r in range(r0,r1)]
        zw=lambda:[a(f'v_mov_b64 {vr(V_ACC+2*r,2)}, 0') for r in range(16)]
        def scal():
            slots(a); a(f's_mov_b32 s{S_FLAG}, 0'); a(f's_mov_b32 s{S_M2}, 0'); a(f's_add_u32 s{S_CU2}, s{S_CUR}, 4096'); a(f's_add_u32 s{S_T+2}, s{S_EXP}, 1'); a(f'v_mov_b32 v{V_HV}, s{S_T+2}')
        a(f's_cmp_lt_u32 s{S_W}, 2'); a(f's_cbranch_scc1 {nq}')
        a('s_waitcnt lgkmcnt(0)'); a('s_barrier'); stamp(a,P,0)
        z3=P['bz3']
        for q in range(3):
            poll_ld(a,V_HQ,0,V_PL,q)
            if q==0: scal()
            zs(sum(z3[:q]),sum(z3[:q+1]))
        mld(); zs(sum(z3),32)
        a('s_waitcnt vmcnt(6)'); a(f'v_cmp_gt_u32 vcc, s{S_EXP}, v{V_PL}')
        a(f's_cbranch_vccz {lb}')
        ok=a.new('ok')
        a(f's_add_u32 s{S_RETRY}, s{S_RETRY}, 1')
        for q in (1,2):
            poll_ld(a,V_HQ,0,V_PL,q-1); a('s_waitcnt vmcnt(6)'); a(f'v_cmp_gt_u32 vcc, s{S_EXP}, v{V_PL+q}'); a(f's_cbranch_vccz {ok}')
        poll_ld(a,V_HQ,0,V_PL,2)
        poll(a,V_HQ,0,V_PL,3,abort,pre=False)
        a.label(ok); mld(); a(f's_branch {lb}')
        a.label(nq); stamp(a,P,0); scal(); zw()
        a.label(lb)
        a('s_barrier')
        for k in range(P['vxe']):
            a(vxl(k))
            if k<P['vxe']-1: a('s_nop 3')
        a(f's_waitcnt vmcnt({P["vxe"]})')
        bn=a.new('Bnan'); bnb=a.new('Bnanb'); br=a.new('Bredo')
        def o1():
            a.label(bn); a(f's_cmp_lg_u32 s{S_M2}, 0'); a(f's_cbranch_scc1 {bnb}'); a(f's_mov_b32 s{S_M2}, 1'); a(f's_add_u32 s{S_RETRY2}, s{S_RETRY2}, 0x10000')
            a(f's_mov_b32 s{S_TO}, {TIMEOUT}'); a(f'v_mov_b32 v{V_P}, v{V_L16}'); a(f's_mov_b32 s{S_T}, 0'); a('s_waitcnt lgkmcnt(0)')
            l=a.new('l'); a.label(l)
            a(f'buffer_load_dwordx4 {vr(V_P+2,4)}, v{V_P}, {ring}, s{S_MC} offen sc1'); a('s_waitcnt vmcnt(0)')
            a(f'v_max3_u32 v{V_T}, v{V_P+2}, v{V_P+3}, v{V_P+4}'); a(f'v_max_u32 v{V_T}, v{V_T}, v{V_P+5}'); a(f'v_cmp_eq_u32 vcc, -1, v{V_T}')
            a(f's_sub_u32 s{S_TO}, s{S_TO}, 1'); a(f's_cbranch_scc1 {abort}'); a(f's_cbranch_vccnz {l}')
            a(f'ds_write_b128 v{V_P}, {vr(V_P+2,4)} offset:{L_M}'); a('s_waitcnt lgkmcnt(0)'); a(f'v_add_u32 v{V_P}, 1024, v{V_P}')
            a(f's_add_u32 s{S_T}, s{S_T}, 1'); a(f's_cmp_lt_u32 s{S_T}, 7'); a(f's_cbranch_scc1 {l}')
            zw(); a(f's_branch {br}')
        ool.append(o1)
        last=a.new('Blast'); oth=a.new('Both'); jn=a.new('Bjoin'); sk=a.new('sk'); np_=a.new('np')
        a('s_barrier')
        stamp(a,P,1)
        a.label(br)
        bpart(bn,bnb)
        zd=lambda:[a(f'v_mov_b64 {vr(V_D+2*r,2)}, 0') for r in range(4)]
        pk8=lambda:([pack(i) for i in range(8)], zd())
        stamp(a,P,3)
        pw=a.new('pw')
        a(f's_cmp_eq_u32 s{S_W}, 3'); a(f's_cbranch_scc1 {pw}')
        pk8(); dump_stamps(a,P,7,V_P); a(f's_branch {np_}')
        a.label(pw)
        for q in range(5):
            if q<P['pollD']: poll_ld(a,V_HP,0,V_PL,q)
            if q<4: pack(2*q); pack(2*q+1)
            else: zd()
        poll(a, V_HP, S_CUR, V_PL, P['pollD'], abort, pre=False)
        a.label(np_)
        a('s_barrier')
        stamp(a,P,4)
        hs=f'buffer_store_dword v{V_HV}, v{V_HS}, {ring}, 0 offen{st}'
        LP=[f'buffer_load_dwordx4 {vr(V_P,4)}, v{V_PA}, {ring}, s{S_CUR} offen sc1', f'buffer_load_dwordx4 {vr(V_P+4,4)}, v{V_PA}, {ring}, s{S_CU2} offen sc1',
            f'buffer_load_dword v{V_P+8}, v{V_PMA}, {ring}, s{S_CUR} offen sc1', f'buffer_load_dword v{V_P+9}, v{V_PMA}, {ring}, s{S_CUR} offen offset:256 sc1']
        PO=P['pord']
        def ldp(sp=False):
            for k,g in enumerate(PO):
                for x in (LP[g:g+1] if g<2 else LP[2:]): a(x)
                if sp and k<2: a(f's_nop {P["csp"]}')
        def cpart(hint):
            nan=a.new('Cnan'); nb=a.new('Cnanb'); rs=a.new('Crs')
            a.label(rs)
            left=4
            for k,g in enumerate(PO):
                left-=1 if g<2 else 2
                a(f's_waitcnt vmcnt({left})')
                if k==0: stamp(a,P,5)
                if k==2 and hint and P['hintM']==0: a(hs); stamp(a,P,6)
                for tl in range(2):
                    if g<2: a(f'{SMF} {vr(V_D+4*tl,4)}, {vr(V_P+4*g,4)}, {vr(V_VX+16*tl+8*g,8)}, v{V_IDX}')
                    else: a(f'{SMH} {vr(V_D+4*tl,4)}, {vr(V_P+8,2)}, {vr(V_VM+4*tl,4)}, v{V_IDX}')
            if hint and P['hintM']==1: a(hs); stamp(a,P,6)
            a(f'v_pk_add_f32 {vr(V_D,2)}, {vr(V_D,2)}, {vr(V_D+2,2)}')
            a(f'v_cmp_u_f32 vcc, v{V_D}, v{V_D+1}')
            if P['csplit']: a(f'ds_write_b64 v{V_CW}, {vr(V_D,2)}')
            a(f'v_pk_add_f32 {vr(V_D+4,2)}, {vr(V_D+4,2)}, {vr(V_D+6,2)}')
            if P['csplit']: a(f'ds_write_b64 v{V_CW}, {vr(V_D+4,2)} offset:2560')
            else: a(f'ds_write2st64_b64 v{V_CW}, {vr(V_D,2)}, {vr(V_D+4,2)} offset0:0 offset1:5')
            if hint and P['hintM']==2: a(hs); stamp(a,P,6)
            a(f's_cbranch_vccnz {nan}'); a.label(nb)
            if hint and P['hintM']==3: a(hs); stamp(a,P,6)
            if not P['nwC']: a('s_waitcnt lgkmcnt(0)')
            a('s_barrier')
            if hint and P['hintM']==4: a(hs); stamp(a,P,6)
            def o2():
                a.label(nan); a(f's_cmp_lg_u32 s{S_FLAG}, 0'); a(f's_cbranch_scc1 {nb}'); a(f's_mov_b32 s{S_FLAG}, 1')
                a(f's_add_u32 s{S_RETRY2}, s{S_RETRY2}, 0x10000'); a(f's_mov_b32 s{S_TO}, {TIMEOUT}')
                l=a.new('l'); a.label(l)
                ldp()
                a('s_waitcnt vmcnt(0) lgkmcnt(0)'); zd()
                a(f'v_max_u32 v{V_T}, v{V_P}, v{V_P+1}')
                for k in range(1,5): a(f'v_max3_u32 v{V_T}, v{V_T}, v{V_P+2*k}, v{V_P+2*k+1}')
                a(f'v_cmp_eq_u32 vcc, -1, v{V_T}'); a(f's_cbranch_vccz {rs}'); a(f's_sub_u32 s{S_TO}, s{S_TO}, 1'); a(f's_cbranch_scc0 {l}'); a(f's_branch {abort}')
            ool.append(o2)
        ldp(True)
        o3=a.new('Bo3')
        a(f's_cmp_gt_u32 s{S_W}, 1'); a(f's_cbranch_scc1 {oth}')
        cpart(False)
        def rsum():
            for w in range(4): a(f'ds_read2_b32 {vr(V_R+2*w,2)}, v{V_CR if w<2 else V_CR2} offset0:{(w%2)*CP//4} offset1:{(w%2)*CP//4+2}')
            a('s_waitcnt lgkmcnt(2)'); a(f'v_pk_add_f32 {vr(V_R,2)}, {vr(V_R,2)}, {vr(V_R+2,2)}')
            a('s_waitcnt lgkmcnt(1)'); a(f'v_pk_add_f32 {vr(V_R,2)}, {vr(V_R,2)}, {vr(V_R+4,2)}')
            a('s_waitcnt lgkmcnt(0)'); a(f'v_pk_add_f32 {vr(V_R,2)}, {vr(V_R,2)}, {vr(V_R+6,2)}')
        cvo=f'v_cvt_pk_bf16_f32 v{V_O}, v{V_R}, v{V_R+1}'; mst=f'buffer_store_dword v{V_O}, v{V_MS}, {ring}, s{S_MN} offen{st}'
        rsum()
        cs=a.new('Cslow'); cj=a.new('Ccj')
        if P['nwC']:
            a(f'v_cmp_u_f32 vcc, v{V_R}, v{V_R+1}'); a(cvo); a(f'v_cndmask_b32 v{V_O}, v{V_O}, -1, vcc'); a(mst); stamp(a,P,6)
            a(f's_cbranch_vccnz {cs}')
            def o4():
                a.label(cs); a(f's_add_u32 s{S_RETRY2}, s{S_RETRY2}, 1'); a('s_barrier'); rsum(); a(cvo); a(f'v_min_u32 v{V_O}, -2, v{V_O}'); a(mst)
                a(f's_cmp_eq_u32 s{S_S}, {NSEG-2}'); a(f's_cbranch_scc1 {last}'); a(f's_branch {cj}')
            ool.append(o4)
        else:
            a(cvo); a(f'v_min_u32 v{V_O}, -2, v{V_O}'); a(mst); stamp(a,P,6)
        a(f's_cmp_eq_u32 s{S_S}, {NSEG-2}'); a(f's_cbranch_scc1 {last}')
        a('s_barrier')
        a.label(cj)
        a(f'v_mov_b32 v{V_T}, -1')
        a(f'buffer_store_dword v{V_T}, v{V_MS}, {ring}, s{S_MA} offen{st}')
        a(f's_branch {jn}')
        a.label(oth)
        a(f's_cmp_eq_u32 s{S_W}, 3'); a(f's_cbranch_scc1 {o3}')
        cpart(False); a(f's_branch {jn}')
        a.label(o3)
        cpart(True); dump_stamps(a,P,7,V_P)
        a.label(jn)
        a(f'v_add_u32 v{V_XA}, {P["vxstride"]}, v{V_XA}')
        if P.get('time'):
            sk=a.new('sk'); a(f's_cmp_lg_u32 s{S_S}, 7'); a(f's_cbranch_scc1 {sk}'); a('s_memtime s[80:81]'); a('s_memrealtime s[76:77]'); a.label(sk)
        a(f's_add_u32 s{S_S}, s{S_S}, 1'); a(f's_cmp_lt_u32 s{S_S}, {NSEG-1}'); a(f's_cbranch_scc1 {top}')
        a('s_branch L_fin')
        a.label(last)
        a(f's_mov_b32 s{S_MGO}, {MG_OFF+63*8192}')
        a(f'buffer_store_dword v{V_O}, v{V_MS}, {ws}, s{S_MGO} offen sc1')
        a('s_branch L_fin')
        for o in ool: o()
    return setup, body

def proto(P):
    a=Asm()
    a('chain_kernel:')
    a('''s_cmp_ge_u32 s2, 256
s_cbranch_scc1 L_exit
s_load_dwordx2 s[36:37], s[0:1], 0
s_load_dwordx4 s[40:43], s[0:1], 96
s_getreg_b32 s3, hwreg(HW_REG_XCC_ID)
s_and_b32 s3, s3, 15
s_cmp_lg_u32 s3, 0
s_cbranch_scc1 L_exit
v_lshrrev_b32 v1, 6, v0
v_and_b32 v0, 63, v0
s_nop 0
v_readfirstlane_b32 s17, v1
s_waitcnt lgkmcnt(0)''')
    a(f'''s_mov_b32 s{S_X}, s36
s_mov_b32 s{S_X+1}, s37
s_mov_b32 s{S_X+2}, {2048*896}
s_mov_b32 s{S_X+3}, 0x20000
s_mov_b32 s{S_WS}, s42
s_mov_b32 s{S_WS+1}, s43
s_mov_b32 s{S_WS+2}, {WS_SIZE}
s_mov_b32 s{S_WS+3}, 0x20000
s_add_u32 s{S_RING}, s42, {RING_OFF}
s_addc_u32 s{S_RING+1}, s43, 0
s_mov_b32 s{S_RING+2}, {RING_SIZE}
s_mov_b32 s{S_RING+3}, 0x20000
s_cmp_lg_u32 s17, 0
s_cbranch_scc1 L_notick
v_mov_b32 v1, 0
v_mov_b32 v2, 1
s_mov_b64 exec, 1
global_atomic_add v3, v1, v2, s[40:41] sc0
s_waitcnt vmcnt(0)
ds_write_b32 v1, v3
s_waitcnt lgkmcnt(0)
s_mov_b64 exec, -1
L_notick:
s_barrier
v_mov_b32 v1, 0
ds_read_b32 v3, v1
s_waitcnt lgkmcnt(0)
v_readfirstlane_b32 s{S_G}, v3
s_barrier
s_mov_b32 s{S_RETRY}, 0
s_mov_b32 s{S_RETRY2}, 0
s_cmp_ge_u32 s{S_G}, 30
s_cbranch_scc1 L_exit
s_cmp_ge_u32 s{S_G}, 16
s_cbranch_scc1 L_roleB
s_mov_b32 s{S_ID}, s{S_G}''')
    su,bo=gen_A(a,P); su(); bo(P.get('sc',0),'f')
    a.label('L_roleB'); a(f's_sub_u32 s{S_ID}, s{S_G}, 16')
    su,bo=gen_B(a,P); su(); bo(P.get('sc',0),'f')
    a.label('L_fin')
    a(f'''s_memtime s[82:83]
s_memrealtime s[78:79]
s_waitcnt lgkmcnt(0)
s_sub_u32 s82, s82, s80
s_sub_u32 s78, s78, s76
s_lshl_b32 s78, s78, 8
s_or_b32 s{S_S}, s{S_S}, s78
s_lshl_b32 s{S_T}, s{S_G}, 2
s_add_u32 s{S_T}, s{S_T}, s{S_W}
s_lshl_b32 s{S_T}, s{S_T}, 4
s_add_u32 s{S_T}, s{S_T}, {DBG_OFF}
v_mov_b32 v20, s82
v_mov_b32 v21, s{S_RETRY}
v_mov_b32 v22, s{S_RETRY2}
v_mov_b32 v23, s{S_S}
v_mov_b32 v24, 0
buffer_store_dwordx4 v[20:23], v24, s[{S_WS}:{S_WS+3}], s{S_T} offen''')
    a.label('L_exit'); a('s_endpgm')
    lines,added=hazards(a.lines, verbose=P.get('verbose'))
    a.lines=lines
    hdr='''; @launch grid=(256,1,1) block=(256,1,1) lds=102400
.amdgcn_target "amdgcn-amd-amdhsa--gfx950"
.text
.globl chain_kernel
.p2align 8
.type chain_kernel,@function
'''
    ftr='''.section .rodata,"a"
.p2align 6
.amdhsa_kernel chain_kernel
  .amdhsa_next_free_vgpr 512
  .amdhsa_next_free_sgpr 102
  .amdhsa_accum_offset 256
  .amdhsa_group_segment_fixed_size 0
  .amdhsa_kernarg_size 112
  .amdhsa_user_sgpr_count 2
  .amdhsa_user_sgpr_kernarg_segment_ptr 1
  .amdhsa_system_sgpr_workgroup_id_x 1
.end_amdhsa_kernel
'''
    return hdr+a.text()+ftr

DEF=dict(nhm=14,pollD=5,zsplit=[2,3,5,18],abar=0,nwA=1,hw3=5,nwC=1,rdm=0,xfirst=0,gp=dict(c3=1,d1=3,bw='c3',mw='x4',z=[7,8,14,15,23,24],x=[9,12,16,18,22,25,26,33],bar=19,r=[19,20,21],mk=[27,28,29,30]),sm=1,wsplit=0,csplit=0,csp=3,pord=(0,2,1),warm=0,bmode=2,bz3=[2,10,18],bz=12,bz2=8,zpre=0,ml1=0,pollB=3,vxe=4,vxpre=0,vx0=0,vxs=2,mg=0,hintP=12,hintM=1,vxstride=VX_SEG,xastride=XA_SEG,time=1,stamps=0,vmg=0,rot=1)
if __name__=='__main__':
    P=dict(DEF); P['verbose']=1
    open('chain.s','w').write(proto(P))
```

```python
from asmlib import *
from layout import *
from chain import Cnt, lx, mkidx, wreg, S_RING, S_WS, S_ID, S_W, S_S, S_TO, S_T, SMF, MF, MFH
M32='v_mfma_f32_32x32x16_bf16'
S_OUT=8
S_J=19
WTIME=300000
ws=f's[{S_WS}:{S_WS+3}]'
abort='L_exit'
NV=4; NSW=4; NOG=9

def wpoll(a, voff, soff, tmp, thr, sleep=1):
    lp=a.new('wp'); dn=a.new('wpd')
    a(f's_mov_b32 s{S_TO}, {WTIME}')
    a.label(lp)
    a(f'buffer_load_dword v{tmp}, v{voff}, {ws}, {soff} offen sc1'); a('s_waitcnt vmcnt(0)')
    a(f'v_cmp_gt_u32 vcc, {thr}, v{tmp}'); a(f's_cbranch_vccz {dn}')
    if sleep: a(f's_sleep {sleep}')
    a(f's_sub_u32 s{S_TO}, s{S_TO}, 1'); a(f's_cbranch_scc0 {lp}'); a(f's_branch {abort}')
    a.label(dn)
def mwait(a, vt, vl):
    sk=a.new('mw'); a(f's_cmp_ge_u32 s{S_S}, {NSEG-1}'); a(f's_cbranch_scc1 {sk}')
    a(f's_lshl_b32 s{S_T}, s{S_S}, 8'); a(f's_add_u32 s{S_T}, s{S_T}, {FL_OFF+192}'); a(f'v_bfe_u32 v{vt+1}, v{vl}, 4, 1'); a(f'v_lshlrev_b32 v{vt+1}, 2, v{vt+1}')
    wpoll(a,vt+1,f's{S_T}',vt,1,sleep=2)
    a.label(sk)
def wave0(a, fn):
    sk=a.new('w0'); a(f's_cmp_lg_u32 s{S_W}, 0'); a(f's_cbranch_scc1 {sk}'); fn(); a.label(sk)
def setflag(a, vone, voob, soff):
    wave0(a, lambda: a(f'buffer_store_dword v{vone}, v{voob}, {ws}, s{soff} offen sc1'))
def flagregs(a, vone, voob, lane):
    a(f'v_mov_b32 v{vone}, 1'); a(f'v_min_u32 v{voob}, 1, v{lane}'); a(f'v_lshlrev_b32 v{voob}, 30, v{voob}')

V_WV=120
def tl(a,P,r):
    if P.get('tl'): a(f's_memrealtime s[{r}:{r+1}]')
def Wf(n,kk,cnt=4):
    f,r=wreg(n*7+kk//2,32,V_WV); return vr(r+4*(kk%2),cnt,f)
def load_weights(a, off, vl16):
    a(f's_mul_i32 s{S_T}, s{S_ID}, {WMAT}'); a(f's_mul_i32 s{S_T+1}, s{S_W}, {7*KK*1024}'); a(f's_add_u32 s{S_T}, s{S_T}, s{S_T+1}')
    if off: a(f's_add_u32 s{S_T}, s{S_T}, {off}')
    for q in range(98):
        n,kk=divmod(q,14)
        a(f'buffer_load_dwordx4 {Wf(n,kk)}, v{vl16}, {ws}, s{S_T} offen offset:{1024*(q%4)} sc1')
        if q%4==3: a(f's_add_u32 s{S_T}, s{S_T}, 4096')
S_XB=20; S_XS=21
def xdma(a, vl16, sseg):
    a(f's_mul_i32 s{S_T}, s{sseg}, {XF_SEG}'); a(f's_mul_i32 s{S_T+1}, s{S_W}, 7168'); a(f's_add_u32 s{S_T}, s{S_T}, s{S_T+1}'); a(f's_add_u32 s{S_T}, s{S_T}, {XF_OFF}')
    a(f's_add_u32 m0, s{S_T+1}, s{S_XB}')
    for k in range(7):
        if k==4: a(f's_add_u32 s{S_T}, s{S_T}, 4096'); a('s_add_u32 m0, m0, 4096')
        a(f'buffer_load_dwordx4 v{vl16}, {ws}, s{S_T} offen offset:{1024*(k%4)} sc1 lds')
def gemm32(a, vxr, xb, acc, wfirst, fill=None):
    lg=Cnt(a,'lgkmcnt',15)
    def rd(kk):
        for tt in range(2): a(f'ds_read_b128 {vr(xb+8*(kk%2)+4*tt,4)}, v{vxr} offset:{tt*14336+kk*1024}'); lg.issue(f'x{kk}')
    rd(0); rd(1)
    for kk in range(14):
        lg.wait(f'x{kk}')
        for n in range(7):
            for tt in range(2):
                d=vr(acc(tt,n),4); x=vr(xb+8*(kk%2)+4*tt,4)
                A,B=(Wf(n,kk),x) if wfirst else (x,Wf(n,kk))
                a(f'{MF} {d}, {A}, {B}, {d if kk else 0}')
            if n==0 and 1<=kk<13: rd(kk+1)
            if n in (2,5) and fill and 2*kk+(n==5)<len(fill): fill[2*kk+(n==5)]()

def gen_V(a, P):
    V_L16,V_IDX,V_ONE,V_OOB,V_XR,V_L4,V_PO,V_T = range(8)
    V_ACC=16; V_XB=72; V_M=72
    S_O=22; S_F=24; S_NX=25
    l=V_ACC; t=V_ACC+1
    a(f'v_mov_b32 v{l}, v0'); a(f'v_lshlrev_b32 v{V_L16}, 4, v{l}'); mkidx(a,V_IDX,l,t); flagregs(a,V_ONE,V_OOB,l)
    a(f'v_lshlrev_b32 v{V_L4}, 2, v{l}'); a(f'v_min_u32 v{V_PO}, 55, v{l}'); a(f'v_lshlrev_b32 v{V_PO}, 7, v{V_PO}')
    S_HS=27; a(f's_and_b32 s{S_HS}, s{S_ID}, 3'); a(f's_lshl_b32 s{S_HS}, s{S_HS}, 2'); a(f's_lshr_b32 s{S_T}, s{S_ID}, 2'); a(f's_add_u32 s{S_HS}, s{S_HS}, s{S_T}')
    a(f's_mov_b32 s{S_XB}, 0'); a(f's_mov_b32 s{S_S}, s{S_J}')
    from prep2 import wait_mat, wait_all
    a(f's_add_u32 s{S_O}, s{S_ID}, 16'); wait_mat(a,l,l+1,S_O)
    load_weights(a,WB_OFF,V_L16)
    wait_all(a,l+1)
    xdma(a,V_L16,S_S)
    if P.get('tl'): a('s_waitcnt vmcnt(0)'); tl(a,P,72)
    top=a.new('Vtop'); nf=a.new('nf'); nd=a.new('nd'); done=a.new('Vdone')
    a.label(top)
    a('s_waitcnt vmcnt(0)'); a('s_barrier')
    a(f's_cmp_eq_u32 s{S_S}, s{S_J}'); a(f's_cbranch_scc1 {nf}')
    setflag(a,V_ONE,V_OOB,S_F)
    a.label(nf)
    a(f's_cmp_ge_u32 s{S_S}, {NSEG}'); a(f's_cbranch_scc1 {done}')
    a(f'v_add_u32 v{V_XR}, s{S_XB}, v{V_L16}'); a(f's_xor_b32 s{S_XB}, s{S_XB}, 32768')
    a(f's_add_u32 s{S_NX}, s{S_S}, {NV}'); a(f's_cmp_ge_u32 s{S_NX}, {NSEG}'); a(f's_cbranch_scc1 {nd}')
    xdma(a,V_L16,S_NX)
    a.label(nd)
    acc=lambda tt,n: V_ACC+8*n+4*tt
    gemm32(a,V_XR,V_XB,acc,False)
    a(f's_mul_i32 s{S_O}, s{S_S}, {VX_SEG}'); a(f's_mul_i32 s{S_T}, s{S_W}, {7*H*1024}'); a(f's_add_u32 s{S_O}, s{S_O}, s{S_T}'); a(f's_lshl_b32 s{S_T}, s{S_HS}, 10')
    a(f's_add_u32 s{S_O}, s{S_O}, s{S_T}'); a(f's_add_u32 s{S_O}, s{S_O}, {VX_OFF}')
    for n in range(7):
        x=V_ACC+8*n
        for r in range(4): a(f'v_cvt_pk_bf16_f32 v{x+r}, v{x+2*r}, v{x+2*r+1}')
        a(f'buffer_store_dwordx4 {vr(x,4)}, v{V_L16}, {ws}, s{S_O} offen sc1')
        if n<6: a(f's_add_u32 s{S_O}, s{S_O}, {H*1024}')
    a(f's_lshl_b32 s{S_F}, s{S_S}, 8'); a(f's_lshl_b32 s{S_T}, s{S_ID}, 2'); a(f's_add_u32 s{S_F}, s{S_F}, s{S_T}'); a(f's_add_u32 s{S_F}, s{S_F}, {FL_OFF}')
    a(f's_mov_b32 s{S_S}, s{S_NX}'); a(f's_branch {top}')
    a.label(done); tl(a,P,74)
    a(f's_mov_b32 s{S_S}, s{S_J}')
    t2=a.new('Vm'); lp=a.new('Vmp'); bad=a.new('Vmb'); ok=a.new('Vmo')
    a.label(t2)
    mwait(a,V_M,V_L16)
    a(f's_lshl_b32 s{S_O}, s{S_S}, 13'); a(f's_add_u32 s{S_O}, s{S_O}, {MG_OFF}'); a(f's_add_u32 s{S_NX}, s{S_O}, 4096'); a(f's_mov_b32 s{S_TO}, {WTIME}')
    for r in range(14): a(f'v_mov_b64 {vr(V_ACC+2*r,2)}, 0')
    a.label(lp)
    a(f'buffer_load_dword v{V_T}, v{V_PO}, {ws}, s{S_O} offen sc1'); a('s_waitcnt vmcnt(0)')
    a(f'v_cmp_eq_u32 vcc, -1, v{V_T}'); a(f's_cbranch_vccnz {bad}')
    for i in range(7): a(f'buffer_load_dwordx4 {vr(V_M+4*i,4)}, v{V_L16}, {ws}, s{S_O if i<4 else S_NX} offen offset:{1024*(i%4)} sc1')
    a('s_waitcnt vmcnt(0)')
    a(f'v_max_u32 v{V_T}, v{V_M}, v{V_M+1}')
    for k in range(1,14): a(f'v_max3_u32 v{V_T}, v{V_T}, v{V_M+2*k}, v{V_M+2*k+1}')
    a(f'v_cmp_eq_u32 vcc, -1, v{V_T}'); a(f's_cbranch_vccz {ok}')
    a.label(bad)
    a('s_sleep 1'); a(f's_sub_u32 s{S_TO}, s{S_TO}, 1'); a(f's_cbranch_scc0 {lp}'); a(f's_branch {abort}')
    a.label(ok)
    a(f's_mul_i32 s{S_O}, s{S_S}, {VM_SEG}'); a(f's_mul_i32 s{S_T}, s{S_W}, {7*H*256}'); a(f's_add_u32 s{S_O}, s{S_O}, s{S_T}'); a(f's_lshl_b32 s{S_T}, s{S_HS}, 8')
    a(f's_add_u32 s{S_O}, s{S_O}, s{S_T}'); a(f's_add_u32 s{S_O}, s{S_O}, {VM_OFF}')
    def fin(n):
        x=V_ACC+4*n
        return [f'v_add_f32 v{x}, v{x}, v{x+2}', f'v_add_f32 v{x+1}, v{x+1}, v{x+3}', f'v_cvt_pk_bf16_f32 v{x}, v{x}, v{x+1}',
                f'buffer_store_dword v{x}, v{V_L4}, {ws}, s{S_O} offen sc1\ns_add_u32 s{S_O}, s{S_O}, {H*256}']
    for n in range(7):
        f=fin(n-1) if n else []
        for i in range(7):
            a(f'{SMF} {vr(V_ACC+4*n,4)}, {vr(V_M+4*i,4)}, {Wf(n,2*i,8)}, v{V_IDX}')
            if i>=2 and f: a(f.pop(0))
    for x in fin(6): a(x)
    a(f's_lshl_b32 s{S_F}, s{S_S}, 8'); a(f's_lshl_b32 s{S_T}, s{S_ID}, 2'); a(f's_add_u32 s{S_F}, s{S_F}, s{S_T}'); a(f's_add_u32 s{S_F}, s{S_F}, {FL_OFF+128}')
    a('s_waitcnt vmcnt(0)'); a('s_barrier')
    setflag(a,V_ONE,V_OOB,S_F)
    a(f's_add_u32 s{S_S}, s{S_S}, {NV}'); a(f's_cmp_lt_u32 s{S_S}, {NSEG}'); a(f's_cbranch_scc1 {t2}')
    a('s_branch L_fin')

def gen_S(a, P):
    V_L16,V_ONE,V_OOB,V_XR,V_KX,V_KXH,V_KM,V_KMH,V_SW,V_SWM,V_SR,V_SRM,V_PX,V_PM,V_NEG,V_T = range(16)
    V_ACC=16; V_XB=72; V_K=88; V_MK=72
    S_O=22; S_F=24; S_NX=25; S_KA=26; S_MK=48
    L_S=65536; RS=176; WSZ=32*RS
    l=V_ACC; t=V_ACC+1; u=V_ACC+2
    a(f'v_mov_b32 v{l}, v0'); a(f'v_lshlrev_b32 v{V_L16}, 4, v{l}'); flagregs(a,V_ONE,V_OOB,l)
    lx(a,V_KX,l,t,[(5,1,12),(4,1,9),(0,4,4)]); lx(a,V_KXH,l,t,[(5,1,9),(4,1,3),(0,4,4)],256)
    a(f's_mul_i32 s{S_T}, s{S_W}, {7*256}')
    lx(a,V_KM,l,t,[(5,1,8),(4,1,5),(1,2,6),(0,1,4)],f's{S_T}'); lx(a,V_KMH,l,t,[(5,1,5),(4,1,3),(1,2,6),(0,1,4)],[f's{S_T}',1536])
    a(f's_mul_i32 s{S_T}, s{S_W}, {WSZ}'); a(f's_add_u32 s{S_T}, s{S_T}, {L_S}')
    lx(a,u,l,t,[(0,4,0)]); a(f'v_mul_u32_u24 v{u}, {RS}, v{u}'); a(f'v_add_u32 v{u}, s{S_T}, v{u}')
    lx(a,V_SW,l,t,[(5,1,6),(4,1,3)]); a(f'v_add_u32 v{V_SW}, v{V_SW}, v{u}'); lx(a,V_SWM,l,t,[(4,1,4)],128); a(f'v_add_u32 v{V_SWM}, v{V_SWM}, v{u}')
    a(f's_mul_i32 s{S_T}, s{S_W}, {8*RS}'); a(f's_add_u32 s{S_T}, s{S_T}, {L_S}')
    lx(a,u,l,t,[(3,3,0)]); a(f'v_mul_u32_u24 v{u}, {RS}, v{u}'); a(f'v_add_u32 v{u}, s{S_T}, v{u}')
    lx(a,V_SR,l,t,[(0,3,4)]); a(f'v_add_u32 v{V_SR}, v{V_SR}, v{u}'); lx(a,V_SRM,l,t,[(0,3,2)],128); a(f'v_add_u32 v{V_SRM}, v{V_SRM}, v{u}')
    a(f's_lshr_b32 s{S_T}, s{S_W}, 1'); a(f's_and_b32 s{S_T+1}, s{S_W}, 1')
    a(f's_lshl_b32 s{S_T+2}, s{S_T}, 4'); a(f's_add_u32 s{S_T+2}, s{S_T+2}, s{S_ID}')
    a(f's_lshl_b32 s{S_T+3}, s{S_T+2}, 10'); a(f's_lshl_b32 s{S_T+4}, s{S_T+1}, 7'); a(f's_add_u32 s{S_T+3}, s{S_T+3}, s{S_T+4}')
    lx(a,V_PX,l,t,[(1,2,8),(3,3,4),(0,1,3)],[f's{S_T+3}',PX_OFF])
    a(f's_lshl_b32 s{S_T+3}, s{S_T+2}, 8'); a(f's_lshl_b32 s{S_T+4}, s{S_T+1}, 5'); a(f's_add_u32 s{S_T+3}, s{S_T+3}, s{S_T+4}')
    lx(a,V_PM,l,t,[(1,2,6),(3,3,2),(0,1,30)],[f's{S_T+3}',PM_OFF])
    a(f's_lshl_b32 s{S_T+3}, s{S_T+1}, 4'); a(f's_lshl_b32 s{S_T+4}, s{S_T}, 2'); a(f's_add_u32 s{S_T+3}, s{S_T+3}, s{S_T+4}')
    lx(a,u,l,t,[(5,1,3),(3,2,0)],f's{S_T+3}'); lx(a,V_T,l,t,[(0,3,2)])
    for r in range(4):
        a(f'v_cmp_le_u32 s[{S_MK+2*r}:{S_MK+2*r+1}], v{V_T}, v{u}'); a(f'v_add_u32 v{V_T}, 1, v{V_T}')
    a(f'v_mov_b32 v{V_NEG}, 0xceabfb8f')
    a(f's_mov_b32 s{S_XB}, 0'); a(f's_mov_b32 s{S_S}, s{S_J}')
    if P.get('sdelay',1):
        lx(a,u,l,t,[(0,4,2)]); a(f's_mov_b32 s{S_O}, {FL_OFF}'); wpoll(a,u,f's{S_O}',V_T,1,sleep=8)
    xdma(a,V_L16,S_S)
    load_weights(a,WA_OFF,V_L16)
    top=a.new('Stop'); nd=a.new('nd'); lp=a.new('Smp'); ok=a.new('Smo')
    a(f's_mov_b32 s{S_F}, 0x40000000')
    a('s_waitcnt vmcnt(0)'); a('s_barrier'); tl(a,P,72)
    a.label(top)
    a(f'v_add_u32 v{V_XR}, s{S_XB}, v{V_L16}'); a(f's_xor_b32 s{S_XB}, s{S_XB}, 32768')
    a(f's_add_u32 s{S_NX}, s{S_S}, {NSW}')
    def later():
        a('s_waitcnt vmcnt(0)'); a('s_barrier'); setflag(a,V_ONE,V_OOB,S_F)
        a(f's_cmp_ge_u32 s{S_NX}, {NSEG}'); a(f's_cbranch_scc1 {nd}')
        xdma(a,V_L16,S_NX)
        a.label(nd)
    a(f's_mul_i32 s{S_KA}, s{S_S}, {XA_SEG}'); a(f's_lshl_b32 s{S_T}, s{S_W}, 10'); a(f's_add_u32 s{S_KA}, s{S_KA}, s{S_T}'); a(f's_add_u32 s{S_KA}, s{S_KA}, {XA_OFF}')
    S_KB=60
    for q in range(4): a(f's_add_u32 s{S_KB+q}, s{S_KA}, {8192*q}')
    fill=[lambda:None]*6+[later,lambda:None]
    for kt in range(2):
        for q in range(3): fill.append(lambda kt=kt,q=q: a(f'buffer_load_dwordx4 {vr(V_K+14*kt+4*q,4)}, v{V_KX}, {ws}, s{S_KB+2*kt+q//2} offen offset:{(q%2)*256} sc1'))
        fill.append(lambda kt=kt: a(f'buffer_load_dwordx2 {vr(V_K+14*kt+12,2)}, v{V_KXH}, {ws}, s{S_KB+2*kt+1} offen sc1'))
    acc=lambda tt,n: V_ACC+28*tt+4*n
    V_FL=116
    a(f's_lshl_b32 s{S_KA+2}, s{S_S}, 8'); a(f's_add_u32 s{S_KA+2}, s{S_KA+2}, {FL_OFF+192}'); a(f'v_bfe_u32 v{V_FL+1}, v{V_L16}, 4, 1'); a(f'v_lshlrev_b32 v{V_FL+1}, 2, v{V_FL+1}')
    fill.append(lambda: a(f'buffer_load_dword v{V_FL}, v{V_FL+1}, {ws}, s{S_KA+2} offen sc1'))
    gemm32(a,V_XR,V_XB,acc,True,fill)
    def mload():
        for q in range(3): a(f'buffer_load_dwordx4 {vr(V_MK+4*q,4)}, v{V_KM}, {ws}, s{S_O} offen offset:{512*q} sc1')
        a(f'buffer_load_dwordx2 {vr(V_MK+12,2)}, v{V_KMH}, {ws}, s{S_O} offen sc1')
    a(f's_lshl_b32 s{S_O}, s{S_S}, 13'); a(f's_add_u32 s{S_O}, s{S_O}, {MG_OFF}')
    e1=a.new('e'); e2=a.new('e')
    a('s_waitcnt vmcnt(0)'); a(f'v_cmp_gt_u32 s[{S_KA+4}:{S_KA+5}], 1, v{V_FL}'); a(f's_cmp_lg_u64 s[{S_KA+4}:{S_KA+5}], 0'); a(f's_cbranch_scc1 {e1}'); mload(); a.label(e1)
    for q in range(4):
        for tt in range(2):
            x=acc(tt,2*q); y=x+4
            if q<3:
                a(f'v_cvt_pk_bf16_f32 v{x}, v{x}, v{x+1}'); a(f'v_cvt_pk_bf16_f32 v{x+1}, v{y}, v{y+1}'); a(f'v_cvt_pk_bf16_f32 v{x+2}, v{x+2}, v{x+3}'); a(f'v_cvt_pk_bf16_f32 v{x+3}, v{y+2}, v{y+3}')
            else: a(f'v_cvt_pk_bf16_f32 v{x}, v{x}, v{x+1}'); a(f'v_cvt_pk_bf16_f32 v{x+1}, v{x+2}, v{x+3}')
    S=lambda kt,tt: acc(tt,2*kt+1)
    def s2(kts):
        for q in range(4):
            for kt in kts:
                for tt in range(2):
                    d=vr(S(kt,tt),4); k=(V_K+14*kt if kt<2 else V_MK)+4*q
                    if q<3: a(f'{MF} {d}, {vr(k,4)}, {vr(acc(tt,2*q),4)}, {d if q else 0}')
                    else: a(f'{MFH} {d}, {vr(k,2)}, {vr(acc(tt,6),2)}, {d}')
    s2([0,1])
    for tt in range(2):
        if tt: a(f'v_add_u32 v{V_T}, {16*RS}, v{V_SW}')
        for r in range(4): a(f'ds_write2_b32 v{V_T if tt else V_SW}, v{S(0,tt)+r}, v{S(1,tt)+r} offset0:{4*r} offset1:{4*r+1}')
    a(f's_cmp_eq_u64 s[{S_KA+4}:{S_KA+5}], 0'); a(f's_cbranch_scc1 {e2}'); mwait(a,V_MK,V_L16); mload(); a.label(e2); a(f's_mov_b32 s{S_TO}, {WTIME}')
    a.label(lp)
    a('s_waitcnt vmcnt(0)')
    a(f'v_max_u32 v{V_T}, v{V_MK}, v{V_MK+1}')
    for k in range(1,7): a(f'v_max3_u32 v{V_T}, v{V_T}, v{V_MK+2*k}, v{V_MK+2*k+1}')
    a(f'v_cmp_eq_u32 vcc, -1, v{V_T}'); a(f's_cbranch_vccz {ok}')
    a('s_sleep 1'); mload()
    a(f's_sub_u32 s{S_TO}, s{S_TO}, 1'); a(f's_cbranch_scc0 {lp}'); a(f's_branch {abort}')
    a.label(ok); tl(a,P,74)
    s2([2])
    for tt in range(2): a(f'ds_write_b128 v{V_SWM}, {vr(S(2,tt),4)} offset:{tt*16*RS}')
    a('s_waitcnt lgkmcnt(0)'); a('s_barrier')
    R=V_ACC; Rm=V_ACC+16; E=V_ACC+20; t=V_ACC+28
    for w in range(4): a(f'ds_read_b128 {vr(R+4*w,4)}, v{V_SR} offset:{w*WSZ}')
    for w in range(4): a(f'ds_read_b32 v{Rm+w}, v{V_SRM} offset:{w*WSZ}')
    a(f's_lshl_b32 s{S_O}, s{S_S}, 15'); a(f's_lshl_b32 s{S_T+1}, s{S_S}, 13')
    a(f's_lshl_b32 s{S_F}, s{S_S}, 8'); a(f's_lshl_b32 s{S_T}, s{S_ID}, 2'); a(f's_add_u32 s{S_F}, s{S_F}, s{S_T}'); a(f's_add_u32 s{S_F}, s{S_F}, {FL_OFF+64}')
    a('s_waitcnt lgkmcnt(0)')
    pk=lambda d,x,y: a(f'v_pk_add_f32 {vr(d,2)}, {vr(x,2)}, {vr(y,2)}')
    pk(R,R,R+4); pk(R+2,R+2,R+6); pk(R+8,R+8,R+12); pk(R+10,R+10,R+14); pk(Rm,Rm,Rm+2); pk(R,R,R+8); pk(R+2,R+2,R+10); a(f'v_add_f32 v{R+4}, v{Rm}, v{Rm+1}')
    for r in range(4): a(f'v_cndmask_b32 v{R+r}, v{V_NEG}, v{R+r}, s[{S_MK+2*r}:{S_MK+2*r+1}]')
    dpps=['quad_perm:[1,0,3,2]','quad_perm:[2,3,0,1]','row_half_mirror']
    a(f'v_max3_f32 v{t}, v{R}, v{R+1}, v{R+2}'); a(f'v_max3_f32 v{t}, v{t}, v{R+3}, v{R+4}')
    for m in dpps: a(f'v_max_f32_dpp v{t}, v{t}, v{t} {m} row_mask:0xf bank_mask:0xf')
    for k in range(5): a(f'v_sub_f32 v{R+k}, v{R+k}, v{t}')
    for k in (4,0,1,2,3): a(f'v_exp_f32 v{E+k}, v{R+k}')
    a(f'v_mov_b32_dpp v{E+5}, v{E+4} quad_perm:[1,0,3,2] row_mask:0xf bank_mask:0xf')
    pk(t,E,E+2); a(f'v_add_f32 v{t}, v{t}, v{E+4}'); a(f'v_add_f32 v{t}, v{t}, v{t+1}')
    for m in dpps: a(f'v_add_f32_dpp v{t}, v{t}, v{t} {m} row_mask:0xf bank_mask:0xf')
    a(f'v_rcp_f32 v{t}, v{t}')
    for k in range(3): a(f'v_pk_mul_f32 {vr(E+2*k,2)}, {vr(E+2*k,2)}, {vr(t,2)} op_sel_hi:[1,0]')
    for k in range(3): a(f'v_cvt_pk_bf16_f32 v{t+2+k}, v{E+2*k}, v{E+2*k+1}')
    a(f'buffer_store_dwordx2 {vr(t+2,2)}, v{V_PX}, {ws}, s{S_O} offen sc1')
    a(f'buffer_store_dword v{t+4}, v{V_PM}, {ws}, s{S_T+1} offen sc1')
    a(f's_mov_b32 s{S_S}, s{S_NX}'); a(f's_cmp_lt_u32 s{S_S}, {NSEG}'); a(f's_cbranch_scc1 {top}')
    a('s_waitcnt vmcnt(0)'); a('s_barrier')
    setflag(a,V_ONE,V_OOB,S_F)
    a('s_branch L_fin')

def gen_PF(a, P):
    V_PO,V_TH,V_T,V_L,V_HS,V_HV,V_FI=1,2,3,4,5,6,7; V_D=8; V_MO=15; V_MD=20; S_PM=30; S_PG=31; V_L1=36; V_L2=37
    S_O=60; S_R=66
    S_I=28
    t=V_T; NTI=(5+7*P['pfl']+5)//6; assert P['pfl']<=4
    def setup():
        a(f'v_lshlrev_b32 v{V_L}, 7, v0')
        lx(a,V_PO,0,t,[(0,4,2)])
        a(f's_mul_i32 s{S_I}, s{S_ID}, 3'); a(f's_add_u32 s{S_I}, s{S_I}, s{S_W}'); a(f's_sub_u32 s{S_I}, s{S_I}, 1')
        a(f'v_add_u32 v{t}, s{S_ID}, v0'); a(f'v_min_u32 v{t}, 1, v{t}'); a(f'v_lshlrev_b32 v{t}, 30, v{t}'); a(f'v_or_b32 v{V_HS}, {R_HM+14*4}, v{t}')
        a(f's_mul_i32 s{S_T}, s{S_ID}, 3072'); a(f'v_lshlrev_b32 v{V_MO}, 4, v0'); a(f'v_add_u32 v{V_MO}, s{S_T}, v{V_MO}')
        a(f's_mov_b32 s{S_PM}, {R_M+8192}'); a(f's_mov_b32 s{S_PG}, {MG_OFF+8192}')
        lx(a,V_L2,0,t,[(5,1,15),(0,5,7)])
        for k in range(NTI):
            a(f's_add_u32 s{S_T}, s{S_I}, {6*k-5 if k else (6*k-5)&0xffffffff}')
            a(f's_mul_i32 s{S_T+1}, s{S_T}, 37'); a(f's_lshr_b32 s{S_T+1}, s{S_T+1}, 8'); a(f's_mul_i32 s{S_T+2}, s{S_T+1}, 7'); a(f's_sub_u32 s{S_T+2}, s{S_T}, s{S_T+2}')
            a(f's_lshl_b32 s{S_T+2}, s{S_T+2}, 16'); a(f's_lshl_b32 s{S_T+1}, s{S_T+1}, 12'); a(f's_sub_u32 s{S_T+2}, s{S_T+2}, s{S_T+1}'); a(f's_add_u32 s{S_O+k}, s{S_T+2}, {VX_OFF+7*4096}')
            a(f's_cmp_ge_u32 s{S_T}, {7*P["pfl"]}'); a(f's_cselect_b32 s{S_O+k}, 0x40000000, s{S_O+k}'); a(f's_mov_b32 s{S_R+k}, {VX_SEG}')
        a(f's_cmp_lt_u32 s{S_I}, 5'); a('s_cselect_b64 vcc, -1, 0'); a(f'v_cndmask_b32 v{V_L1}, v{V_L2}, v{V_L}, vcc')
        a(f's_lshl_b32 s{S_T}, s{S_I}, 13'); a(f's_add_u32 s{S_T}, s{S_T}, {XA_OFF}')
        a(f's_cmp_lt_u32 s{S_I}, 4'); a(f's_cselect_b32 s{S_O}, s{S_T}, s{S_O}'); a(f's_cselect_b32 s{S_R}, {XA_SEG}, s{S_R}')
        a(f's_cmp_eq_u32 s{S_I}, 4'); a(f's_cselect_b32 s{S_O}, {RING_OFF+R_M+2*8192}, s{S_O}'); a(f's_cselect_b32 s{S_R}, 8192, s{S_R}')
        a(f's_lshl_b32 s{S_T}, s{S_ID}, 2'); a(f's_add_u32 s{S_T}, s{S_T}, s{S_W}'); a(f's_lshl_b32 s{S_T+1}, s{S_T}, 14'); a(f's_add_u32 s{S_T+1}, s{S_T+1}, {RING_OFF}')
        a(f'buffer_load_dword v{V_D}, v{V_L}, {ws}, s{S_T+1} offen sc1'); a(f's_add_u32 s{S_T+1}, s{S_T+1}, 8192'); a(f'buffer_load_dword v{V_D}, v{V_L}, {ws}, s{S_T+1} offen sc1')
        a(f's_and_b32 s{S_T}, s{S_T}, 1'); a(f's_lshl_b32 s{S_T}, s{S_T}, 13'); a(f's_add_u32 s{S_T}, s{S_T}, {RING_OFF+R_M}'); a(f'buffer_load_dword v{V_D}, v{V_L}, {ws}, s{S_T} offen sc1')
    def body(sc,tag):
        st=' sc1' if sc else ''
        AH=P['pfah']; LD=P['pfld']; S_FO=32; S_FF=33
        pub=a.new('PFpub')
        a(f'v_mov_b32 v{V_TH}, 0'); a(f'ds_write_b32 v{V_TH}, v{V_TH}'); a('s_waitcnt lgkmcnt(0)'); a('s_barrier')
        a(f's_cmp_eq_u32 s{S_W}, 0'); a(f's_cbranch_scc1 {pub}')
        a(f's_mov_b32 s{S_S}, 0')
        top=a.new('PFtop'); lp=a.new('PFg'); go=a.new('PFgo')
        a.label(top)
        a(f's_sub_i32 s{S_T}, s{S_S}, {LD-1}'); a(f's_max_i32 s{S_T}, s{S_T}, 1'); a(f's_mov_b32 s{S_TO}, {8*WTIME}')
        a.label(lp)
        a(f'ds_read_b32 v{V_T}, v{V_TH}'); a('s_waitcnt lgkmcnt(0)'); a(f'v_cmp_gt_u32 vcc, s{S_T}, v{V_T}'); a(f's_cbranch_vccz {go}')
        a('s_sleep 1'); a(f's_sub_u32 s{S_TO}, s{S_TO}, 1'); a(f's_cbranch_scc0 {lp}'); a(f's_branch {abort}')
        a.label(go)
        for k in range(NTI):
            a(f's_waitcnt vmcnt({P["pfq"]})')
            a(f'buffer_load_dword v{V_D}, v{V_L2 if k else V_L1}, {ws}, s{S_O+k} offen sc1'); a(f's_add_u32 s{S_O+k}, s{S_O+k}, s{S_R+k}')
        a(f's_add_u32 s{S_S}, s{S_S}, 1'); a(f's_cmp_lt_u32 s{S_S}, {NSEG-1}'); a(f's_cbranch_scc1 {top}')
        a('s_branch L_fin')
        a.label(pub)
        a(f's_mov_b32 s{S_FF}, {FL_OFF}')
        for k in range(AH+1): wpoll(a,V_PO,f's{S_FF}',V_T,1,sleep=2); a(f's_add_u32 s{S_FF}, s{S_FF}, 256')
        def note():
            a(f's_add_u32 s{S_T}, s{S_S}, 1'); a(f'v_mov_b32 v{V_T}, s{S_T}'); a(f'ds_write_b32 v{V_TH}, v{V_T}')
            a(f's_add_u32 s{S_T}, s{S_S}, {AH}'); a(f'v_mov_b32 v{V_HV}, s{S_T}')
            a(f'buffer_store_dword v{V_HV}, v{V_HS}, s[{S_RING}:{S_RING+3}], 0 offen{st}')
        def mflag():
            a('s_waitcnt lgkmcnt(0)'); a('s_mov_b32 s2, 1'); a(f's_atomic_or s2, s[58:59], s{S_FO} glc'); a(f's_add_u32 s{S_FO}, s{S_FO}, 256')
        a(f's_mov_b32 s{S_S}, 0'); note()
        a(f's_lshl_b32 s{S_FO}, s{S_ID}, 2'); a(f's_add_u32 s{S_FO}, s{S_FO}, {FL_OFF+192}')
        a(f's_mov_b32 s{S_S}, 1')
        nx=a.new('pubn'); lp=a.new('pub'); ok=a.new('pubok'); first=a.new('pubf')
        def lds():
            for k in range(4): a(f'buffer_load_dwordx4 {vr(V_MD+4*k,4)}, v{V_MO}, s[{S_RING}:{S_RING+3}], s{S_PM} offen offset:{1024*k} sc1')
            a(f'buffer_load_dword v{V_FI}, v{V_PO}, {ws}, s{S_FF} offen sc1')
        a.label(nx); a(f's_mov_b32 s{S_TO}, {WTIME}')
        lds(); a('s_waitcnt vmcnt(5)'); mflag()
        a.label(lp)
        a('s_waitcnt vmcnt(0)')
        a(f'v_subrev_u32 v{V_T}, 1, v{V_FI}')
        for k in range(8): a(f'v_max3_u32 v{V_T}, v{V_T}, v{V_MD+2*k}, v{V_MD+2*k+1}')
        a(f'v_cmp_eq_u32 vcc, -1, v{V_T}'); a(f's_cbranch_vccz {ok}')
        a('s_sleep 2'); lds(); a(f's_sub_u32 s{S_TO}, s{S_TO}, 1'); a(f's_cbranch_scc0 {lp}'); a(f's_branch {abort}')
        a.label(ok)
        note()
        for k in range(4): a(f'buffer_store_dwordx4 {vr(V_MD+4*k,4)}, v{V_MO}, {ws}, s{S_PG} offen offset:{1024*k} sc1')
        a(f's_add_u32 s{S_PM}, s{S_PM}, 8192'); a(f's_add_u32 s{S_PG}, s{S_PG}, 8192'); a(f's_add_u32 s{S_FF}, s{S_FF}, 256'); a(f's_min_u32 s{S_FF}, s{S_FF}, {FL_OFF+63*256}')
        a(f's_add_u32 s{S_S}, s{S_S}, 1'); a(f's_cmp_lt_u32 s{S_S}, {NSEG-1}'); a(f's_cbranch_scc1 {nx}')
        a('s_waitcnt vmcnt(0)'); mflag()
        a('s_branch L_fin')
    return setup, body

def gen_G(a, P):
    S_I=26; S_X0=20; S_X1=21; S_WO=27; S_F=24; S_O=22; S_THR=30; S_FLR=31; S_KB=32; S_KO=33
    V_L16,V_ONE,V_OOB,V_XO,V_T,V_T2,V_OO,V_PO,V_L = range(9)
    l=V_L; t=V_T
    a(f'v_mov_b32 v{l}, v0'); a(f'v_lshlrev_b32 v{V_L16}, 4, v{l}'); flagregs(a,V_ONE,V_OOB,l)
    lx(a,V_T2,l,t,[(4,1,0)]); a(f'v_mul_u32_u24 v{V_T2}, 14336, v{V_T2}'); lx(a,V_XO,l,t,[(5,1,8),(0,4,4)]); a(f'v_add_u32 v{V_XO}, v{V_XO}, v{V_T2}')
    lx(a,V_OO,l,t,[(4,1,14),(5,1,8),(0,4,4)])
    a(f's_lshl_b32 s{S_S}, s{S_J}, 3'); a(f's_lshl_b32 s{S_T}, s{S_W}, 1'); a(f's_add_u32 s{S_S}, s{S_S}, s{S_T}')
    a(f's_mul_i32 s{S_X0}, s{S_S}, {XF_SEG}'); a(f's_add_u32 s{S_X0}, s{S_X0}, {XF_OFF}'); a(f's_add_u32 s{S_X1}, s{S_X0}, {XF_SEG}')
    a(f's_mul_i32 s{S_WO}, s{S_ID}, {84*1024}'); a(f's_mul_i32 s{S_T}, s{S_W}, {21*1024}'); a(f's_add_u32 s{S_WO}, s{S_WO}, s{S_T}'); a(f's_add_u32 s{S_WO}, s{S_WO}, {WQF_OFF}')
    a(f's_mov_b32 m0, s{S_T}')
    for k in range(21):
        if k and k%4==0: a(f's_add_u32 s{S_WO}, s{S_WO}, 4096'); a('s_add_u32 m0, m0, 4096')
        a(f'buffer_load_dwordx4 v{V_L16}, {ws}, s{S_WO} offen offset:{1024*(k%4)} sc1 lds')
    ACC=16; BUF=112; DEP=8; WB=BUF+8*DEP
    acc=lambda b,sel: ACC+48*b+16*sel
    vm=Cnt(a,'vmcnt',63); lg=Cnt(a,'lgkmcnt',15)
    def ld(ks):
        r=BUF+8*(ks%DEP)
        if ks and ks%8==0: a(f's_add_u32 s{S_X0}, s{S_X0}, 4096'); a(f's_add_u32 s{S_X1}, s{S_X1}, 4096')
        return [f'buffer_load_dwordx4 {vr(r+4*b,4)}, v{V_XO}, {ws}, s{S_X0+b} offen offset:{512*(ks%8)} sc1' for b in range(2)]
    wr=lambda ks:[f'ds_read_b128 {vr(WB+12*(ks%2)+4*q,4)}, v{V_L16 if q<2 else V_T2} offset:{(28*(q%2)+ks)*1024}' for q in range(3)]
    for ks in range(DEP-1):
        for x in ld(ks): a(x); vm.issue(f'k{ks}')
    a(f'v_and_b32 v{t}, 31, v{l}'); a(f'v_cmp_eq_u32 vcc, 28, v{t}'); a(f'v_cndmask_b32 v{t}, 0, 1.0, vcc'); a(f'v_add_u32 v{V_T2}, {56*1024}, v{V_L16}')
    for b in range(2):
        for r in range(16): a(f'v_mov_b32 v{acc(b,2)+r}, v{t}')
    a(f's_waitcnt vmcnt({2*(DEP-1)})'); a('s_barrier')
    for x in wr(0): a(x); lg.issue('w0')
    for ks in range(28):
        vm.wait(f'k{ks}'); lg.wait(f'w{ks}'); r=BUF+8*(ks%DEP)
        L=[(x,lg,f'w{ks+1}') for x in (wr(ks+1) if ks<27 else [])]+[(x,vm,f'k{ks+DEP-1}') for x in (ld(ks+DEP-1) if ks+DEP-1<28 else [])]
        for b in range(2):
            for sel in range(3):
                d=vr(acc(b,sel),16); x=vr(r+4*b,4); w=vr(WB+12*(ks%2)+4*sel,4)
                A,B=(w,x) if sel<2 else (x,w)
                a(f'{M32} {d}, {A}, {B}, {d if (ks or sel==2) else 0}')
                if L: y,c,tg=L.pop(0); a(y); c.issue(tg)
    Q=112
    a(f's_lshl_b32 s{S_O}, s{S_ID}, 6'); a(f's_add_u32 s{S_O}, s{S_O}, s{S_S}'); a(f's_lshl_b32 s{S_O}, s{S_O}, 12'); a(f's_add_u32 s{S_O}, s{S_O}, {KF_OFF}')
    for b in range(2):
        for sel in (1,2):
            x=acc(b,sel)
            for r in range(8): a(f'v_cvt_pk_bf16_f32 v{x+r}, v{x+2*r}, v{x+2*r+1}')
            for f in range(2): a(f'buffer_store_dwordx4 {vr(x+4*f,4)}, v{V_L16}, {ws}, s{S_O} offen offset:{(2*(sel-1)+f)*1024} sc1')
        if b==0: a(f's_add_u32 s{S_O}, s{S_O}, 4096')
    ng=a.new('ng'); a(f's_cmp_lg_u32 s{S_ID}, 0'); a(f's_cbranch_scc1 {ng}')
    a(f's_lshl_b32 s{S_T}, s{S_S}, 7'); a(f's_add_u32 s{S_T}, s{S_T}, {G_OFF}')
    lx(a,V_T2,l,t,[(0,5,2),(5,1,30)]); a(f'v_xor_b32 v{V_T2}, 0x40000000, v{V_T2}')
    for b in range(2):
        y=BUF+20+b
        a(f'v_mul_f32 v{y}, 0xbfb8aa3b, v{acc(b,0)+12}'); a(f'v_exp_f32 v{y}, v{y}'); a(f'v_add_f32 v{y}, 1.0, v{y}'); a(f'v_rcp_f32 v{y}, v{y}'); a('s_nop 0')
        a(f'buffer_store_dword v{y}, v{V_T2}, {ws}, s{S_T} offen offset:{128*b} sc1')
    a.label(ng)
    a(f's_mov_b32 s{S_T}, 0x3e8b97f6')
    for b in range(2):
        x=acc(b,0)
        for r in range(16): a(f'v_mul_f32 v{x+r}, s{S_T}, v{x+r}')
        for r in range(8): a(f'v_cvt_pk_bf16_f32 v{Q+8*b+r}, v{x+2*r}, v{x+2*r+1}')
    a(f's_lshl_b32 s{S_O}, s{S_ID}, 8'); a(f's_add_u32 s{S_O}, s{S_O}, {FK_OFF}'); a(f's_lshl_b32 s{S_F}, s{S_J}, 2'); a(f's_add_u32 s{S_F}, s{S_F}, s{S_O}')
    a('s_waitcnt vmcnt(0)'); a('s_barrier')
    lx(a,V_PO,l,t,[(0,3,2)])
    wave0(a, lambda:(a(f'buffer_store_dword v{V_ONE}, v{V_OOB}, {ws}, s{S_F} offen sc1'), wpoll(a,V_PO,f's{S_O}',V_T,1,sleep=2)))
    a('s_barrier')
    tl(a,P,72)
    S=[16,32]; C=[48,64]; O=[80,96]; Pp=[128,136]; KV=144; NR=4
    kv=lambda i,f: vr(KV+16*(i%NR)+4*f,4)
    a(f's_lshl_b32 s{S_KO}, s{S_ID}, 18'); a(f's_add_u32 s{S_KO}, s{S_KO}, {KF_OFF}')
    kld=lambda i,f: f'buffer_load_dwordx4 {kv(i,f)}, v{V_L16}, {ws}, s{S_KO} offen offset:{1024*f} sc1'
    nxt=f's_add_u32 s{S_KO}, s{S_KO}, 4096'
    for i in range(2):
        for f in range(4): a(kld(i,f))
        a(nxt)
    for r in range(32): a(f'v_mov_b64 {vr(48+2*r,2)}, 0')
    for r in range(4): a(f'v_mov_b64 {vr(Pp[1]+2*r,2)}, 0')
    for r in range(4): a(f'v_mov_b64 {vr(KV+16*(NR-1)+8+2*r,2)}, 0')
    a(f's_mov_b32 s{S_THR}, 0xff800000'); a(f's_mov_b32 s{S_FLR}, 0xff800000'); a(f's_mov_b32 s{S_KB}, 0')
    qk=lambda b,i:[f'{M32} {vr(S[b],16)}, {kv(i,0)}, {vr(Q+8*b,4)}, {vr(C[b],16)}', f'{M32} {vr(S[b],16)}, {kv(i,1)}, {vr(Q+8*b+4,4)}, {vr(S[b],16)}']
    pv=lambda b,i:[f'{M32} {vr(O[b],16)}, {kv(i,2+f)}, {vr(Pp[b]+4*f,4)}, {vr(O[b],16)}' for f in range(2)]
    a('s_waitcnt vmcnt(4)')
    for x in qk(0,0): a(x)
    a('s_nop 15')
    top=a.new('Atop'); a.label(top); ool=[]
    def phase(b, mf, extra):
        s=S[b]; rsc=a.new('rsc'); bk=a.new('rsb')
        a(mf[0])
        a(f'v_max3_f32 v{t}, v{s}, v{s+1}, v{s+2}'); a(f'v_max3_f32 v{V_T2}, v{s+3}, v{s+4}, v{s+5}')
        a(f'v_max3_f32 v{t}, v{t}, v{s+6}, v{s+7}'); a(f'v_max3_f32 v{V_T2}, v{V_T2}, v{s+8}, v{s+9}')
        a(f'v_max3_f32 v{t}, v{t}, v{s+10}, v{s+11}'); a(f'v_max3_f32 v{V_T2}, v{V_T2}, v{s+12}, v{s+13}')
        a(mf[1])
        a(f'v_max3_f32 v{t}, v{t}, v{s+14}, v{s+15}'); a(f'v_max_f32 v{t}, v{t}, v{V_T2}')
        a(f'v_cmp_lt_f32 vcc, s{S_THR}, v{t}')
        for x in extra: a(x)
        a(f's_cbranch_vccnz {rsc}'); a.label(bk)
        for r in range(16):
            a(f'v_exp_f32 v{s+r}, v{s+r}')
            if r==1: a(mf[2])
            if r==5: a(mf[3])
            if r>=9 : a(f'v_cvt_pk_bf16_f32 v{Pp[b]+r-9}, v{s+2*(r-9)}, v{s+2*(r-9)+1}')
        a(f'v_cvt_pk_bf16_f32 v{Pp[b]+7}, v{s+14}, v{s+15}')
        def out():
            a.label(rsc)
            a(f'v_mov_b32 v{V_T2}, v{t}'); a(f'v_permlane32_swap_b32 v{t}, v{V_T2}'); a(f'v_max3_f32 v{t}, v{t}, v{V_T2}, s{S_FLR}')
            a(f'v_max_f32 v{V_T2}, 0, v{t}'); a(f'v_exp_f32 v{V_T2}, -v{V_T2}')
            for r in range(16): a(f'v_sub_f32 v{s+r}, v{s+r}, v{t}')
            for r in range(16): a(f'v_sub_f32 v{C[b]+r}, v{C[b]+r}, v{t}')
            for r in range(16): a(f'v_mul_f32 v{O[b]+r}, v{O[b]+r}, v{V_T2}')
            a(f's_branch {bk}')
        ool.append(out)
    for i in range(NR):
        phase(0, qk(1,i)+pv(1,i-1), [kld(i+2,0),kld(i+2,1)])
        a('s_waitcnt vmcnt(4)')
        phase(1, qk(0,i+1)+pv(0,i), [kld(i+2,2),kld(i+2,3),nxt])
        if i==0: a(f's_mov_b32 s{S_THR}, 0x41000000'); a(f's_mov_b32 s{S_FLR}, 0')
    a(f's_add_u32 s{S_KB}, s{S_KB}, {NR}'); a(f's_cmp_lt_u32 s{S_KB}, 64'); a(f's_cbranch_scc1 {top}')
    for x in pv(1,NR-1): a(x)
    a(f's_lshl_b32 s{S_O}, s{S_S}, 15'); a(f's_lshl_b32 s{S_T}, s{S_ID}, 10'); a(f's_add_u32 s{S_O}, s{S_O}, s{S_T}'); a(f's_add_u32 s{S_O}, s{S_O}, {OF_OFF}')
    for b in range(2):
        o=O[b]
        a(f'v_mov_b32 v{t}, v{o+12}'); a(f'v_mov_b32 v{V_T2}, v{o+12}'); a(f'v_permlane32_swap_b32 v{t}, v{V_T2}'); a(f'v_rcp_f32 v{V_T2}, v{V_T2}')
        for r in range(16): a(f'v_mul_f32 v{o+r}, v{o+r}, v{V_T2}')
        for r in range(8): a(f'v_cvt_pk_bf16_f32 v{o+r}, v{o+2*r}, v{o+2*r+1}')
        for f in range(2): a(f'buffer_store_dwordx4 {vr(o+4*f,4)}, v{V_OO}, {ws}, s{S_O} offen offset:{512*f} sc1')
        if b==0: a(f's_add_u32 s{S_O}, s{S_O}, 32768')
    a(f's_lshl_b32 s{S_F}, s{S_J}, 8'); a(f's_lshl_b32 s{S_T}, s{S_ID}, 2'); a(f's_add_u32 s{S_F}, s{S_F}, s{S_T}'); a(f's_add_u32 s{S_F}, s{S_F}, {FO_OFF}')
    a('s_waitcnt vmcnt(0)'); a('s_barrier')
    setflag(a,V_ONE,V_OOB,S_F)
    ot=a.new('Otask'); a(f's_branch {ot}')
    for o in ool: o()
    a.label(ot); tl(a,P,74)
    no=a.new('no'); a(f's_bitcmp1_b32 s{S_I}, 0'); a(f's_cbranch_scc0 {no}')
    a(f's_lshr_b32 s{S_J}, s{S_J}, 1'); a(f'v_mov_b32 v0, v{l}'); a('s_branch L_roleS')
    a.label(no)
    a(f's_lshr_b32 s{S_I}, s{S_I}, 1'); a(f's_cmp_ge_u32 s{S_I}, {7*NOG}'); a('s_cbranch_scc1 L_fin')
    S_CG=20; S_A=21; S_B=27
    V_L4=9; V_G=10; V_CW=12; V_CR=13; V_ST=14; V_PB=15; V_C4=V_XO
    FX=16; FP=80; FM=112; FPM=128; AA=136; AB=168; G1=200
    WO=lambda n,hl: ar(16*n+4*hl,4)
    a(f's_mul_i32 s{S_S}, s{S_I}, 147'); a(f's_lshr_b32 s{S_S}, s{S_S}, 10'); a(f's_mul_i32 s{S_T}, s{S_S}, 7'); a(f's_sub_u32 s{S_CG}, s{S_I}, s{S_T}')
    a(f's_lshl_b32 s{S_T}, s{S_CG}, 16'); a(f's_lshl_b32 s{S_T+1}, s{S_W}, 12'); a(f's_add_u32 s{S_T}, s{S_T}, s{S_T+1}'); a(f's_add_u32 s{S_T}, s{S_T}, {WOF_OFF}')
    for n in range(4):
        for hl in range(4): a(f'buffer_load_dwordx4 {WO(n,hl)}, v{V_L16}, {ws}, s{S_T} offen offset:{1024*hl} sc1')
        a(f's_add_u32 s{S_T}, s{S_T}, 16384')
    a(f'v_lshlrev_b32 v{V_L4}, 2, v{l}'); lx(a,V_C4,l,t,[(0,4,2)]); lx(a,V_PB,l,t,[(0,5,2)],64)
    a(f's_lshl_b32 s{S_T}, s{S_W}, 13'); a(f'v_add_u32 v{V_CW}, s{S_T}, v{V_L16}'); a(f's_lshl_b32 s{S_T}, s{S_W}, 11'); a(f'v_add_u32 v{V_CR}, s{S_T}, v{V_L16}')
    lx(a,V_T2,l,t,[(2,2,3),(0,2,0)]); a(f'v_mul_u32_u24 v{V_T2}, 896, v{V_T2}')
    a(f's_lshl_b32 s{S_T}, s{S_CG}, 7'); a(f's_lshl_b32 s{S_T+1}, s{S_W}, 5'); a(f's_add_u32 s{S_T}, s{S_T}, s{S_T+1}'); lx(a,V_ST,l,t,[(4,2,3)],f's{S_T}'); a(f'v_add_u32 v{V_ST}, v{V_ST}, v{V_T2}')
    top=a.new('Otop'); a.label(top)
    a(f's_lshl_b32 s{S_F}, s{S_S}, 8'); a(f's_add_u32 s{S_F}, s{S_F}, {FL_OFF}')
    a(f's_lshr_b32 s{S_O}, s{S_S}, 3'); a(f's_lshl_b32 s{S_O}, s{S_O}, 8'); a(f's_add_u32 s{S_O}, s{S_O}, {FO_OFF}')
    wave0(a, lambda:(wpoll(a,V_C4,f's{S_O}',V_T,1,sleep=4), wpoll(a,V_C4,f's{S_F}',V_T,1,sleep=4)))
    a('s_barrier')
    a(f's_lshl_b32 s{S_A}, s{S_S}, 15'); a(f's_lshl_b32 s{S_T+1}, s{S_W}, 12'); a(f's_add_u32 s{S_A}, s{S_A}, s{S_T+1}')
    def frags(dst, off):
        a(f's_add_u32 s{S_T}, s{S_A}, {off}')
        for tt in range(2):
            for hl in range(4): a(f'buffer_load_dwordx4 {vr(dst+16*tt+4*hl,4)}, v{V_L16}, {ws}, s{S_T} offen offset:{1024*hl} sc1')
            if tt==0: a(f's_add_u32 s{S_T}, s{S_T}, 16384')
    a(f's_lshl_b32 s{S_T}, s{S_S}, 7'); a(f's_add_u32 s{S_T}, s{S_T}, {G_OFF}')
    for tt in range(2): a(f'buffer_load_dword v{V_G+tt}, v{V_C4}, {ws}, s{S_T} offen offset:{64*tt} sc1')
    frags(FP,OF_OFF)
    a(f's_mul_i32 s{S_T}, s{S_S}, {VX_SEG}'); a(f's_lshl_b32 s{S_T+2}, s{S_CG}, 16'); a(f's_add_u32 s{S_B}, s{S_T}, s{S_T+2}'); a(f's_lshl_b32 s{S_T+2}, s{S_W}, 10'); a(f's_add_u32 s{S_B}, s{S_B}, s{S_T+2}'); a(f's_add_u32 s{S_T}, s{S_B}, {VX_OFF}')
    for n in range(4):
        for hl in range(4): a(f'buffer_load_dwordx4 {vr(FX+16*n+4*hl,4)}, v{V_L16}, {ws}, s{S_T} offen sc1'); a(f's_add_u32 s{S_T}, s{S_T}, 4096')
    a('s_waitcnt vmcnt(16)')
    for hl in range(4):
        for n in range(4):
            for tt in range(2):
                d=vr(AA+8*n+4*tt,4); a(f'{MF} {d}, {WO(n,hl)}, {vr(FP+16*tt+4*hl,4)}, {d if hl else 0}')
    for tt in range(2): a(f'v_sub_f32 v{G1+tt}, 1.0, v{V_G+tt}')
    for n in range(4):
        for tt in range(2):
            for r in range(4): a(f'v_mul_f32 v{AA+8*n+4*tt+r}, v{AA+8*n+4*tt+r}, v{V_G+tt}')
    wave0(a, lambda: wpoll(a,V_PB,f's{S_F}',V_T,1,sleep=1))
    a('s_barrier'); tl(a,P,70)
    frags(FP,PX_OFF)
    a(f's_lshr_b32 s{S_T}, s{S_A}, 2'); a(f's_add_u32 s{S_T}, s{S_T}, {PM_OFF}')
    for tt in range(2):
        for hl in range(4): a(f'buffer_load_dword v{FPM+4*tt+hl}, v{V_L4}, {ws}, s{S_T} offen offset:{256*hl} sc1')
        if tt==0: a(f's_add_u32 s{S_T}, s{S_T}, 4096')
    a(f's_lshr_b32 s{S_T}, s{S_B}, 2'); a(f's_add_u32 s{S_T}, s{S_T}, {VM_OFF}')
    for n in range(4):
        for hl in range(4): a(f'buffer_load_dword v{FM+4*n+hl}, v{V_L4}, {ws}, s{S_T} offen offset:{1024*hl} sc1')
        if n<3: a(f's_add_u32 s{S_T}, s{S_T}, 4096')
    for tt in range(2):
        for hl in range(4):
            a(f's_waitcnt vmcnt({24+7-4*tt-hl})')
            for n in range(4):
                d=vr(AB+8*n+4*tt,4); a(f'{MF} {d}, {vr(FX+16*n+4*hl,4)}, {vr(FP+16*tt+4*hl,4)}, {d if hl else 0}')
    for n in range(4):
        a(f's_waitcnt vmcnt({12-4*n})')
        for tt in range(2):
            d=vr(AB+8*n+4*tt,4); a(f'{MF} {d}, {vr(FM+4*n,4)}, {vr(FPM+4*tt,4)}, {d}')
    for n in range(4):
        for tt in range(2):
            x=8*n+4*tt
            for r in range(4): a(f'v_fmac_f32 v{AA+x+r}, v{AB+x+r}, v{G1+tt}')
            a(f'ds_write_b128 v{V_CW}, {vr(AA+x,4)} offset:{256*x}')
    a(f's_mul_i32 s{S_O}, s{S_S}, {32*896}')
    a('s_waitcnt lgkmcnt(0)'); a('s_barrier')
    for tt in range(2):
        for w in range(4): a(f'ds_read_b128 {vr(AB+16*tt+4*w,4)}, v{V_CR} offset:{8192*w+1024*tt}')
    for tt in range(2):
        x=AB+16*tt
        a(f's_waitcnt lgkmcnt({4-4*tt})')
        for (d,p,q) in ((0,0,4),(2,2,6),(8,8,12),(10,10,14),(0,0,8),(2,2,10)): a(f'v_pk_add_f32 {vr(x+d,2)}, {vr(x+p,2)}, {vr(x+q,2)}')
        a(f'v_cvt_pk_bf16_f32 v{x}, v{x}, v{x+1}'); a(f'v_cvt_pk_bf16_f32 v{x+1}, v{x+2}, v{x+3}')
        a(f'buffer_store_dwordx2 {vr(x,2)}, v{V_ST}, s[{S_OUT}:{S_OUT+3}], s{S_O} offen offset:{4*896*tt}')
    a(f's_add_u32 s{S_S}, s{S_S}, {NOG}'); a(f's_cmp_lt_u32 s{S_S}, {NSEG}'); a(f's_cbranch_scc1 {top}')
    a('s_branch L_fin')
```

```python
import sys
from asmlib import *
from layout import *
import chain, workers, prep
from chain import *
from workers import *
from prep import srd, kd, PREP_LDS
NAME='gated_mix__softmax_full_mha__memory_aug_recurrent_mem_tr__prompt'
MAIN=NAME+'_kernel'
MAIN_LDS=147456+1024
TICK_LDS=147456
S_DBG=56
def census(a, v, fast, allin):
    lp=a.new('cs'); T=S_T
    a(f's_mov_b32 s{S_TO}, {WTIME}'); a(f'v_mbcnt_lo_u32_b32 v{v}, -1, 0'); a(f'v_cmp_gt_u32 vcc, 8, v{v}'); a(f'v_lshlrev_b32 v{v}, 5, v{v}'); a(f'v_cndmask_b32 v{v}, 4, v{v}, vcc')
    a.label(lp)
    a(f'global_load_dword v{v+1}, v{v}, s[{S_DBG}:{S_DBG+1}] sc1'); a('s_waitcnt vmcnt(0)')
    a(f'v_min_u32 v{v+2}, 32, v{v+1}'); a(f'v_readlane_b32 s{T+1}, v{v+1}, 8')
    for r in range(8):
        a(f'v_readlane_b32 s{T}, v{v+2}, {r}')
        if r==0 and fast: a(f's_cmp_eq_u32 s{T}, 32'); a(f's_cbranch_scc1 {fast}')
        a(f's_add_u32 s{T+1}, s{T+1}, s{T}')
    a(f's_cmp_ge_u32 s{T+1}, 256'); a(f's_cbranch_scc1 {allin}')
    a(f's_sub_u32 s{S_TO}, s{S_TO}, 1'); a(f's_cbranch_scc0 {lp}'); a('s_branch L_exit')
from prep2 import gen_tasks, gen_init, zero_flags, early_touch, wait_mat, wait_all, aggregate, K
def gen_main(a,P):
    nV=16*NV; nS=16*NSW
    a(MAIN+':')
    a(f"""s_cmp_ge_u32 s2, 256
s_cbranch_scc1 L_exit
s_load_dwordx4 s[{S_DBG}:{S_DBG+3}], s[0:1], 96
s_load_dwordx16 s[{K}:{K+15}], s[0:1], 0
s_load_dwordx8 s[{K+16}:{K+23}], s[0:1], 64
s_getreg_b32 s3, hwreg(HW_REG_XCC_ID)
s_and_b32 s3, s3, 15
v_lshrrev_b32 v1, 6, v0
v_and_b32 v0, 63, v0
s_nop 0
v_readfirstlane_b32 s{S_W}, v1""")
    if P.get('tl'): a('s_memrealtime s[100:101]')
    a('s_waitcnt lgkmcnt(0)')
    srd(a,S_OUT,K+22,2048*896); srd(a,S_WS,S_DBG+2,WS_SIZE); srd(a,S_RING,S_DBG+2,RING_SIZE,RING_OFF)
    T=S_T
    a(f"""s_xor_b32 s{T+6}, s3, {P['cx']}
s_and_b32 s{T+6}, s{T+6}, 7
s_mov_b32 s{T+7}, 1
s_cmp_lg_u32 s{S_W}, 0
s_cbranch_scc1 L_t0
s_lshl_b32 s{T+5}, s{T+6}, 5
s_cmp_ge_u32 s3, 8
s_cselect_b32 s{T+5}, 8, s{T+5}
{'s_bitcmp1_b32 s2, 3' if P.get('fo') else ''}
{f's_cselect_b32 s{T+5}, 8, s{T+5}' if P.get('fo') else ''}
s_atomic_add s{T+7}, s[{S_DBG}:{S_DBG+1}], s{T+5} glc
L_t0:""")
    early_touch(a,P,MAIN,P['touch'])
    a(f"""s_cmp_lg_u32 s{S_W}, 0
s_cbranch_scc1 L_notick
s_waitcnt lgkmcnt(0)
s_lshl_b32 s{T+1}, s{T+6}, 5
s_add_u32 s{T+1}, s{T+1}, s{T+7}
s_cmp_eq_u32 s{T+5}, 8
s_cselect_b32 s{T+7}, 32, s{T+7}
s_cmp_lt_u32 s{T+7}, 32
s_cbranch_scc1 L_gottick
s_mov_b32 s{T+7}, 1
s_atomic_add s{T+7}, s[{S_DBG}:{S_DBG+1}], 4 glc
s_waitcnt lgkmcnt(0)""")
    census(a,12,None,'L_all')
    a('L_all:')
    a(f's_mov_b32 s{T+1}, 0')
    for r in range(8):
        nx=a.new('sl')
        a(f'v_readlane_b32 s{T}, v14, {r}'); a(f's_sub_u32 s{T+2}, 32, s{T}'); a(f's_cmp_lt_u32 s{T+7}, s{T+2}'); a(f's_cbranch_scc0 {nx}')
        a(f's_add_u32 s{T+1}, s{T}, s{T+7}'); a(f's_add_u32 s{T+1}, s{T+1}, {32*r}')
        a.label(nx); a(f's_sub_u32 s{T+7}, s{T+7}, s{T+2}')
    a(f"""L_gottick:
v_mov_b32 v3, s{T+1}
v_mov_b32 v1, {TICK_LDS}
ds_write_b32 v1, v3
s_waitcnt lgkmcnt(0)
L_notick:
s_barrier
v_mov_b32 v1, {TICK_LDS}
ds_read_b32 v3, v1
s_waitcnt lgkmcnt(0)
v_readfirstlane_b32 s{S_G}, v3
s_and_b32 s{S_G}, s{S_G}, 255
{'s_memrealtime s[0:1]' if P.get('tl') else ''}
s_cmp_ge_u32 s{S_G}, 32
s_cbranch_scc1 L_worker""")
    gen_init(a,P)
    if P.get('tl'): a('s_memrealtime s[88:89]')
    a(f"""s_mov_b32 s{S_RETRY}, 0
s_mov_b32 s{S_RETRY2}, 0
s_and_b32 s{S_ID}, s{S_G}, 15
s_cmp_ge_u32 s{S_G}, 30
s_cbranch_scc1 L_rolePF
s_cmp_ge_u32 s{S_G}, 16
s_cbranch_scc1 L_roleB""")
    tl=lambda r: a(f's_memrealtime s[{r}:{r+1}]') if P.get('tl') else None
    def mode(slow, vt):
        fast=a.new('fast'); census(a,vt,fast,slow); a.label(fast); tl(72)
        if P.get('tl'): a('s_memtime s[80:81]')
    wait_mat(a,0,16,S_ID); tl(90)
    su,bo=gen_A(a,P); su(); wait_all(a,16); mode('L_Aslow',16); bo(P.get('sc',0),'f'); a.label('L_Aslow'); bo(1,'s')
    a.label('L_roleB')
    a(f's_lshl_b32 s{T+1}, s{S_W}, 2'); a(f's_add_u32 s{T+1}, s{T+1}, 16'); wait_mat(a,0,16,T+1,True); tl(90)
    su,bo=gen_B(a,P); su()
    if P.get('tl'): a('s_waitcnt vmcnt(0)'); tl(74)
    wait_all(a,16)
    a('v_lshrrev_b32 v16, 2, v0'); a('v_and_b32 v16, 63, v16'); a(f's_mov_b32 s{S_T}, {FL_OFF}'); wpoll(a,16,f's{S_T}',17,1)
    mode('L_Bslow',16); bo(P.get('sc',0),'f'); a.label('L_Bslow'); bo(1,'s')
    a.label('L_rolePF'); a(f's_and_b32 s{S_ID}, s{S_G}, 1')
    a(f's_cmp_lg_u32 s{S_ID}, 0'); a('s_cbranch_scc1 L_noagg'); aggregate(a,16); a.label('L_noagg'); wait_all(a,16)
    su,bo=gen_PF(a,P); su(); mode('L_Pslow',16); bo(P.get('sc',0),'f'); a.label('L_Pslow'); bo(1,'s')
    a.label('L_worker')
    gen_tasks(a,P)
    tab=0; nvs=0; ng=0
    for r in range(2,8):
        if r in P['vsx']: tab|=(8|nvs)<<(4*r); nvs+=1
        else: tab|=ng<<(4*r); ng+=1
    assert nvs==2 and ng==4
    a(f"""s_mov_b32 s{S_RETRY}, 0
s_mov_b32 s{S_RETRY2}, 0
s_cmp_lt_u32 s{S_G}, 64
s_cbranch_scc1 L_fin
s_lshr_b32 s{T}, s{S_G}, 5
s_lshl_b32 s{T}, s{T}, 2
s_lshr_b32 s{T}, {tab}, s{T}
s_and_b32 s{T+1}, s{T}, 3
s_lshl_b32 s26, s{T+1}, 5
s_and_b32 s{T+2}, s{S_G}, 31
s_add_u32 s26, s26, s{T+2}
s_bitcmp1_b32 s{T}, 3
s_cbranch_scc0 L_roleG
s_lshr_b32 s{S_ID}, s26, 2
s_and_b32 s{S_J}, s26, 3""")
    gen_V(a,P)
    a.label('L_roleS'); gen_S(a,P)
    a.label('L_roleG'); a(f's_lshr_b32 s{S_ID}, s26, 3'); a(f's_and_b32 s{S_J}, s26, 7')
    wait_all(a,16); gen_G(a,P)
    a.label('L_fin')
    flush_stamps(a,P)
    if P.get('tl'):
        a('s_memrealtime s[78:79]'); a('s_memtime s[82:83]'); a('s_waitcnt lgkmcnt(0)'); a('s_sub_u32 s62, s82, s80')
        a(f's_lshl_b32 s{S_T}, s{S_G}, 2'); a(f's_add_u32 s{S_T}, s{S_T}, s{S_W}'); a(f's_lshl_b32 s{S_T}, s{S_T}, 6'); a(f's_add_u32 s{S_T}, s{S_T}, {DBG_OFF}')
        for k,r in enumerate([100,72,74,78,S_RETRY,S_RETRY2,3,70,88,90,92,94,96,98,0,62]): a(f'v_mov_b32 v{20+k}, s{r}')
        a('v_mov_b32 v40, 0')
        if P.get('probe'):
            wid,ra,rb,k=P['probe']; sk=a.new('pb'); lp=a.new('pl')
            a(f's_cmp_lg_u32 s{S_G}, {wid}'); a(f's_cbranch_scc1 {sk}')
            a(f's_sub_u32 s84, s{rb}, s{ra}'); a(f's_mul_i32 s84, s84, {k}'); a('s_min_u32 s84, s84, 100000')
            a.label(lp); a('s_memrealtime s[86:87]'); a('s_waitcnt lgkmcnt(0)'); a('s_sub_u32 s86, s86, s78'); a('s_cmp_lt_u32 s86, s84'); a(f's_cbranch_scc1 {lp}')
            a.label(sk)
        if P.get('dbgtl'):
            gx=[r for r in range(2,8) if r not in P['vsx']]; gid=32*gx[0]; vid=32*P['vsx'][0]
            for wid,items in ((0,[(3,20),(4,29),(5,21),(6,23)]),(16,[(7,21)]),(gid,[(9,23),(10,28),(11,30),(12,33),(14,21),(15,22)]),(vid,[(13,21)])):
                sk=a.new('dt'); a(f's_cmp_lg_u32 s{S_G}, {wid}'); a(f's_cbranch_scc1 {sk}')
                for dw,v in items: a(f'global_store_dword v40, v{v}, s[{S_DBG}:{S_DBG+1}] offset:{4*dw}')
                a.label(sk)
        for k in range(4): a(f'buffer_store_dwordx4 v[{20+4*k}:{23+4*k}], v40, s[{S_WS}:{S_WS+3}], s{S_T} offen offset:{16*k}')
    a.label('L_exit'); a('s_endpgm')

DEF=dict(chain.DEF); DEF.update(time=0,nhm=15,cx=3,pfah=3,pfld=2,pfl=0,pfq=1,sdelay=0,tl=0,order='BA',touch='',lt=2,tq=1,tcode=1,tlb=0,miscr=1,vsx=(2,4))
def full(P):
    b=Asm(); gen_main(b,P); b.lines,_=hazards(b.lines,verbose=P.get('verbose'))
    hdr=open('cdna_kernels/'+NAME+'.s.ref').read().split('; Override launch')[0] if P.get('hdr') else ''
    return hdr+f"""; @launch grid=(256,1,1) block=(256,1,1) lds={MAIN_LDS}
.amdgcn_target "amdgcn-amd-amdhsa--gfx950"
.text
.globl {MAIN}
.p2align 8
.type {MAIN},@function
"""+b.text()+'.section .rodata,"a"\n'+kd(MAIN,512,256)
if __name__=='__main__':
    P=dict(DEF); P.update(eval('dict(%s)'%(sys.argv[2] if len(sys.argv)>2 else ''))); P['hdr']=1
    open(sys.argv[1] if len(sys.argv)>1 else 'full.s','w').write(full(P))
```
